```python
import torch

def _softmax(x, axis=-1):
    return torch.softmax(x, dim=axis)
def _gelu(x):
    return torch.nn.functional.gelu(x, approximate="tanh")
def _silu(x):
    return torch.nn.functional.silu(x)
def _sigmoid(x):
    return torch.sigmoid(x)
def _layernorm(x, axis=-1, eps=1e-5):
    m = x.mean(dim=axis, keepdim=True)
    v = x.var(dim=axis, keepdim=True, unbiased=False)
    return (x - m) / torch.sqrt(v + eps)
def _scatter_add(tgt, idx, src, axis=0):
    return tgt.clone().index_add_(axis, idx, src)
def _segment_sum(src, seg, n):
    out = torch.zeros((n,) + src.shape[1:], dtype=src.dtype)
    return out.index_add_(0, seg, src)
def _pad(x, pw):
    flat = tuple(v for pair in reversed(pw) for v in pair)
    return torch.nn.functional.pad(x, flat)

kernel_name = 'parallel_sum__grouped_kv_mqa__glu_gated_reglu__prompt'

def setup_inputs():

    _w = (lambda a: (lambda t: t.to(torch.bfloat16) if t.is_floating_point() else t)(torch.as_tensor(a)))
    def _A_setup():
        B, S, D, H = 1, 2048, 512, 32
        Dh = D // H
        return {
            "x": _w((lambda *s: torch.randn(*s, dtype=torch.bfloat16) * 0.05)(B, S, D)),
            "wq": _w((lambda *s: torch.randn(*s, dtype=torch.bfloat16) * 0.05)(D, H * Dh)),
            "wk": _w((lambda *s: torch.randn(*s, dtype=torch.bfloat16) * 0.05)(D, Dh)),
            "wv": _w((lambda *s: torch.randn(*s, dtype=torch.bfloat16) * 0.05)(D, Dh)),
            "wo": _w((lambda *s: torch.randn(*s, dtype=torch.bfloat16) * 0.05)(H * Dh, D)),
        }
    _A_in = _A_setup()

    def _B_setup():
        B, S, D, F = 1, 2048, 512, 1792
        return {
            "x": _w((lambda *s: torch.randn(*s, dtype=torch.bfloat16) * 0.05)(B, S, D)),
            "W_gate": _w((lambda *s: torch.randn(*s, dtype=torch.bfloat16) * 0.4)(D, F) * (2.0 / D) ** 0.5),
            "W_up": _w((lambda *s: torch.randn(*s, dtype=torch.bfloat16) * 0.4)(D, F) * (2.0 / D) ** 0.5),
            "W_down": _w((lambda *s: torch.randn(*s, dtype=torch.bfloat16) * 0.4)(F, D) * (1.0 / F) ** 0.5),
        }
    _B_in = _B_setup()

    return {
        "A_x": _A_in["x"],
        "A_wq": _A_in["wq"],
        "A_wk": _A_in["wk"],
        "A_wv": _A_in["wv"],
        "A_wo": _A_in["wo"],
        "B_x": _B_in["x"],
        "B_W_gate": _B_in["W_gate"],
        "B_W_up": _B_in["W_up"],
        "B_W_down": _B_in["W_down"],
    }

def reference(A_x, A_wq, A_wk, A_wv, A_wo, B_x, B_W_gate, B_W_up, B_W_down):
    def _A_ref(x, wq, wk, wv, wo):
        B, S, D = x.shape
        H = 32
        Dh = D // H
        q = (lambda x, *d: x.permute(*d))((x @ wq).reshape(B, S, H, Dh), 0, 2, 1, 3)
        k = x @ wk
        v = x @ wv
        scores = torch.einsum("bhqd,bkd->bhqk", q, k) * (Dh ** -0.5)
        p = _softmax(scores, axis=-1)
        o = torch.einsum("bhqk,bkd->bhqd", p, v)
        return (lambda x, *d: x.permute(*d))(o, 0, 2, 1, 3).reshape(B, S, H * Dh) @ wo

    def _B_ref(x, W_gate, W_up, W_down):
        gate = torch.einsum("bsd,df->bsf", x, W_gate)
        up = torch.einsum("bsd,df->bsf", x, W_up)
        gate = gate * (lambda x, dt: x.to(dt))(gate > 0, gate.dtype)
        h = gate * up
        return torch.einsum("bsf,fd->bsd", h, W_down)

    x = A_x
    xn = _layernorm(x, axis=-1)
    return x + _A_ref(xn, A_wq, A_wk, A_wv, A_wo) + _B_ref(xn, B_W_gate, B_W_up, B_W_down)
```

```python
import re

class Asm:
    def __init__(self):
        self.lines = []
        self.uid = 0
    def e(self, s, *rest):
        self.lines.append("  " + s)
        for r in rest:
            self.lines.append("  " + r)
    def c(self, s):
        self.lines.append("  ; " + s)
    def label(self, name):
        self.lines.append(name + ":")
    def raw(self, s):
        self.lines.append(s)
    def newlabel(self, base):
        self.uid += 1
        return f"{base}_{self.uid}"
    def nop(self, n):
        while n > 0:
            k = min(n, 16)
            self.e(f"s_nop {k-1}")
            n -= k
    def text(self):
        return "\n".join(self.lines) + "\n"

def v(i, n=1):
    return f"v{i}" if n == 1 else f"v[{i}:{i+n-1}]"
def s(i, n=1):
    return f"s{i}" if n == 1 else f"s[{i}:{i+n-1}]"

TRANS = ("v_exp_f32", "v_log_f32", "v_rcp_f32", "v_rsq_f32", "v_sqrt_f32", "v_sin_f32", "v_cos_f32", "v_exp_f16", "v_rcp_iflag_f32")
def _regs(tok):
    tok = tok.strip()
    neg = tok.lstrip("-")
    if neg.startswith("abs(") or neg.startswith("|"):
        neg = neg.replace("abs(", "").replace(")", "").replace("|", "")
    tok = neg
    m = re.fullmatch(r"([vsa])(\d+)", tok)
    if m: return {(m.group(1), int(m.group(2)))}
    m = re.fullmatch(r"([vsa])\[(\d+):(\d+)\]", tok)
    if m: return {(m.group(1), i) for i in range(int(m.group(2)), int(m.group(3)) + 1)}
    if tok == "vcc": return {("s", 106), ("s", 107)}
    if tok == "vcc_lo": return {("s", 106)}
    if tok == "vcc_hi": return {("s", 107)}
    if tok == "exec": return {("s", 126), ("s", 127)}
    if tok == "m0": return {("s", 124)}
    return set()

class Ins:
    __slots__ = ("op", "dst", "src", "text", "kind", "passes", "srcA", "srcB", "srcC", "lineno", "nopn")

def parse(line, lineno):
    t = line.split(";")[0].strip()
    if not t or t.endswith(":") or t.startswith("."): return None
    parts = t.split(None, 1)
    op = parts[0]
    args = []
    if len(parts) > 1:
        rest = parts[1]
        args = [a.strip() for a in rest.split(",")]
        if args:
            last = args[-1].split()
            args[-1] = last[0] if last else ""
            mods = last[1:]
        else: mods = []
    else: mods = []
    I = Ins(); I.op = op; I.text = t; I.lineno = lineno; I.dst = set(); I.src = set(); I.kind = "other"; I.passes = 0
    I.srcA = I.srcB = I.srcC = set(); I.nopn = 1
    base = re.sub(r"_(e32|e64|sdwa|dpp)$", "", op)
    if op == "s_nop":
        I.kind = "nop"; I.nopn = int(args[0], 0) + 1; return I
    if op.startswith("v_mfma"):
        I.kind = "mfma"
        I.passes = 8 if "32x32x16" in op else (4 if "16x16x32" in op else 16)
        I.dst = _regs(args[0]); I.srcA = _regs(args[1]); I.srcB = _regs(args[2]); I.srcC = _regs(args[3])
        I.src = I.srcA | I.srcB | I.srcC
        return I
    if op.startswith("v_"):
        I.kind = "valu"
        if base in TRANS: I.kind = "trans"
        if base.startswith("v_cmp"):
            I.dst = _regs(args[0]); I.src = set().union(*[_regs(a) for a in args[1:]])
        elif base in ("v_readfirstlane_b32", "v_readlane_b32"):
            I.kind = "readlane"; I.dst = _regs(args[0]); I.src = set().union(*[_regs(a) for a in args[1:]])
        elif base.startswith("v_permlane32_swap") or base.startswith("v_permlane16_swap"):
            I.kind = "permlane"; I.dst = _regs(args[0]) | _regs(args[1]); I.src = set(I.dst)
        elif base in ("v_add_co_u32", "v_sub_co_u32", "v_addc_co_u32", "v_subb_co_u32"):
            I.dst = _regs(args[0]) | _regs(args[1]); I.src = set().union(*[_regs(a) for a in args[2:]])
        else:
            I.dst = _regs(args[0]); I.src = set().union(*[_regs(a) for a in args[1:]]) if len(args) > 1 else set()
            if base in ("v_fmac_f32", "v_dot2c_f32_bf16", "v_pk_fmac_f16", "v_mac_f32"): I.src |= I.dst
            if base == "v_cndmask_b32" and len(args) == 3: I.src |= _regs("vcc")
            if "UNUSED_PRESERVE" in t: I.src |= I.dst
        if base.startswith("v_dot2"): I.kind = "dot"
        if op.endswith("_dpp") or any(m.startswith(("row_", "quad_perm", "wave_", "row_bcast")) for m in mods): I.kind = "dpp" if I.kind == "valu" else I.kind
        return I
    if op.startswith("buffer_") or op.startswith("global_"):
        I.kind = "vmem"
        isload = "load" in op
        lds = ("lds" in mods) or ("_lds_" in op)
        if op.startswith("buffer_"):
            if lds:
                I.src = set().union(*[_regs(a) for a in args]) | {("s", 124)}
                I.kind = "vmem_lds"
            elif isload:
                I.dst = _regs(args[0]); I.src = set().union(*[_regs(a) for a in args[1:]])
            elif op.startswith(("buffer_wbl2", "buffer_inv")):
                pass
            else:
                I.src = set().union(*[_regs(a) for a in args]); I.kind = "vmem_store"
                I.srcA = _regs(args[0])
                if "atomic" in op and "sc0" in mods: I.dst = _regs(args[0])
        else:
            if isload:
                I.dst = _regs(args[0]); I.src = set().union(*[_regs(a) for a in args[1:]])
            else:
                I.src = set().union(*[_regs(a) for a in args]); I.kind = "vmem_store"; I.srcA = _regs(args[1])
        return I
    if op.startswith("ds_"):
        I.kind = "ds"
        if "read" in op or "bpermute" in op or "swizzle" in op or "rtn" in op:
            I.dst = _regs(args[0]); I.src = set().union(*[_regs(a) for a in args[1:]])
        else:
            I.src = set().union(*[_regs(a) for a in args])
        return I
    if op.startswith("s_"):
        I.kind = "salu"
        if op.startswith(("s_cmp", "s_cbranch", "s_branch", "s_waitcnt", "s_barrier", "s_endpgm", "s_setprio", "s_sleep", "s_bitcmp")):
            I.src = set().union(*[_regs(a) for a in args]) if args else set()
        else:
            I.dst = _regs(args[0]) if args else set()
            I.src = set().union(*[_regs(a) for a in args[1:]]) if len(args) > 1 else set()
            if "saveexec" in op: I.dst |= _regs("exec")
        return I
    return I

def isv(rs): return {r for r in rs if r[0] in "va"}
def iss(rs): return {r for r in rs if r[0] == "s"}

def check_seq(ins, tag=""):
    probs = []
    n = len(ins)
    for j, C in enumerate(ins):
        dist = 0
        i = j - 1
        while i >= 0 and dist < 20:
            P = ins[i]
            need = 0; why = ""
            cv_src = isv(C.src); cv_dst = isv(C.dst)
            pv_dst = isv(P.dst)
            valuP = P.kind in ("valu", "trans", "dpp", "dot", "permlane", "readlane")
            valuC = C.kind in ("valu", "trans", "dpp", "dot", "permlane", "readlane")
            if valuP and C.kind == "mfma" and (pv_dst & cv_src): need = max(need, 2); why = "valu->mfma"
            if P.kind == "mfma":
                ps = P.passes
                tbl = {4: 8, 8: 12, 16: 20}[ps]
                if C.kind == "mfma":
                    if pv_dst & (isv(C.srcA) | isv(C.srcB)): need = max(need, tbl); why = "mfma D->A/B"
                    if pv_dst & isv(C.srcC):
                        if not (P.dst == C.srcC and P.passes == C.passes): need = max(need, {4: 6, 8: 10, 16: 18}[ps]); why = "mfma D->C partial"
                    if (pv_dst & cv_dst) and not (P.dst == C.dst):
                        need = max(need, {4: 6, 8: 10, 16: 18}[ps]); why = "mfma D->D partial"
                elif valuC or C.kind in ("vmem", "vmem_store", "vmem_lds", "ds"):
                    if pv_dst & (cv_src | cv_dst): need = max(need, tbl); why = "mfma D->valu/mem"
                    if valuC and (isv(P.srcC) & cv_dst) and not (isv(P.srcC) & pv_dst): need = max(need, {4: 3, 8: 7, 16: 15}[ps]); why = "mfma C WAR"
            if P.kind == "trans" and valuC and C.kind != "trans" and (pv_dst & cv_src): need = max(need, 1); why = "trans->valu"
            if P.kind == "trans" and C.kind == "trans" and (pv_dst & cv_src): need = max(need, 1); why = "trans->trans(safe)"
            if valuP and C.kind == "readlane" and (pv_dst & cv_src): need = max(need, 1); why = "valu->readlane"
            if valuP and C.kind == "permlane" and (pv_dst & cv_src): need = max(need, 2); why = "valu->permlane"
            if valuP and C.kind == "dpp" and (pv_dst & cv_src): need = max(need, 2); why = "valu->dpp"
            if P.kind == "dot" and (valuC or C.kind == "mfma") and (pv_dst & (cv_src | cv_dst)):
                if not (C.kind == "dot" and C.op == P.op): need = max(need, 3); why = "dot->other"
            if valuP and (iss(P.dst) & iss(C.src)):
                if valuC: need = max(need, 2); why = "valu sgpr->valu"
                if C.kind in ("vmem", "vmem_store", "vmem_lds"): need = max(need, 5); why = "valu sgpr->vmem"
                if C.kind == "salu": need = max(need, 1); why = "valu sgpr->salu(safe)"
            if P.kind == "salu" and (("s", 124) in P.dst) and C.kind == "vmem_lds": need = max(need, 1); why = "m0->lds dma"
            if P.kind == "vmem_store" and ("x4" in P.op or "x3" in P.op) and valuC and (isv(P.srcA) & cv_dst): need = max(need, 2); why = "store data WAR"
            if need > dist:
                probs.append(f"{tag} line {C.lineno}: '{C.text}' needs {need} wait states after line {P.lineno} '{P.text}' ({why}), has {dist}")
            dist += P.nopn
            i -= 1
    return probs

def check_text(text):
    lines = text.split("\n")
    ins = []; labels = {}
    for ln, l in enumerate(lines, 1):
        t = l.split(";")[0].strip()
        if t.endswith(":") and not t.startswith("."):
            labels[t[:-1]] = len(ins)
            continue
        I = parse(l, ln)
        if I is not None and not t.startswith("."):
            ins.append(I)
    probs = check_seq(ins, "lin")
    for idx, I in enumerate(ins):
        if I.op.startswith(("s_cbranch", "s_branch")):
            tgt = I.text.split()[-1]
            if tgt in labels:
                t = labels[tgt]
                seq = ins[max(0, idx - 24):idx + 1] + ins[t:t + 24]
                k = len(ins[max(0, idx - 24):idx + 1])
                p = check_seq(seq, "edge")
                tl = {x.lineno for x in ins[t:t + 24]}
                for q in p:
                    m = re.match(r"edge line (\d+):.*after line (\d+)", q)
                    if m and int(m.group(1)) in tl and int(m.group(2)) <= I.lineno and int(m.group(2)) >= ins[max(0, idx - 24)].lineno:
                        probs.append(q)
    return sorted(set(probs))
```

```python
import sys
from asmlib import *

NAME = "parallel_sum__grouped_kv_mqa__glu_gated_reglu__prompt"
WS_XN = 0
WS_Q = 2 << 20
WS_O = 4 << 20
WS_KF = 6 << 20
WS_VF = (6 << 20) + (128 << 10)
WS_H = 8 << 20
WS_SIZE = 16 << 20
QSCALE = 0.25 * 1.4426950408889634

def f2u(x):
    import struct
    return struct.unpack("<I", struct.pack("<f", x))[0]

def srd(a, d, base, nbytes):
    a.e(f"s_mov_b32 s{d}, s{base}", f"s_and_b32 s{d+1}, s{base+1}, 0xffff", f"s_mov_b32 s{d+2}, {nbytes}", f"s_mov_b32 s{d+3}, 0x20000")

def kernel_header(a, name):
    a.raw(f".globl {name}")
    a.raw(".p2align 8")
    a.raw(f".type {name},@function")
    a.raw(f"{name}:")

def kernel_desc(name, nv, ns=102):
    return f""".section .rodata,"a"
.p2align 6
.amdhsa_kernel {name}
  .amdhsa_next_free_vgpr {nv}
  .amdhsa_next_free_sgpr {ns}
  .amdhsa_accum_offset {((nv+3)//4)*4}
  .amdhsa_group_segment_fixed_size 0
  .amdhsa_kernarg_size 96
  .amdhsa_user_sgpr_count 2
  .amdhsa_user_sgpr_kernarg_segment_ptr 1
  .amdhsa_system_sgpr_workgroup_id_x 1
.end_amdhsa_kernel
.text
"""

K1_LDS_X = 0
K1_LDS_W = 65536
K1_LDS_F = 131072
K1_LDS_ST = 147456
K1_LDS = 148480

def gen_k1(a):
    name = "k1_kernel"
    kernel_header(a, name)
    S_X, S_WQ, S_WK, S_WV, S_WS = 4, 6, 8, 10, 12
    R_X, R_W, R_F, R_WS = 16, 20, 24, 28
    sW, sTT, sKH, sTB64, sHG, sT0, sT1, sT2, sTB32 = 32, 33, 34, 35, 36, 37, 38, 39, 40
    sONES, sRS = 41, 42
    a.e("s_cmp_ge_u32 s2, 256", "s_cbranch_scc1 k1_end")
    a.e("s_load_dwordx4 s[4:7], s[0:1], 0", "s_load_dwordx4 s[8:11], s[0:1], 16", "s_load_dwordx2 s[12:13], s[0:1], 88")
    vLane, vT0, vT1, vT2, vT3 = 1, 2, 3, 4, 5
    a.e(f"v_lshrrev_b32 v{vT0}, 6, v0", f"v_and_b32 v{vLane}, 63, v0")
    a.e(f"s_and_b32 s{sT0}, s2, 7", f"s_lshl_b32 s{sT0}, s{sT0}, 2", f"s_lshr_b32 s{sT1}, s2, 3", f"s_and_b32 s{sT1}, s{sT1}, 3",
        f"s_add_u32 s{sTB64}, s{sT0}, s{sT1}", f"s_lshr_b32 s{sHG}, s2, 5")
    a.e(f"v_readfirstlane_b32 s{sW}, v{vT0}")
    a.e(f"s_mov_b32 s{sONES}, 0x3f803f80")
    a.e("s_nop 0")
    a.e(f"s_and_b32 s{sTT}, s{sW}, 1", f"s_lshr_b32 s{sKH}, s{sW}, 1")
    a.e(f"s_lshl_b32 s{sTB32}, s{sTB64}, 1", f"s_add_u32 s{sTB32}, s{sTB32}, s{sTT}")
    a.e("s_waitcnt lgkmcnt(0)")
    srd(a, R_X, S_X, 2048 * 1024)
    srd(a, R_W, S_WQ, 512 * 1024)
    srd(a, R_WS, S_WS, WS_SIZE)
    a.e(f"s_cmp_eq_u32 s{sHG}, 0", f"s_cselect_b32 s{R_F}, s{S_WK}, s{S_WV}", f"s_cselect_b32 s{R_F+1}, s{S_WK+1}, s{S_WV+1}",
        f"s_and_b32 s{R_F+1}, s{R_F+1}, 0xffff", f"s_mov_b32 s{R_F+2}, 16384", f"s_mov_b32 s{R_F+3}, 0x20000")
    vL16 = 6
    a.e(f"v_lshlrev_b32 v{vL16}, 4, v{vLane}")
    a.e(f"s_lshl_b32 s{sT0}, s{sTB64}, 16", f"s_lshl_b32 s{sT1}, s{sW}, 14", f"s_add_u32 s{sT0}, s{sT0}, s{sT1}")
    a.e(f"s_mov_b32 s{sT2}, s{sT1}")
    for j in range(16):
        vt = vT0 + (j & 1)
        a.e(f"v_xor_b32 v{vt}, {j << 4}, v{vL16}")
        a.e(f"s_mov_b32 m0, s{sT2}")
        a.e(f"s_add_u32 s{sT2}, s{sT2}, 1024")
        a.e(f"buffer_load_dwordx4 v{vt}, s[{R_X}:{R_X+3}], s{sT0} offen lds")
        a.e(f"s_add_u32 s{sT0}, s{sT0}, 1024")
    vWoff = 7
    a.e(f"v_lshrrev_b32 v{vT0}, 3, v{vLane}", f"v_lshlrev_b32 v{vT0}, 10, v{vT0}")
    a.e(f"v_lshrrev_b32 v{vT1}, 4, v{vLane}", f"v_and_b32 v{vT1}, 1, v{vT1}", f"v_lshlrev_b32 v{vT1}, 2, v{vT1}")
    a.e(f"v_and_b32 v{vT2}, 7, v{vLane}", f"v_xor_b32 v{vT2}, v{vT2}, v{vT1}", f"v_lshlrev_b32 v{vT2}, 4, v{vT2}")
    a.e(f"v_add_u32 v{vWoff}, v{vT0}, v{vT2}")
    a.e(f"s_lshl_b32 s{sT0}, s{sHG}, 7", f"v_add_u32 v{vWoff}, s{sT0}, v{vWoff}")
    a.e(f"s_lshl_b32 s{sT0}, s{sW}, 17")
    a.e(f"s_lshl_b32 s{sT2}, s{sW}, 14", f"s_add_u32 s{sT2}, s{sT2}, {K1_LDS_W}")
    for j in range(16):
        a.e(f"s_mov_b32 m0, s{sT2}")
        a.e(f"s_add_u32 s{sT2}, s{sT2}, 1024")
        a.e(f"buffer_load_dwordx4 v{vWoff}, s[{R_W}:{R_W+3}], s{sT0} offen lds")
        a.e(f"s_add_u32 s{sT0}, s{sT0}, 8192")
    a.e(f"s_cmp_ge_u32 s{sHG}, 2", "s_cbranch_scc1 k1_nof")
    a.e(f"s_lshl_b32 s{sT0}, s{sW}, 12", f"s_add_u32 s{sT2}, s{sT0}, {K1_LDS_F}")
    for j in range(4):
        a.e(f"s_mov_b32 m0, s{sT2}")
        a.e(f"s_add_u32 s{sT2}, s{sT2}, 1024")
        a.e(f"buffer_load_dwordx4 v{vL16}, s[{R_F}:{R_F+3}], s{sT0} offen lds")
        a.e(f"s_add_u32 s{sT0}, s{sT0}, 1024")
    a.label("k1_nof")
    vXA = 8
    a.e(f"v_and_b32 v{vT0}, 31, v{vLane}", f"v_lshrrev_b32 v{vT1}, 5, v{vLane}", f"v_and_b32 v{vT2}, 15, v{vLane}",
        f"v_xor_b32 v{vT2}, v{vT1}, v{vT2}", f"v_lshlrev_b32 v{vT2}, 4, v{vT2}", f"v_lshlrev_b32 v{vT0}, 10, v{vT0}",
        f"v_add_u32 v{vXA}, v{vT0}, v{vT2}")
    a.e(f"s_lshl_b32 s{sT0}, s{sTT}, 15", f"s_lshl_b32 s{sT1}, s{sKH}, 9", f"s_add_u32 s{sT0}, s{sT0}, s{sT1}")
    a.e(f"v_add_u32 v{vXA}, s{sT0}, v{vXA}")
    for m in range(1, 8):
        a.e(f"v_xor_b32 v{vXA+m}, {m << 5}, v{vXA}")
    vWA0, vWA1, vFA = 16, 17, 18
    a.e(f"v_and_b32 v{vT0}, 15, v{vLane}", f"v_lshrrev_b32 v{vT1}, 2, v{vT0}",
        f"v_lshrrev_b32 v{vT2}, 5, v{vLane}", f"v_lshlrev_b32 v{vT2}, 3, v{vT2}",
        f"v_add_u32 v{vT1}, v{vT1}, v{vT2}", f"v_lshlrev_b32 v{vT1}, 7, v{vT1}")
    a.e(f"v_lshrrev_b32 v{vT2}, 3, v{vT0}", f"v_lshlrev_b32 v{vT2}, 6, v{vT2}", f"v_add_u32 v{vT1}, v{vT1}, v{vT2}")
    a.e(f"v_lshrrev_b32 v{vT2}, 4, v{vLane}", f"v_and_b32 v{vT2}, 1, v{vT2}", f"v_lshlrev_b32 v{vT2}, 5, v{vT2}", f"v_add_u32 v{vT1}, v{vT1}, v{vT2}")
    a.e(f"v_and_b32 v{vT2}, 3, v{vLane}", f"v_lshlrev_b32 v{vT2}, 3, v{vT2}", f"v_add_u32 v{vT1}, v{vT1}, v{vT2}")
    a.e(f"s_lshl_b32 s{sT0}, s{sKH}, 15", f"s_add_u32 s{sT0}, s{sT0}, {K1_LDS_W}")
    a.e(f"v_add_u32 v{vWA0}, s{sT0}, v{vT1}", f"v_xor_b32 v{vWA1}, 64, v{vWA0}")
    a.e(f"v_lshrrev_b32 v{vT2}, 5, v{vLane}", f"v_lshlrev_b32 v{vT2}, 8, v{vT2}", f"v_lshlrev_b32 v{vT0}, 3, v{vT0}", f"v_add_u32 v{vT2}, v{vT2}, v{vT0}")
    a.e(f"s_lshl_b32 s{sT0}, s{sKH}, 13", f"s_add_u32 s{sT0}, s{sT0}, {K1_LDS_F}", f"v_add_u32 v{vFA}, s{sT0}, v{vT2}")
    a.e("s_waitcnt vmcnt(0)", "s_barrier")
    XB = 64
    for sp in range(16):
        a.e(f"ds_read_b128 {v(XB+4*sp,4)}, v{vXA + sp % 8} offset:{(sp // 8) * 256}")
    acc = [20, 21, 22, 23]
    for r in acc: a.e(f"v_mov_b32 v{r}, 0")
    for sp in range(16):
        a.e(f"s_waitcnt lgkmcnt({15 - sp})")
        for q in range(4):
            r = XB + 4 * sp + q
            a.e(f"v_dot2_f32_bf16 v{acc[q & 1]}, v{r}, s{sONES}, v{acc[q & 1]}")
            a.e(f"v_dot2_f32_bf16 v{acc[2 + (q & 1)]}, v{r}, v{r}, v{acc[2 + (q & 1)]}")
    a.nop(3)
    a.e("v_add_f32 v20, v20, v21", "v_add_f32 v22, v22, v23")
    a.nop(2)
    a.e("v_permlane32_swap_b32 v20, v22")
    a.nop(1)
    a.e("v_add_f32 v20, v20, v22")
    a.e(f"s_lshl_b32 s{sT0}, s{sW}, 8")
    a.e(f"s_lshl_b32 s{sT0}, s{sTT}, 9", f"s_lshl_b32 s{sT1}, s{sKH}, 8", f"s_add_u32 s{sT1}, s{sT0}, s{sT1}", f"s_add_u32 s{sT1}, s{sT1}, {K1_LDS_ST}")
    a.e(f"v_lshlrev_b32 v{vT0}, 2, v{vLane}", f"v_add_u32 v{vT1}, s{sT1}, v{vT0}")
    a.e(f"ds_write_b32 v{vT1}, v20")
    a.e("s_waitcnt lgkmcnt(0)", "s_barrier")
    a.e(f"s_add_u32 s{sT0}, s{sT0}, {K1_LDS_ST}")
    a.e(f"v_and_b32 v{vT0}, 31, v{vLane}", f"v_lshlrev_b32 v{vT0}, 2, v{vT0}", f"v_add_u32 v{vT0}, s{sT0}, v{vT0}")
    a.e(f"ds_read2_b32 v[20:21], v{vT0} offset0:0 offset1:64", f"ds_read2_b32 v[22:23], v{vT0} offset0:32 offset1:96")
    a.e("s_waitcnt lgkmcnt(0)")
    a.e("v_add_f32 v20, v20, v21", "v_add_f32 v22, v22, v23")
    a.e(f"v_mul_f32 v20, {f2u(1/512):#x}, v20")
    a.e(f"v_mul_f32 v22, {f2u(1/512):#x}, v22")
    a.e("v_fma_f32 v22, -v20, v20, v22")
    a.e("v_max_f32 v22, 0, v22")
    a.e(f"v_add_f32 v22, {f2u(1e-5):#x}, v22")
    a.e("v_rsq_f32 v22, v22")
    a.e("s_nop 0")
    a.e("v_mul_f32 v21, v20, v22", "v_sub_f32 v21, 0, v21")
    vRS, vNB = 22, 21
    a.e(f"s_mov_b32 s{sT2}, 0xffff0000")
    for r in range(XB, XB + 64):
        t0, t1 = 24 + 2 * (r & 1), 25 + 2 * (r & 1)
        a.e(f"v_lshlrev_b32 v{t0}, 16, v{r}", f"v_and_b32 v{t1}, s{sT2}, v{r}",
            f"v_fma_f32 v{t0}, v{t0}, v{vRS}, v{vNB}", f"v_fma_f32 v{t1}, v{t1}, v{vRS}, v{vNB}",
            f"v_cvt_pk_bf16_f32 v{r}, v{t0}, v{t1}")
    a.e(f"s_lshr_b32 s{sT0}, s{sHG}, 2", f"s_cmp_lg_u32 s{sT0}, s{sKH}", "s_cbranch_scc1 k1_noxn")
    a.e(f"s_lshl_b32 s{sT0}, s{sTB32}, 15", f"s_lshl_b32 s{sT1}, s{sHG}, 12", f"s_add_u32 s{sT0}, s{sT0}, s{sT1}")
    if WS_XN: a.e(f"s_add_u32 s{sT0}, s{sT0}, {WS_XN}")
    a.e(f"s_and_b32 s{sT1}, s{sHG}, 3")
    for var in range(4):
        nxt = f"k1_xn{var+1}"
        if var < 3:
            a.e(f"s_cmp_lg_u32 s{sT1}, {var}", f"s_cbranch_scc1 {nxt}")
        for q in range(4):
            a.e(f"buffer_store_dwordx4 {v(XB + 4 * (4 * var + q), 4)}, v{vL16}, s[{R_WS}:{R_WS+3}], s{sT0} offen offset:{q * 1024}")
        if var < 3:
            a.e("s_branch k1_noxn")
            a.label(nxt)
    a.label("k1_noxn")
    ACC0, ACC1, ACC2 = 128, 144, 160
    for r in range(ACC0, ACC0 + 48): a.e(f"v_mov_b32 v{r}, 0")
    AF = 32
    def areads(sp, st):
        b = AF + 8 * st
        a.e(f"ds_read_b64_tr_b16 {v(b,2)}, v{vWA0} offset:{sp*2048}", f"ds_read_b64_tr_b16 {v(b+2,2)}, v{vWA0} offset:{sp*2048+512}",
            f"ds_read_b64_tr_b16 {v(b+4,2)}, v{vWA1} offset:{sp*2048}", f"ds_read_b64_tr_b16 {v(b+6,2)}, v{vWA1} offset:{sp*2048+512}")
    areads(0, 0)
    for sp in range(16):
        st = sp & 1
        if sp < 15:
            areads(sp + 1, st ^ 1)
            a.e("s_waitcnt lgkmcnt(4)")
        else:
            a.e("s_waitcnt lgkmcnt(0)")
        b = AF + 8 * st
        a.e(f"v_mfma_f32_32x32x16_bf16 {v(ACC0,16)}, {v(b,4)}, {v(XB+4*sp,4)}, {v(ACC0,16)}")
        a.e(f"v_mfma_f32_32x32x16_bf16 {v(ACC1,16)}, {v(b+4,4)}, {v(XB+4*sp,4)}, {v(ACC1,16)}")
    a.e(f"s_cmp_ge_u32 s{sHG}, 2", "s_cbranch_scc1 k1_nokv")
    FF = 48
    def freads(sp, st):
        b = FF + 4 * st
        a.e(f"ds_read_b64_tr_b16 {v(b,2)}, v{vFA} offset:{sp*512}", f"ds_read_b64_tr_b16 {v(b+2,2)}, v{vFA} offset:{sp*512+128}")
    a.e(f"s_cmp_eq_u32 s{sHG}, 1", "s_cbranch_scc1 k1_vchain")
    for kind in (0, 1):
        if kind == 1: a.label("k1_vchain")
        freads(0, 0)
        for sp in range(16):
            st = sp & 1
            if sp < 15:
                freads(sp + 1, st ^ 1)
                a.e("s_waitcnt lgkmcnt(2)")
            else:
                a.e("s_waitcnt lgkmcnt(0)")
            b = FF + 4 * st
            if kind == 0:
                a.e(f"v_mfma_f32_32x32x16_bf16 {v(ACC2,16)}, {v(b,4)}, {v(XB+4*sp,4)}, {v(ACC2,16)}")
            else:
                a.e(f"v_mfma_f32_32x32x16_bf16 {v(ACC2,16)}, {v(XB+4*sp,4)}, {v(b,4)}, {v(ACC2,16)}")
        if kind == 0: a.e("s_branch k1_nokv")
    a.label("k1_nokv")
    a.nop(16)
    a.e(f"s_lshl_b32 s{sT0}, s{sW}, 13", f"v_add_u32 v{vT0}, s{sT0}, v{vL16}")
    a.e(f"s_cmp_eq_u32 s{sKH}, 0", "s_cbranch_scc1 k1_send1")
    for q in range(4):
        a.e(f"ds_write_b128 v{vT0}, {v(ACC0+4*q,4)} offset:{q*1024}")
    for q in range(4):
        a.e(f"ds_write_b128 v{vT0}, {v(ACC2+4*q,4)} offset:{4096+q*1024}")
    a.e("s_branch k1_sent")
    a.label("k1_send1")
    for q in range(4):
        a.e(f"ds_write_b128 v{vT0}, {v(ACC1+4*q,4)} offset:{q*1024}")
    a.label("k1_sent")
    a.e("s_waitcnt lgkmcnt(0)", "s_barrier")
    a.e(f"s_xor_b32 s{sT1}, s{sW}, 2", f"s_lshl_b32 s{sT0}, s{sT1}, 13", f"v_add_u32 v{vT0}, s{sT0}, v{vL16}")
    RB = 64
    a.e("s_waitcnt vmcnt(0)")
    for q in range(4):
        a.e(f"ds_read_b128 {v(RB+4*q,4)}, v{vT0} offset:{q*1024}")
    for q in range(4):
        a.e(f"ds_read_b128 {v(RB+16+4*q,4)}, v{vT0} offset:{4096+q*1024}")
    a.e("s_waitcnt lgkmcnt(0)")
    a.e(f"s_cmp_eq_u32 s{sKH}, 0", "s_cbranch_scc1 k1_keep0")
    for r in range(16): a.e(f"v_add_f32 v{RB+r}, v{RB+r}, v{ACC1+r}")
    a.e("s_branch k1_kept")
    a.label("k1_keep0")
    for r in range(16): a.e(f"v_add_f32 v{RB+r}, v{RB+r}, v{ACC0+r}")
    for r in range(16): a.e(f"v_add_f32 v{RB+16+r}, v{RB+16+r}, v{ACC2+r}")
    a.label("k1_kept")
    a.e(f"s_mov_b32 s{sT2}, {f2u(QSCALE):#x}")
    for r in range(16): a.e(f"v_mul_f32 v{RB+r}, s{sT2}, v{RB+r}")
    PK = 32
    for j in range(8): a.e(f"v_cvt_pk_bf16_f32 v{PK+j}, v{RB+2*j}, v{RB+2*j+1}")
    a.e(f"s_lshl_b32 s{sT0}, s{sTB32}, 15", f"s_lshl_b32 s{sT1}, s{sHG}, 12", f"s_add_u32 s{sT0}, s{sT0}, s{sT1}",
        f"s_lshl_b32 s{sT1}, s{sKH}, 11", f"s_add_u32 s{sT0}, s{sT0}, s{sT1}", f"s_add_u32 s{sT0}, s{sT0}, {WS_Q}")
    a.e(f"buffer_store_dwordx4 {v(PK,4)}, v{vL16}, s[{R_WS}:{R_WS+3}], s{sT0} offen")
    a.e(f"buffer_store_dwordx4 {v(PK+4,4)}, v{vL16}, s[{R_WS}:{R_WS+3}], s{sT0} offen offset:1024")
    a.e(f"s_cmp_ge_u32 s{sHG}, 2", "s_cbranch_scc1 k1_end")
    a.e(f"s_cmp_lg_u32 s{sKH}, 0", "s_cbranch_scc1 k1_end")
    PK2 = 40
    for j in range(8): a.e(f"v_cvt_pk_bf16_f32 v{PK2+j}, v{RB+16+2*j}, v{RB+16+2*j+1}")
    a.e(f"s_cmp_eq_u32 s{sHG}, 1", "s_cbranch_scc1 k1_vout")
    a.e(f"s_lshl_b32 s{sT0}, s{sTB32}, 10", f"s_add_u32 s{sT0}, s{sT0}, {WS_KF}")
    a.e(f"buffer_store_dwordx4 {v(PK2,4)}, v{vL16}, s[{R_WS}:{R_WS+3}], s{sT0} offen")
    a.e("s_branch k1_end")
    a.label("k1_vout")
    a.e(f"v_and_b32 v{vT0}, 31, v{vLane}")
    a.e(f"v_and_b32 v{vT1}, 27, v{vLane}")
    a.e(f"v_cmp_eq_u32 vcc, 16, v{vT1}")
    a.e(f"v_mov_b32 v{vT2}, 0", f"v_mov_b32 v{vT3}, s{sONES}")
    a.e(f"v_cndmask_b32 v{vT2}, v{vT2}, v{vT3}, vcc")
    a.e(f"v_cmp_gt_u32 vcc, 16, v{vT0}")
    a.nop(2)
    for j in range(8): a.e(f"v_cndmask_b32 v{PK2+j}, v{vT2}, v{PK2+j}, vcc")
    a.e(f"s_lshl_b32 s{sT0}, s{sTB32}, 11", f"s_add_u32 s{sT0}, s{sT0}, {WS_VF}")
    a.e(f"buffer_store_dwordx4 {v(PK2,4)}, v{vL16}, s[{R_WS}:{R_WS+3}], s{sT0} offen")
    a.e(f"buffer_store_dwordx4 {v(PK2+4,4)}, v{vL16}, s[{R_WS}:{R_WS+3}], s{sT0} offen offset:1024")
    a.label("k1_end")
    a.e("s_endpgm")
    return name, 176, (256, K1_LDS, 256)


K2_LDS = 73728

def attn_tile(a, Sin, Sout, Pcur, Pprev, Sm, PV1, PV2, extra=None):
    e = lambda i: a.e(f"v_exp_f32 v{Sin+i}, v{Sin+i}")
    c = lambda j: a.e(f"v_cvt_pk_bf16_f32 v{Pcur+j}, v{Sin+2*j}, v{Sin+2*j+1}")
    ex = extra or {}
    def X(k):
        for ins in ex.get(k, []): a.e(ins)
    X(0)
    e(0); e(1); a.e(Sm); e(2); e(3); c(0); e(4); e(5); c(1); X(1); e(6); e(7); c(2); a.e(PV1); e(8); e(9); c(3); e(10); e(11); c(4); X(2)
    e(12); e(13); c(5); a.e(PV2); e(14); e(15); c(6); c(7)

def gen_attn(a):
    R_WS = 28
    sW, sTB64, sHG, sT0, sT1, sT2, sK, sV, sI, sQ = 32, 35, 36, 37, 38, 39, 43, 44, 45, 46
    vL16 = 1
    Q, KF, VF, S, P, O = 8, 40, 48, 64, 96, 128
    a.e("s_load_dwordx2 s[12:13], s[0:1], 88")
    a.e("v_lshrrev_b32 v2, 6, v0", "v_and_b32 v3, 63, v0")
    a.e(f"s_and_b32 s{sT0}, s2, 7", f"s_lshl_b32 s{sT0}, s{sT0}, 2", f"s_lshr_b32 s{sT1}, s2, 3", f"s_and_b32 s{sT1}, s{sT1}, 3",
        f"s_add_u32 s{sTB64}, s{sT0}, s{sT1}", f"s_lshr_b32 s{sHG}, s2, 5")
    a.e(f"v_readfirstlane_b32 s{sW}, v2", f"v_lshlrev_b32 v{vL16}, 4, v3")
    a.e("s_waitcnt lgkmcnt(0)")
    srd(a, R_WS, 12, WS_SIZE)
    a.e(f"s_lshl_b32 s{sQ}, s{sTB64}, 16", f"s_lshl_b32 s{sT0}, s{sHG}, 12", f"s_add_u32 s{sQ}, s{sQ}, s{sT0}")
    a.e(f"s_add_u32 s{sT0}, s{sQ}, {WS_Q}", f"s_add_u32 s{sT1}, s{sT0}, 32768")
    a.e(f"s_lshl_b32 s{sK}, s{sW}, 14", f"s_add_u32 s{sK}, s{sK}, {WS_KF}", f"s_lshl_b32 s{sV}, s{sW}, 15", f"s_add_u32 s{sV}, s{sV}, {WS_VF}")
    rs = f"s[{R_WS}:{R_WS+3}]"
    a.e(f"buffer_load_dwordx4 {v(KF,4)}, v{vL16}, {rs}, s{sK} offen")
    for c in range(8):
        tt, hl = c & 1, c >> 1
        a.e(f"buffer_load_dwordx4 {v(Q+4*c,4)}, v{vL16}, {rs}, s{sT1 if tt else sT0} offen offset:{hl*1024}")
    a.e(f"buffer_load_dwordx4 {v(VF,4)}, v{vL16}, {rs}, s{sV} offen", f"buffer_load_dwordx4 {v(VF+4,4)}, v{vL16}, {rs}, s{sV} offen offset:1024")
    for r in range(O, O + 128): a.e(f"v_mov_b32 v{r}, 0")
    for r in range(P + 8, P + 16): a.e(f"v_mov_b32 v{r}, 0")
    for r in range(VF + 8, VF + 16): a.e(f"v_mov_b32 v{r}, 0")
    a.e(f"s_mov_b32 s{sI}, 8")
    a.e("s_waitcnt vmcnt(9)")
    a.e(f"v_mfma_f32_32x32x16_bf16 {v(S,16)}, {v(KF,4)}, {v(Q,4)}, 0")
    a.e("s_waitcnt vmcnt(0)")
    a.nop(12)
    a.raw(".p2align 3")
    a.label("attn_loop")
    for kb in range(2):
        for c in range(8):
            n = kb * 8 + c
            Sin, Sout = S + 16 * (n & 1), S + 16 * ((n + 1) & 1)
            Pcur, Pprev = P + 8 * (n & 1), P + 8 * ((n + 1) & 1)
            cn = (c + 1) & 7
            kn = kb if c < 7 else kb ^ 1
            Sm = f"v_mfma_f32_32x32x16_bf16 {v(Sout,16)}, {v(KF+4*kn,4)}, {v(Q+4*cn,4)}, 0"
            cp = (c - 1) & 7
            kp = kb if c > 0 else kb ^ 1
            Op = O + 16 * cp
            PV1 = f"v_mfma_f32_32x32x16_bf16 {v(Op,16)}, {v(VF+8*kp,4)}, {v(Pprev,4)}, {v(Op,16)}"
            PV2 = f"v_mfma_f32_32x32x16_bf16 {v(Op,16)}, {v(VF+8*kp+4,4)}, {v(Pprev+4,4)}, {v(Op,16)}"
            extra = {}
            if c == 1:
                nb = kb ^ 1
                extra[1] = [f"s_add_u32 s{sK}, s{sK}, 1024", f"s_add_u32 s{sV}, s{sV}, 2048",
                            f"buffer_load_dwordx4 {v(KF+4*nb,4)}, v{vL16}, {rs}, s{sK} offen",
                            f"buffer_load_dwordx4 {v(VF+8*nb,4)}, v{vL16}, {rs}, s{sV} offen",
                            f"buffer_load_dwordx4 {v(VF+8*nb+4,4)}, v{vL16}, {rs}, s{sV} offen offset:1024"]
            if c == 7:
                extra[0] = ["s_waitcnt vmcnt(0)", "s_nop 0"]
            attn_tile(a, Sin, Sout, Pcur, Pprev, Sm, PV1, PV2, extra)
    a.e(f"s_sub_u32 s{sI}, s{sI}, 1", f"s_cmp_lg_u32 s{sI}, 0", "s_cbranch_scc1 attn_loop")
    Op = O + 16 * 7
    a.nop(2)
    a.e(f"v_mfma_f32_32x32x16_bf16 {v(Op,16)}, {v(VF+8,4)}, {v(P+8,4)}, {v(Op,16)}")
    a.e(f"v_mfma_f32_32x32x16_bf16 {v(Op,16)}, {v(VF+12,4)}, {v(P+12,4)}, {v(Op,16)}")
    a.nop(16)
    a.e(f"s_mul_i32 s{sT0}, s{sW}, {8*2304}", f"v_add_u32 v2, s{sT0}, v{vL16}")
    a.e(f"v_lshrrev_b32 v3, 2, v{vL16}", f"v_add_u32 v3, s{sT0}, v3")
    for c in range(8):
        a.e(f"ds_write_b128 v2, {v(O+16*c,4)} offset:{c*2304}", f"ds_write_b128 v2, {v(O+16*c+4,4)} offset:{c*2304+1024}",
            f"ds_write_b32 v3, v{O+16*c+8} offset:{c*2304+2048}")
    a.e("s_waitcnt lgkmcnt(0)", "s_barrier")
    a.e(f"s_mul_i32 s{sT0}, s{sW}, {2*2304}", f"v_add_u32 v2, s{sT0}, v{vL16}")
    a.e(f"v_lshrrev_b32 v3, 2, v{vL16}", f"v_add_u32 v3, s{sT0}, v3")
    RB = 64
    for j in range(2):
        for wp in range(4):
            b = RB + (j * 4 + wp) * 12
            off = j * 2304 + wp * 8 * 2304
            a.e(f"ds_read_b128 {v(b,4)}, v2 offset:{off}", f"ds_read_b128 {v(b+4,4)}, v2 offset:{off+1024}", f"ds_read_b32 v{b+8}, v3 offset:{off+2048}")
        a.e("s_waitcnt lgkmcnt(0)")
    for j in range(2):
        b0 = RB + j * 48
        for r in range(9):
            a.e(f"v_add_f32 v{b0+r}, v{b0+r}, v{b0+12+r}", f"v_add_f32 v{b0+24+r}, v{b0+24+r}, v{b0+36+r}")
        for r in range(9):
            a.e(f"v_add_f32 v{b0+r}, v{b0+r}, v{b0+24+r}")
        a.e(f"v_rcp_f32 v{b0+9}, v{b0+8}")
        a.e("s_nop 0")
        for r in range(8): a.e(f"v_mul_f32 v{b0+r}, v{b0+r}, v{b0+9}")
        for q in range(4): a.e(f"v_cvt_pk_bf16_f32 v{b0+12+q}, v{b0+2*q}, v{b0+2*q+1}")
    a.e(f"s_lshl_b32 s{sT0}, s{sW}, 10", f"s_add_u32 s{sT0}, s{sT0}, s{sQ}", f"s_add_u32 s{sT0}, s{sT0}, {WS_O}", f"s_add_u32 s{sT1}, s{sT0}, 32768")
    a.e(f"buffer_store_dwordx4 {v(RB+12,4)}, v{vL16}, {rs}, s{sT0} offen")
    a.e(f"buffer_store_dwordx4 {v(RB+48+12,4)}, v{vL16}, {rs}, s{sT1} offen")
    a.e("s_endpgm")

def gen_ffn1(a):
    R_G, R_U, R_WS = 16, 20, 28
    sW, sTP, sAP, sT0, sT1, sT2, sTB, sFS = 32, 33, 34, 37, 38, 39, 40, 41
    sI, sSW, sSX, sDW, sDX, sGK, sGX = 45, 46, 47, 48, 49, 50, 51
    vL16, vGo, vUo, vXB = 1, 13, 14, 12
    vWA = 8
    vWb, vXb = 16, 20
    AF, BF, ACC = 64, 96, 128
    LW, LX = 0, 49152
    a.e("s_load_dwordx4 s[4:7], s[0:1], 48", "s_load_dwordx2 s[12:13], s[0:1], 88")
    a.e("v_lshrrev_b32 v2, 6, v0", "v_and_b32 v3, 63, v0")
    a.e("s_sub_u32 s2, s2, 256", f"s_and_b32 s{sT0}, s2, 7", f"s_lshr_b32 s{sT1}, s2, 3",
        f"s_mul_i32 s{sT2}, s{sT1}, 37", f"s_lshr_b32 s{sT2}, s{sT2}, 8",
        f"s_lshr_b32 s{sTB}, s{sT0}, 1", f"s_lshl_b32 s{sTB}, s{sTB}, 2", f"s_add_u32 s{sTB}, s{sTB}, s{sT2}",
        f"s_mul_i32 s{sT2}, s{sT2}, 7", f"s_sub_u32 s{sT1}, s{sT1}, s{sT2}",
        f"s_and_b32 s{sT0}, s{sT0}, 1", f"s_mul_i32 s{sT0}, s{sT0}, 7", f"s_add_u32 s{sFS}, s{sT0}, s{sT1}")
    a.e(f"v_readfirstlane_b32 s{sW}, v2", f"v_lshlrev_b32 v{vL16}, 4, v3")
    a.e("s_waitcnt lgkmcnt(0)")
    srd(a, R_G, 4, 512 * 3584); srd(a, R_U, 6, 512 * 3584); srd(a, R_WS, 12, WS_SIZE)
    a.e(f"s_and_b32 s{sTP}, s{sW}, 1", f"s_lshr_b32 s{sAP}, s{sW}, 1")
    a.e("v_lshrrev_b32 v4, 4, v3", "v_mul_u32_u24 v5, 3584, v4", "v_lshlrev_b32 v4, 1, v4", "v_and_b32 v6, 15, v3", "v_xor_b32 v6, v6, v4",
        "v_xor_b32 v7, 8, v6", "v_lshlrev_b32 v6, 4, v6", "v_lshlrev_b32 v7, 4, v7")
    a.e(f"s_lshl_b32 s{sT0}, s{sFS}, 8", f"v_add_u32 v5, s{sT0}, v5", f"v_add_u32 v{vGo}, v5, v6", f"v_add_u32 v{vUo}, v5, v7")
    a.e("v_and_b32 v4, 15, v3", "v_lshrrev_b32 v5, 2, v4",
        "v_lshrrev_b32 v6, 4, v3", "v_and_b32 v6, 1, v6",
        "v_lshrrev_b32 v7, 5, v3", "v_lshlrev_b32 v7, 3, v7", "v_add_u32 v7, v7, v5", "v_lshlrev_b32 v7, 8, v7",
        "v_lshlrev_b32 v2, 13, v6", "v_add_u32 v7, v7, v2",
        "v_lshlrev_b32 v6, 2, v6", "v_xor_b32 v5, v5, v6", "v_lshlrev_b32 v5, 5, v5", "v_add_u32 v7, v7, v5",
        "v_and_b32 v4, 3, v3", "v_lshlrev_b32 v4, 3, v4", "v_add_u32 v7, v7, v4")
    a.e(f"s_lshl_b32 s{sT0}, s{sAP}, 7", f"v_xor_b32 v{vWb}, s{sT0}, v7")
    for q in range(1, 4): a.e(f"v_xor_b32 v{vWb+q}, {q << 5}, v{vWb}")
    a.e(f"s_lshl_b32 s{sT0}, s{sTP}, 12", f"s_add_u32 s{sT0}, s{sT0}, {LX}", f"v_add_u32 v{vXb}, s{sT0}, v{vL16}")
    a.e(f"s_mul_i32 s{sGK}, s{sW}, {8*3584}")
    a.e(f"s_lshl_b32 s{sGX}, s{sTB}, 2", f"s_add_u32 s{sGX}, s{sGX}, s{sW}", f"s_lshl_b32 s{sGX}, s{sGX}, 15")
    if WS_XN: a.e(f"s_add_u32 s{sGX}, s{sGX}, {WS_XN}")
    def dma_stage():
        a.e(f"s_lshl_b32 s{sT0}, s{sW}, 11", f"s_add_u32 s{sT0}, s{sT0}, s{sDW}")
        a.e(f"s_mov_b32 m0, s{sT0}", f"s_add_u32 s{sT1}, s{sGK}, {4*3584}")
        a.e(f"buffer_load_dwordx4 v{vGo}, s[{R_G}:{R_G+3}], s{sGK} offen lds")
        a.e(f"s_add_u32 m0, s{sT0}, 1024", "s_nop 0")
        a.e(f"buffer_load_dwordx4 v{vGo}, s[{R_G}:{R_G+3}], s{sT1} offen lds")
        a.e(f"s_add_u32 m0, s{sT0}, 8192", "s_nop 0")
        a.e(f"buffer_load_dwordx4 v{vUo}, s[{R_U}:{R_U+3}], s{sGK} offen lds")
        a.e(f"s_add_u32 m0, s{sT0}, {8192+1024}", "s_nop 0")
        a.e(f"buffer_load_dwordx4 v{vUo}, s[{R_U}:{R_U+3}], s{sT1} offen lds")
        a.e(f"s_lshl_b32 s{sT0}, s{sW}, 11", f"s_add_u32 s{sT0}, s{sT0}, s{sDX}")
        a.e(f"s_mov_b32 m0, s{sT0}", f"s_add_u32 s{sT1}, s{sGX}, 1024")
        a.e(f"buffer_load_dwordx4 v{vL16}, s[{R_WS}:{R_WS+3}], s{sGX} offen lds")
        a.e(f"s_add_u32 m0, s{sT0}, 1024", "s_nop 0")
        a.e(f"buffer_load_dwordx4 v{vL16}, s[{R_WS}:{R_WS+3}], s{sT1} offen lds")
        a.e(f"s_add_u32 s{sGK}, s{sGK}, {32*3584}", f"s_add_u32 s{sGX}, s{sGX}, 2048")
    def adv(sw, sx):
        a.e(f"s_add_u32 s{sw}, s{sw}, 16384", f"s_add_u32 s{sx}, s{sx}, 8192", f"s_cmp_eq_u32 s{sw}, 49152",
            f"s_cselect_b32 s{sw}, 0, s{sw}")
        a.e(f"s_cselect_b32 s{sT0}, 24576, 0", f"s_sub_u32 s{sx}, s{sx}, s{sT0}")
    a.e(f"s_mov_b32 s{sDW}, {LW}", f"s_mov_b32 s{sDX}, {LX}")
    dma_stage(); adv(sDW, sDX)
    dma_stage(); adv(sDW, sDX)
    for r in range(ACC, ACC + 128): a.e(f"v_mov_b32 v{r}, 0")
    a.e(f"s_mov_b32 s{sSW}, 0", f"s_mov_b32 s{sSX}, 0", f"s_mov_b32 s{sI}, 16")
    a.label("ffn1_loop")
    a.e("s_waitcnt vmcnt(6)", "s_barrier")
    for q in range(4): a.e(f"v_add_u32 v{vWA+q}, s{sSW}, v{vWb+q}")
    a.e(f"v_add_u32 v{vXB}, s{sSX}, v{vXb}")
    def reads(ks, st):
        for t in range(2):
            a.e(f"ds_read_b128 {v(BF+8*st+4*t,4)}, v{vXB} offset:{(t*2+ks)*1024}")
        for q in range(4):
            b = AF + 16 * st + 4 * q
            a.e(f"ds_read_b64_tr_b16 {v(b,2)}, v{vWA+q} offset:{ks*4096}", f"ds_read_b64_tr_b16 {v(b+2,2)}, v{vWA+q} offset:{ks*4096+1024}")
    def mfmas(st):
        for q in range(4):
            for t in range(2):
                ac = ACC + (q * 2 + t) * 16
                a.e(f"v_mfma_f32_32x32x16_bf16 {v(ac,16)}, {v(AF+16*st+4*q,4)}, {v(BF+8*st+4*t,4)}, {v(ac,16)}")
    reads(0, 0)
    dma_stage(); adv(sDW, sDX)
    a.e("s_waitcnt lgkmcnt(0)")
    reads(1, 1)
    mfmas(0)
    a.e("s_waitcnt lgkmcnt(0)")
    mfmas(1)
    a.e(f"s_add_u32 s{sSW}, s{sSW}, 16384", f"s_add_u32 s{sSX}, s{sSX}, 8192", f"s_cmp_eq_u32 s{sSW}, 49152",
        f"s_cselect_b32 s{sSW}, 0, s{sSW}", f"s_cselect_b32 s{sSX}, 0, s{sSX}")
    a.e(f"s_sub_u32 s{sI}, s{sI}, 1", f"s_cmp_lg_u32 s{sI}, 0", "s_cbranch_scc1 ffn1_loop")
    a.nop(16)
    a.e(f"s_lshl_b32 s{sT0}, s{sTB}, 2", f"s_lshl_b32 s{sT1}, s{sTP}, 1", f"s_add_u32 s{sT0}, s{sT0}, s{sT1}", f"s_mul_i32 s{sT0}, s{sT0}, {112*1024}",
        f"s_lshl_b32 s{sT1}, s{sFS}, 13", f"s_add_u32 s{sT0}, s{sT0}, s{sT1}", f"s_lshl_b32 s{sT1}, s{sAP}, 12", f"s_add_u32 s{sT0}, s{sT0}, s{sT1}",
        f"s_add_u32 s{sT0}, s{sT0}, {WS_H}", f"s_add_u32 s{sT1}, s{sT0}, {112*1024}")
    k = 0
    for q in range(4):
        for t in range(2):
            ac = ACC + (q * 2 + t) * 16
            for r in range(8): a.e(f"v_max_f32 v{ac+r}, 0, v{ac+r}")
            for r in range(8): a.e(f"v_mul_f32 v{ac+r}, v{ac+r}, v{ac+8+r}")
            pk = AF + 4 * (k % 8); k += 1
            for j in range(4): a.e(f"v_cvt_pk_bf16_f32 v{pk+j}, v{ac+2*j}, v{ac+2*j+1}")
            a.e(f"buffer_store_dwordx4 {v(pk,4)}, v{vL16}, s[{R_WS}:{R_WS+3}], s{sT1 if t else sT0} offen offset:{q*1024}")
    a.e("s_waitcnt vmcnt(0)")
    a.e("s_endpgm")

def gen_k2(a):
    name = "k2_kernel"
    kernel_header(a, name)
    a.e("s_cmp_ge_u32 s2, 480", "s_cbranch_scc1 k2_end")
    a.e("s_cmp_ge_u32 s2, 256", "s_cbranch_scc1 k2_ffn1")
    gen_attn(a)
    a.label("k2_ffn1")
    gen_ffn1(a)
    a.label("k2_end")
    a.e("s_endpgm")
    return name, 256, (480, K2_LDS, 256)

K3_D = 6
K3_LDS = 65536
def gen_k3(a):
    name = "k3_kernel"
    kernel_header(a, name)
    R_D, R_O, R_WS, R_X, R_OUT = 16, 20, 28, 24, 52
    sW, sTB64, sNB, sT0, sT1, sT2 = 32, 35, 36, 37, 38, 39
    sGW, sGB0, sGB1, sLW = 40, 41, 42, 43
    D = K3_D
    NS = D + 1
    a.e("s_cmp_ge_u32 s2, 256", "s_cbranch_scc1 k3_end")
    a.e("s_load_dwordx2 s[4:5], s[0:1], 64", "s_load_dwordx2 s[6:7], s[0:1], 32", "s_load_dwordx2 s[8:9], s[0:1], 0",
        "s_load_dwordx2 s[10:11], s[0:1], 72", "s_load_dwordx2 s[12:13], s[0:1], 88")
    vLane, vL16, vWo, vWA0, vWA1 = 3, 1, 8, 9, 10
    a.e("v_lshrrev_b32 v2, 6, v0", f"v_and_b32 v{vLane}, 63, v0")
    a.e(f"s_and_b32 s{sT0}, s2, 7", f"s_lshl_b32 s{sT0}, s{sT0}, 2", f"s_lshr_b32 s{sT1}, s2, 3", f"s_and_b32 s{sT1}, s{sT1}, 3",
        f"s_add_u32 s{sTB64}, s{sT0}, s{sT1}", f"s_lshr_b32 s{sNB}, s2, 5")
    a.e(f"v_readfirstlane_b32 s{sW}, v2", f"v_lshlrev_b32 v{vL16}, 4, v{vLane}")
    a.e("s_waitcnt lgkmcnt(0)")
    srd(a, R_D, 4, 1792 * 1024); srd(a, R_O, 6, 512 * 1024); srd(a, R_X, 8, 2048 * 1024); srd(a, R_OUT, 10, 2048 * 1024); srd(a, R_WS, 12, WS_SIZE)
    a.e(f"v_lshrrev_b32 v4, 3, v{vLane}", "v_lshlrev_b32 v4, 10, v4", f"v_lshrrev_b32 v5, 4, v{vLane}", "v_and_b32 v5, 1, v5", "v_lshlrev_b32 v5, 2, v5",
        f"v_and_b32 v6, 7, v{vLane}", "v_xor_b32 v6, v6, v5", "v_lshlrev_b32 v6, 4, v6", f"v_add_u32 v{vWo}, v4, v6")
    a.e(f"s_lshl_b32 s{sT0}, s{sNB}, 7", f"v_add_u32 v{vWo}, s{sT0}, v{vWo}")
    a.e(f"v_and_b32 v4, 15, v{vLane}", "v_lshrrev_b32 v5, 2, v4", f"v_lshrrev_b32 v6, 5, v{vLane}", "v_lshlrev_b32 v6, 2, v6", "v_add_u32 v5, v5, v6",
        "v_lshlrev_b32 v5, 7, v5", "v_lshrrev_b32 v6, 3, v4", "v_lshlrev_b32 v6, 6, v6", "v_add_u32 v5, v5, v6",
        f"v_lshrrev_b32 v6, 4, v{vLane}", "v_and_b32 v6, 1, v6", "v_lshlrev_b32 v6, 5, v6", "v_add_u32 v5, v5, v6",
        f"v_and_b32 v6, 3, v{vLane}", "v_lshlrev_b32 v6, 3, v6", "v_add_u32 v5, v5, v6")
    a.e(f"s_mul_i32 s{sLW}, s{sW}, {NS*2048}", f"v_add_u32 v{vWA0}, s{sLW}, v5", f"v_xor_b32 v{vWA1}, 64, v{vWA0}")
    BF = 64
    AF = 32
    ACC = 128
    for r in range(ACC, ACC + 64): a.e(f"v_mov_b32 v{r}, 0")
    steps = [("h", j) for j in range(28)] + [("o", j) for j in range(8)]
    sGWd, sGH0, sGH1, sGWo, sGO0, sGO1 = 44, 45, 46, 47, 48, 49
    a.e(f"s_mul_i32 s{sGWd}, s{sW}, {28*16*1024}")
    a.e(f"s_mul_i32 s{sGH0}, s{sTB64}, {2*112*1024}", f"s_mul_i32 s{sT0}, s{sW}, {28*1024}", f"s_add_u32 s{sGH0}, s{sGH0}, s{sT0}",
        f"s_add_u32 s{sGH0}, s{sGH0}, {WS_H}", f"s_add_u32 s{sGH1}, s{sGH0}, {112*1024}")
    a.e(f"s_lshl_b32 s{sGWo}, s{sW}, 17")
    a.e(f"s_lshl_b32 s{sGO0}, s{sTB64}, 16", f"s_lshl_b32 s{sT0}, s{sW}, 13", f"s_add_u32 s{sGO0}, s{sGO0}, s{sT0}", f"s_add_u32 s{sGO0}, s{sGO0}, {WS_O}",
        f"s_add_u32 s{sGO1}, s{sGO0}, 32768")
    def issue(n):
        kind, j = steps[n]
        slot = n % NS
        gw, r, g0, g1 = (sGWd, R_D, sGH0, sGH1) if kind == "h" else (sGWo, R_O, sGO0, sGO1)
        a.e(f"s_add_u32 m0, s{sLW}, {slot*2048}")
        a.e(f"s_add_u32 s{sT1}, s{gw}, 8192")
        a.e(f"buffer_load_dwordx4 v{vWo}, s[{r}:{r+3}], s{gw} offen lds")
        a.e(f"s_add_u32 m0, s{sLW}, {slot*2048+1024}", "s_nop 0")
        a.e(f"buffer_load_dwordx4 v{vWo}, s[{r}:{r+3}], s{sT1} offen lds")
        a.e(f"buffer_load_dwordx4 {v(BF+8*slot,4)}, v{vL16}, s[{R_WS}:{R_WS+3}], s{g0} offen")
        a.e(f"buffer_load_dwordx4 {v(BF+8*slot+4,4)}, v{vL16}, s[{R_WS}:{R_WS+3}], s{g1} offen")
        a.e(f"s_add_u32 s{gw}, s{gw}, 16384", f"s_add_u32 s{g0}, s{g0}, 1024", f"s_add_u32 s{g1}, s{g1}, 1024")
    N = len(steps)
    for n in range(D): issue(n)
    for n in range(N):
        if n + D < N:
            issue(n + D)
            a.e(f"s_waitcnt vmcnt({4*D})")
        else:
            a.e(f"s_waitcnt vmcnt({4*(N-1-n)})")
        slot = n % NS
        st = n & 1
        b = AF + 8 * st
        a.e(f"ds_read_b64_tr_b16 {v(b,2)}, v{vWA0} offset:{slot*2048}", f"ds_read_b64_tr_b16 {v(b+2,2)}, v{vWA0} offset:{slot*2048+1024}",
            f"ds_read_b64_tr_b16 {v(b+4,2)}, v{vWA1} offset:{slot*2048}", f"ds_read_b64_tr_b16 {v(b+6,2)}, v{vWA1} offset:{slot*2048+1024}")
        a.e("s_waitcnt lgkmcnt(0)")
        for nt in range(2):
            for tt in range(2):
                ac = ACC + (nt * 2 + tt) * 16
                a.e(f"v_mfma_f32_32x32x16_bf16 {v(ac,16)}, {v(b+4*nt,4)}, {v(BF+8*slot+4*tt,4)}, {v(ac,16)}")
    a.nop(16)
    a.e("s_barrier")
    a.e(f"s_lshl_b32 s{sT0}, s{sW}, 14", f"v_add_u32 v2, s{sT0}, v{vL16}")
    for t in range(4):
        for q in range(4):
            a.e(f"ds_write_b128 v2, {v(ACC+16*t+4*q,4)} offset:{t*4096+q*1024}")
    a.e(f"v_and_b32 v4, 31, v{vLane}", "v_lshlrev_b32 v4, 10, v4", f"v_lshrrev_b32 v5, 5, v{vLane}", "v_lshlrev_b32 v5, 3, v5", "v_add_u32 v4, v4, v5")
    a.e(f"s_lshl_b32 s{sT0}, s{sTB64}, 16", f"s_and_b32 s{sT1}, s{sW}, 1", f"s_lshl_b32 s{sT1}, s{sT1}, 15", f"s_add_u32 s{sT0}, s{sT0}, s{sT1}",
        f"s_lshl_b32 s{sT1}, s{sNB}, 7", f"s_add_u32 s{sT0}, s{sT0}, s{sT1}", f"s_lshr_b32 s{sT1}, s{sW}, 1", f"s_lshl_b32 s{sT1}, s{sT1}, 6",
        f"s_add_u32 s{sT0}, s{sT0}, s{sT1}")
    XR = 16
    for q in range(4):
        a.e(f"buffer_load_dwordx2 {v(XR+2*q,2)}, v4, s[{R_X}:{R_X+3}], s{sT0} offen offset:{q*16}")
    a.e("s_waitcnt lgkmcnt(0)", "s_barrier")
    a.e(f"s_lshl_b32 s{sT1}, s{sW}, 12", f"v_add_u32 v2, s{sT1}, v{vL16}")
    RB = 64
    for wp in range(4):
        for q in range(4):
            a.e(f"ds_read_b128 {v(RB+16*wp+4*q,4)}, v2 offset:{wp*16384+q*1024}")
        a.e("s_waitcnt lgkmcnt(0)")
    for r in range(16):
        a.e(f"v_add_f32 v{RB+r}, v{RB+r}, v{RB+16+r}", f"v_add_f32 v{RB+32+r}, v{RB+32+r}, v{RB+48+r}")
    for r in range(16): a.e(f"v_add_f32 v{RB+r}, v{RB+r}, v{RB+32+r}")
    a.e("s_waitcnt vmcnt(0)")
    a.e(f"s_mov_b32 s{sT2}, 0xffff0000")
    for q in range(4):
        for d in range(2):
            r = XR + 2 * q + d
            a.e(f"v_lshlrev_b32 v5, 16, v{r}", f"v_and_b32 v6, s{sT2}, v{r}",
                f"v_add_f32 v{RB+4*q+2*d}, v{RB+4*q+2*d}, v5", f"v_add_f32 v{RB+4*q+2*d+1}, v{RB+4*q+2*d+1}, v6")
    for q in range(4):
        for d in range(2):
            a.e(f"v_cvt_pk_bf16_f32 v{XR+2*q+d}, v{RB+4*q+2*d}, v{RB+4*q+2*d+1}")
    for q in range(4):
        a.e(f"buffer_store_dwordx2 {v(XR+2*q,2)}, v4, s[{R_OUT}:{R_OUT+3}], s{sT0} offen offset:{q*16}")
    a.label("k3_end")
    a.e("s_endpgm")
    return name, 192, (256, K3_LDS, 256)

HEADER = open("cdna_kernels/" + NAME + ".s.ref").read().split("; Override launch geometry")[0]

def build(kernels, outpath):
    a = Asm()
    launches = []
    descs = []
    for g in kernels:
        name, nv, (grid, lds, block) = g(a)
        launches.append(f"; @launch kernel={name} grid=({grid},1,1) block=({block},1,1) lds={lds}")
        descs.append(kernel_desc(name, nv))
    body = a.text()
    probs = check_text(body)
    for p in probs: print("HAZARD:", p, file=sys.stderr)
    out = HEADER + "\n".join(launches) + "\n" + '.amdgcn_target "amdgcn-amd-amdhsa--gfx950"\n.text\n' + body + "".join(descs)
    open(outpath, "w").write(out)
    return out

if __name__ == "__main__":
    build([gen_k1, gen_k2, gen_k3], "v1.s")
```

```python
import sys
from asmlib import *

NAME = "parallel_sum__grouped_kv_mqa__glu_gated_reglu__prompt"
WS_XN = 0
WS_Q = 2 << 20
WS_O = 4 << 20
WS_KF = 6 << 20
WS_VF = (6 << 20) + (128 << 10)
WS_H = 8 << 20
WS_SIZE = 32 << 20
QSCALE = 0.25 * 1.4426950408889634

def f2u(x):
    import struct
    return struct.unpack("<I", struct.pack("<f", x))[0]


INSTR = False
WS_TS = 24 << 20
def ts(a, i, real=False):
    if not INSTR: return
    a.e(f"s_memrealtime s[{80+2*i}:{81+2*i}]" if real else f"s_memtime s[{80+2*i}:{81+2*i}]")
def ts_dump(a, kidx, wgreg, wavereg, R_WS, n=8):
    if not INSTR: return
    a.e("s_waitcnt lgkmcnt(0)")
    a.e(f"s_lshl_b32 s78, s{wgreg}, 2", f"s_add_u32 s78, s78, s{wavereg}", "s_lshl_b32 s78, s78, 6", f"s_add_u32 s78, s78, {WS_TS + kidx * (1 << 20)}")
    a.e("s_mov_b64 exec, 1")
    a.e("v_mov_b32 v2, 0")
    for i in range(n):
        a.e(f"v_mov_b32 v3, s{80+2*i}")
        a.e(f"buffer_store_dword v3, v2, s[{R_WS}:{R_WS+3}], s78 offen offset:{4*i}")
        a.e("s_nop 1")
    a.e("s_mov_b64 exec, -1")

def srd(a, d, base, nbytes):
    a.e(f"s_mov_b32 s{d}, s{base}", f"s_and_b32 s{d+1}, s{base+1}, 0xffff", f"s_mov_b32 s{d+2}, {nbytes}", f"s_mov_b32 s{d+3}, 0x20000")

def kernel_header(a, name):
    a.raw(f".globl {name}")
    a.raw(".p2align 8")
    a.raw(f".type {name},@function")
    a.raw(f"{name}:")

def kernel_desc(name, nv, ns=102):
    return f""".section .rodata,"a"
.p2align 6
.amdhsa_kernel {name}
  .amdhsa_next_free_vgpr {nv}
  .amdhsa_next_free_sgpr {ns}
  .amdhsa_accum_offset {((nv+3)//4)*4}
  .amdhsa_group_segment_fixed_size 0
  .amdhsa_kernarg_size 96
  .amdhsa_user_sgpr_count 2
  .amdhsa_user_sgpr_kernarg_segment_ptr 1
  .amdhsa_system_sgpr_workgroup_id_x 1
.end_amdhsa_kernel
.text
"""

K1_LDS_X = 0
K1_LDS_W = 65536
K1_LDS_F = 131072
K1_LDS_ST = 147456
K1_LDS = 148480

def gen_k1(a):
    name = "k1_kernel"
    kernel_header(a, name)
    S_X, S_WQ, S_WK, S_WV, S_WS = 4, 6, 8, 10, 12
    R_X, R_W, R_F, R_WS = 16, 20, 24, 28
    sW, sTT, sKH, sTB64, sHG, sT0, sT1, sT2, sTB32 = 32, 33, 34, 35, 36, 37, 38, 39, 40
    sONES, sRS = 41, 42
    a.e("s_cmp_ge_u32 s2, 256", "s_cbranch_scc1 k1_end")
    ts(a, 0, True); ts(a, 1)
    a.e("s_load_dwordx4 s[4:7], s[0:1], 0", "s_load_dwordx4 s[8:11], s[0:1], 16", "s_load_dwordx2 s[12:13], s[0:1], 88")
    vLane, vT0, vT1, vT2, vT3 = 1, 2, 3, 4, 5
    a.e(f"v_lshrrev_b32 v{vT0}, 6, v0", f"v_and_b32 v{vLane}, 63, v0")
    a.e(f"s_and_b32 s{sT0}, s2, 7", f"s_lshl_b32 s{sT0}, s{sT0}, 2", f"s_lshr_b32 s{sT1}, s2, 3", f"s_and_b32 s{sT1}, s{sT1}, 3",
        f"s_add_u32 s{sTB64}, s{sT0}, s{sT1}", f"s_lshr_b32 s{sHG}, s2, 5")
    a.e(f"v_readfirstlane_b32 s{sW}, v{vT0}")
    a.e(f"s_mov_b32 s{sONES}, 0x3f803f80")
    a.e("s_nop 0")
    a.e(f"s_and_b32 s{sTT}, s{sW}, 1", f"s_lshr_b32 s{sKH}, s{sW}, 1")
    a.e(f"s_lshl_b32 s{sTB32}, s{sTB64}, 1", f"s_add_u32 s{sTB32}, s{sTB32}, s{sTT}")
    a.e("s_waitcnt lgkmcnt(0)")
    srd(a, R_X, S_X, 2048 * 1024)
    srd(a, R_W, S_WQ, 512 * 1024)
    srd(a, R_WS, S_WS, WS_SIZE)
    a.e(f"s_cmp_eq_u32 s{sHG}, 0", f"s_cselect_b32 s{R_F}, s{S_WK}, s{S_WV}", f"s_cselect_b32 s{R_F+1}, s{S_WK+1}, s{S_WV+1}",
        f"s_and_b32 s{R_F+1}, s{R_F+1}, 0xffff", f"s_mov_b32 s{R_F+2}, 16384", f"s_mov_b32 s{R_F+3}, 0x20000")
    vL16 = 6
    a.e(f"v_lshlrev_b32 v{vL16}, 4, v{vLane}")
    a.e(f"s_lshl_b32 s{sT0}, s{sTB64}, 16", f"s_lshl_b32 s{sT1}, s{sW}, 14", f"s_add_u32 s{sT0}, s{sT0}, s{sT1}")
    a.e(f"s_mov_b32 s{sT2}, s{sT1}")
    for j in range(16):
        vt = vT0 + (j & 1)
        a.e(f"v_xor_b32 v{vt}, {j << 4}, v{vL16}")
        a.e(f"s_mov_b32 m0, s{sT2}")
        a.e(f"s_add_u32 s{sT2}, s{sT2}, 1024")
        a.e(f"buffer_load_dwordx4 v{vt}, s[{R_X}:{R_X+3}], s{sT0} offen lds")
        a.e(f"s_add_u32 s{sT0}, s{sT0}, 1024")
    vWoff = 7
    a.e(f"v_lshrrev_b32 v{vT0}, 3, v{vLane}", f"v_lshlrev_b32 v{vT0}, 10, v{vT0}")
    a.e(f"v_lshrrev_b32 v{vT1}, 4, v{vLane}", f"v_and_b32 v{vT1}, 1, v{vT1}", f"v_lshlrev_b32 v{vT1}, 2, v{vT1}")
    a.e(f"v_and_b32 v{vT2}, 7, v{vLane}", f"v_xor_b32 v{vT2}, v{vT2}, v{vT1}", f"v_lshlrev_b32 v{vT2}, 4, v{vT2}")
    a.e(f"v_add_u32 v{vWoff}, v{vT0}, v{vT2}")
    a.e(f"s_lshl_b32 s{sT0}, s{sHG}, 7", f"v_add_u32 v{vWoff}, s{sT0}, v{vWoff}")
    a.e(f"s_lshl_b32 s{sT0}, s{sW}, 17")
    a.e(f"s_lshl_b32 s{sT2}, s{sW}, 14", f"s_add_u32 s{sT2}, s{sT2}, {K1_LDS_W}")
    for j in range(16):
        a.e(f"s_mov_b32 m0, s{sT2}")
        a.e(f"s_add_u32 s{sT2}, s{sT2}, 1024")
        a.e(f"buffer_load_dwordx4 v{vWoff}, s[{R_W}:{R_W+3}], s{sT0} offen lds")
        a.e(f"s_add_u32 s{sT0}, s{sT0}, 8192")
    a.e(f"s_cmp_ge_u32 s{sHG}, 2", "s_cbranch_scc1 k1_nof")
    a.e(f"s_lshl_b32 s{sT0}, s{sW}, 12", f"s_add_u32 s{sT2}, s{sT0}, {K1_LDS_F}")
    for j in range(4):
        a.e(f"s_mov_b32 m0, s{sT2}")
        a.e(f"s_add_u32 s{sT2}, s{sT2}, 1024")
        a.e(f"buffer_load_dwordx4 v{vL16}, s[{R_F}:{R_F+3}], s{sT0} offen lds")
        a.e(f"s_add_u32 s{sT0}, s{sT0}, 1024")
    a.label("k1_nof")
    vXA = 8
    a.e(f"v_and_b32 v{vT0}, 31, v{vLane}", f"v_lshrrev_b32 v{vT1}, 5, v{vLane}", f"v_and_b32 v{vT2}, 15, v{vLane}",
        f"v_xor_b32 v{vT2}, v{vT1}, v{vT2}", f"v_lshlrev_b32 v{vT2}, 4, v{vT2}", f"v_lshlrev_b32 v{vT0}, 10, v{vT0}",
        f"v_add_u32 v{vXA}, v{vT0}, v{vT2}")
    a.e(f"s_lshl_b32 s{sT0}, s{sTT}, 15", f"s_lshl_b32 s{sT1}, s{sKH}, 9", f"s_add_u32 s{sT0}, s{sT0}, s{sT1}")
    a.e(f"v_add_u32 v{vXA}, s{sT0}, v{vXA}")
    for m in range(1, 8):
        a.e(f"v_xor_b32 v{vXA+m}, {m << 5}, v{vXA}")
    vWA0, vWA1, vFA = 16, 17, 18
    a.e(f"v_and_b32 v{vT0}, 15, v{vLane}", f"v_lshrrev_b32 v{vT1}, 2, v{vT0}",
        f"v_lshrrev_b32 v{vT2}, 5, v{vLane}", f"v_lshlrev_b32 v{vT2}, 3, v{vT2}",
        f"v_add_u32 v{vT1}, v{vT1}, v{vT2}", f"v_lshlrev_b32 v{vT1}, 7, v{vT1}")
    a.e(f"v_lshrrev_b32 v{vT2}, 3, v{vT0}", f"v_lshlrev_b32 v{vT2}, 6, v{vT2}", f"v_add_u32 v{vT1}, v{vT1}, v{vT2}")
    a.e(f"v_lshrrev_b32 v{vT2}, 4, v{vLane}", f"v_and_b32 v{vT2}, 1, v{vT2}", f"v_lshlrev_b32 v{vT2}, 5, v{vT2}", f"v_add_u32 v{vT1}, v{vT1}, v{vT2}")
    a.e(f"v_and_b32 v{vT2}, 3, v{vLane}", f"v_lshlrev_b32 v{vT2}, 3, v{vT2}", f"v_add_u32 v{vT1}, v{vT1}, v{vT2}")
    a.e(f"s_lshl_b32 s{sT0}, s{sKH}, 15", f"s_add_u32 s{sT0}, s{sT0}, {K1_LDS_W}")
    a.e(f"v_add_u32 v{vWA0}, s{sT0}, v{vT1}", f"v_xor_b32 v{vWA1}, 64, v{vWA0}")
    a.e(f"v_lshrrev_b32 v{vT2}, 5, v{vLane}", f"v_lshlrev_b32 v{vT2}, 8, v{vT2}", f"v_lshlrev_b32 v{vT0}, 3, v{vT0}", f"v_add_u32 v{vT2}, v{vT2}, v{vT0}")
    a.e(f"s_lshl_b32 s{sT0}, s{sKH}, 13", f"s_add_u32 s{sT0}, s{sT0}, {K1_LDS_F}", f"v_add_u32 v{vFA}, s{sT0}, v{vT2}")
    ts(a, 2)
    a.e("s_waitcnt vmcnt(0)", "s_barrier")
    ts(a, 3)
    XB = 64
    for sp in range(16):
        a.e(f"ds_read_b128 {v(XB+4*sp,4)}, v{vXA + sp % 8} offset:{(sp // 8) * 256}")
    acc = [20, 21, 22, 23]
    for r in acc: a.e(f"v_mov_b32 v{r}, 0")
    for sp in range(16):
        a.e(f"s_waitcnt lgkmcnt({15 - sp})")
        for q in range(4):
            r = XB + 4 * sp + q
            a.e(f"v_dot2_f32_bf16 v{acc[q & 1]}, v{r}, s{sONES}, v{acc[q & 1]}")
            a.e(f"v_dot2_f32_bf16 v{acc[2 + (q & 1)]}, v{r}, v{r}, v{acc[2 + (q & 1)]}")
    a.nop(3)
    a.e("v_add_f32 v20, v20, v21", "v_add_f32 v22, v22, v23")
    a.nop(2)
    a.e("v_permlane32_swap_b32 v20, v22")
    a.nop(1)
    a.e("v_add_f32 v20, v20, v22")
    a.e(f"s_lshl_b32 s{sT0}, s{sW}, 8")
    a.e(f"s_lshl_b32 s{sT0}, s{sTT}, 9", f"s_lshl_b32 s{sT1}, s{sKH}, 8", f"s_add_u32 s{sT1}, s{sT0}, s{sT1}", f"s_add_u32 s{sT1}, s{sT1}, {K1_LDS_ST}")
    a.e(f"v_lshlrev_b32 v{vT0}, 2, v{vLane}", f"v_add_u32 v{vT1}, s{sT1}, v{vT0}")
    a.e(f"ds_write_b32 v{vT1}, v20")
    a.e("s_waitcnt lgkmcnt(0)", "s_barrier")
    a.e(f"s_add_u32 s{sT0}, s{sT0}, {K1_LDS_ST}")
    a.e(f"v_and_b32 v{vT0}, 31, v{vLane}", f"v_lshlrev_b32 v{vT0}, 2, v{vT0}", f"v_add_u32 v{vT0}, s{sT0}, v{vT0}")
    a.e(f"ds_read2_b32 v[20:21], v{vT0} offset0:0 offset1:64", f"ds_read2_b32 v[22:23], v{vT0} offset0:32 offset1:96")
    a.e("s_waitcnt lgkmcnt(0)")
    a.e("v_add_f32 v20, v20, v21", "v_add_f32 v22, v22, v23")
    a.e(f"v_mul_f32 v20, {f2u(1/512):#x}, v20")
    a.e(f"v_mul_f32 v22, {f2u(1/512):#x}, v22")
    a.e("v_fma_f32 v22, -v20, v20, v22")
    a.e("v_max_f32 v22, 0, v22")
    a.e(f"v_add_f32 v22, {f2u(1e-5):#x}, v22")
    a.e("v_rsq_f32 v22, v22")
    a.e("s_nop 0")
    a.e("v_mul_f32 v21, v20, v22", "v_sub_f32 v21, 0, v21")
    vRS, vNB = 22, 21
    a.e(f"s_mov_b32 s{sT2}, 0xffff0000")
    for r in range(XB, XB + 64):
        t0, t1 = 24 + 2 * (r & 1), 25 + 2 * (r & 1)
        a.e(f"v_lshlrev_b32 v{t0}, 16, v{r}", f"v_and_b32 v{t1}, s{sT2}, v{r}",
            f"v_fma_f32 v{t0}, v{t0}, v{vRS}, v{vNB}", f"v_fma_f32 v{t1}, v{t1}, v{vRS}, v{vNB}",
            f"v_cvt_pk_bf16_f32 v{r}, v{t0}, v{t1}")
    a.e(f"s_lshr_b32 s{sT0}, s{sHG}, 2", f"s_cmp_lg_u32 s{sT0}, s{sKH}", "s_cbranch_scc1 k1_noxn")
    a.e(f"s_lshl_b32 s{sT0}, s{sTB32}, 15", f"s_lshl_b32 s{sT1}, s{sHG}, 12", f"s_add_u32 s{sT0}, s{sT0}, s{sT1}")
    if WS_XN: a.e(f"s_add_u32 s{sT0}, s{sT0}, {WS_XN}")
    a.e(f"s_and_b32 s{sT1}, s{sHG}, 3")
    for var in range(4):
        nxt = f"k1_xn{var+1}"
        if var < 3:
            a.e(f"s_cmp_lg_u32 s{sT1}, {var}", f"s_cbranch_scc1 {nxt}")
        for q in range(4):
            a.e(f"buffer_store_dwordx4 {v(XB + 4 * (4 * var + q), 4)}, v{vL16}, s[{R_WS}:{R_WS+3}], s{sT0} offen offset:{q * 1024}")
        if var < 3:
            a.e("s_branch k1_noxn")
            a.label(nxt)
    a.label("k1_noxn")
    ts(a, 4)
    ACC0, ACC1, ACC2 = 128, 144, 160
    for r in range(ACC0, ACC0 + 48): a.e(f"v_mov_b32 v{r}, 0")
    AF = 32
    def areads(sp, st):
        b = AF + 8 * st
        a.e(f"ds_read_b64_tr_b16 {v(b,2)}, v{vWA0} offset:{sp*2048}", f"ds_read_b64_tr_b16 {v(b+2,2)}, v{vWA0} offset:{sp*2048+512}",
            f"ds_read_b64_tr_b16 {v(b+4,2)}, v{vWA1} offset:{sp*2048}", f"ds_read_b64_tr_b16 {v(b+6,2)}, v{vWA1} offset:{sp*2048+512}")
    areads(0, 0)
    for sp in range(16):
        st = sp & 1
        if sp < 15:
            areads(sp + 1, st ^ 1)
            a.e("s_waitcnt lgkmcnt(4)")
        else:
            a.e("s_waitcnt lgkmcnt(0)")
        b = AF + 8 * st
        a.e(f"v_mfma_f32_32x32x16_bf16 {v(ACC0,16)}, {v(b,4)}, {v(XB+4*sp,4)}, {v(ACC0,16)}")
        a.e(f"v_mfma_f32_32x32x16_bf16 {v(ACC1,16)}, {v(b+4,4)}, {v(XB+4*sp,4)}, {v(ACC1,16)}")
    a.e(f"s_cmp_ge_u32 s{sHG}, 2", "s_cbranch_scc1 k1_nokv")
    FF = 48
    def freads(sp, st):
        b = FF + 4 * st
        a.e(f"ds_read_b64_tr_b16 {v(b,2)}, v{vFA} offset:{sp*512}", f"ds_read_b64_tr_b16 {v(b+2,2)}, v{vFA} offset:{sp*512+128}")
    a.e(f"s_cmp_eq_u32 s{sHG}, 1", "s_cbranch_scc1 k1_vchain")
    for kind in (0, 1):
        if kind == 1: a.label("k1_vchain")
        freads(0, 0)
        for sp in range(16):
            st = sp & 1
            if sp < 15:
                freads(sp + 1, st ^ 1)
                a.e("s_waitcnt lgkmcnt(2)")
            else:
                a.e("s_waitcnt lgkmcnt(0)")
            b = FF + 4 * st
            if kind == 0:
                a.e(f"v_mfma_f32_32x32x16_bf16 {v(ACC2,16)}, {v(b,4)}, {v(XB+4*sp,4)}, {v(ACC2,16)}")
            else:
                a.e(f"v_mfma_f32_32x32x16_bf16 {v(ACC2,16)}, {v(XB+4*sp,4)}, {v(b,4)}, {v(ACC2,16)}")
        if kind == 0: a.e("s_branch k1_nokv")
    a.label("k1_nokv")
    ts(a, 5)
    a.nop(16)
    a.e(f"s_lshl_b32 s{sT0}, s{sW}, 13", f"v_add_u32 v{vT0}, s{sT0}, v{vL16}")
    a.e(f"s_cmp_eq_u32 s{sKH}, 0", "s_cbranch_scc1 k1_send1")
    for q in range(4):
        a.e(f"ds_write_b128 v{vT0}, {v(ACC0+4*q,4)} offset:{q*1024}")
    for q in range(4):
        a.e(f"ds_write_b128 v{vT0}, {v(ACC2+4*q,4)} offset:{4096+q*1024}")
    a.e("s_branch k1_sent")
    a.label("k1_send1")
    for q in range(4):
        a.e(f"ds_write_b128 v{vT0}, {v(ACC1+4*q,4)} offset:{q*1024}")
    a.label("k1_sent")
    a.e("s_waitcnt lgkmcnt(0)", "s_barrier")
    a.e(f"s_xor_b32 s{sT1}, s{sW}, 2", f"s_lshl_b32 s{sT0}, s{sT1}, 13", f"v_add_u32 v{vT0}, s{sT0}, v{vL16}")
    RB = 64
    a.e("s_waitcnt vmcnt(0)")
    for q in range(4):
        a.e(f"ds_read_b128 {v(RB+4*q,4)}, v{vT0} offset:{q*1024}")
    for q in range(4):
        a.e(f"ds_read_b128 {v(RB+16+4*q,4)}, v{vT0} offset:{4096+q*1024}")
    a.e("s_waitcnt lgkmcnt(0)")
    a.e(f"s_cmp_eq_u32 s{sKH}, 0", "s_cbranch_scc1 k1_keep0")
    for r in range(16): a.e(f"v_add_f32 v{RB+r}, v{RB+r}, v{ACC1+r}")
    a.e("s_branch k1_kept")
    a.label("k1_keep0")
    for r in range(16): a.e(f"v_add_f32 v{RB+r}, v{RB+r}, v{ACC0+r}")
    for r in range(16): a.e(f"v_add_f32 v{RB+16+r}, v{RB+16+r}, v{ACC2+r}")
    a.label("k1_kept")
    a.e(f"s_mov_b32 s{sT2}, {f2u(QSCALE):#x}")
    for r in range(16): a.e(f"v_mul_f32 v{RB+r}, s{sT2}, v{RB+r}")
    PK = 32
    for j in range(8): a.e(f"v_cvt_pk_bf16_f32 v{PK+j}, v{RB+2*j}, v{RB+2*j+1}")
    a.e(f"s_lshl_b32 s{sT0}, s{sTB32}, 15", f"s_lshl_b32 s{sT1}, s{sHG}, 12", f"s_add_u32 s{sT0}, s{sT0}, s{sT1}",
        f"s_lshl_b32 s{sT1}, s{sKH}, 11", f"s_add_u32 s{sT0}, s{sT0}, s{sT1}", f"s_add_u32 s{sT0}, s{sT0}, {WS_Q}")
    a.e(f"buffer_store_dwordx4 {v(PK,4)}, v{vL16}, s[{R_WS}:{R_WS+3}], s{sT0} offen")
    a.e(f"buffer_store_dwordx4 {v(PK+4,4)}, v{vL16}, s[{R_WS}:{R_WS+3}], s{sT0} offen offset:1024")
    if INSTR:
        ts(a, 6); ts(a, 7, True)
        ts_dump(a, 0, 2, sW, R_WS)
    a.e(f"s_cmp_ge_u32 s{sHG}, 2", "s_cbranch_scc1 k1_end")
    a.e(f"s_cmp_lg_u32 s{sKH}, 0", "s_cbranch_scc1 k1_end")
    PK2 = 40
    for j in range(8): a.e(f"v_cvt_pk_bf16_f32 v{PK2+j}, v{RB+16+2*j}, v{RB+16+2*j+1}")
    a.e(f"s_cmp_eq_u32 s{sHG}, 1", "s_cbranch_scc1 k1_vout")
    a.e(f"s_lshl_b32 s{sT0}, s{sTB32}, 10", f"s_add_u32 s{sT0}, s{sT0}, {WS_KF}")
    a.e(f"buffer_store_dwordx4 {v(PK2,4)}, v{vL16}, s[{R_WS}:{R_WS+3}], s{sT0} offen")
    a.e("s_branch k1_end")
    a.label("k1_vout")
    a.e(f"v_and_b32 v{vT0}, 31, v{vLane}")
    a.e(f"v_and_b32 v{vT1}, 27, v{vLane}")
    a.e(f"v_cmp_eq_u32 vcc, 16, v{vT1}")
    a.e(f"v_mov_b32 v{vT2}, 0", f"v_mov_b32 v{vT3}, s{sONES}")
    a.e(f"v_cndmask_b32 v{vT2}, v{vT2}, v{vT3}, vcc")
    a.e(f"v_cmp_gt_u32 vcc, 16, v{vT0}")
    a.nop(2)
    for j in range(8): a.e(f"v_cndmask_b32 v{PK2+j}, v{vT2}, v{PK2+j}, vcc")
    a.e(f"s_lshl_b32 s{sT0}, s{sTB32}, 11", f"s_add_u32 s{sT0}, s{sT0}, {WS_VF}")
    a.e(f"buffer_store_dwordx4 {v(PK2,4)}, v{vL16}, s[{R_WS}:{R_WS+3}], s{sT0} offen")
    a.e(f"buffer_store_dwordx4 {v(PK2+4,4)}, v{vL16}, s[{R_WS}:{R_WS+3}], s{sT0} offen offset:1024")
    a.label("k1_end")
    a.e("s_endpgm")
    return name, 176, (256, K1_LDS, 256)


K2_LDS = 73728

def attn_tile(a, Sin, Sout, Pcur, Pprev, Sm, PV1, PV2, extra=None):
    e = lambda i: a.e(f"v_exp_f32 v{Sin+i}, v{Sin+i}")
    c = lambda j: a.e(f"v_cvt_pk_bf16_f32 v{Pcur+j}, v{Sin+2*j}, v{Sin+2*j+1}")
    ex = extra or {}
    def X(k):
        for ins in ex.get(k, []): a.e(ins)
    X(0)
    e(0); e(1); a.e(Sm); e(2); e(3); c(0); e(4); e(5); c(1); X(1); e(6); e(7); c(2); a.e(PV1); e(8); e(9); c(3); e(10); e(11); c(4); X(2)
    e(12); e(13); c(5); a.e(PV2); e(14); e(15); c(6); c(7)

def gen_attn(a):
    R_WS = 28
    sW, sTB64, sHG, sT0, sT1, sT2, sK, sV, sI, sQ = 32, 35, 36, 37, 38, 39, 43, 44, 45, 46
    vL16 = 1
    Q, KF, VF, S, P, O = 8, 40, 48, 64, 96, 128
    ts(a, 0, True); ts(a, 1)
    a.e("s_load_dwordx2 s[12:13], s[0:1], 88")
    a.e("v_lshrrev_b32 v2, 6, v0", "v_and_b32 v3, 63, v0")
    a.e(f"s_and_b32 s{sT0}, s2, 7", f"s_lshl_b32 s{sT0}, s{sT0}, 2", f"s_lshr_b32 s{sT1}, s2, 3", f"s_and_b32 s{sT1}, s{sT1}, 3",
        f"s_add_u32 s{sTB64}, s{sT0}, s{sT1}", f"s_lshr_b32 s{sHG}, s2, 5")
    a.e(f"v_readfirstlane_b32 s{sW}, v2", f"v_lshlrev_b32 v{vL16}, 4, v3")
    a.e("s_waitcnt lgkmcnt(0)")
    srd(a, R_WS, 12, WS_SIZE)
    a.e(f"s_lshl_b32 s{sQ}, s{sTB64}, 16", f"s_lshl_b32 s{sT0}, s{sHG}, 12", f"s_add_u32 s{sQ}, s{sQ}, s{sT0}")
    a.e(f"s_add_u32 s{sT0}, s{sQ}, {WS_Q}", f"s_add_u32 s{sT1}, s{sT0}, 32768")
    a.e(f"s_lshl_b32 s{sK}, s{sW}, 14", f"s_add_u32 s{sK}, s{sK}, {WS_KF}", f"s_lshl_b32 s{sV}, s{sW}, 15", f"s_add_u32 s{sV}, s{sV}, {WS_VF}")
    rs = f"s[{R_WS}:{R_WS+3}]"
    a.e(f"buffer_load_dwordx4 {v(KF,4)}, v{vL16}, {rs}, s{sK} offen")
    for c in range(8):
        tt, hl = c & 1, c >> 1
        a.e(f"buffer_load_dwordx4 {v(Q+4*c,4)}, v{vL16}, {rs}, s{sT1 if tt else sT0} offen offset:{hl*1024}")
    a.e(f"buffer_load_dwordx4 {v(VF,4)}, v{vL16}, {rs}, s{sV} offen", f"buffer_load_dwordx4 {v(VF+4,4)}, v{vL16}, {rs}, s{sV} offen offset:1024")
    for r in range(O, O + 128): a.e(f"v_mov_b32 v{r}, 0")
    for r in range(P + 8, P + 16): a.e(f"v_mov_b32 v{r}, 0")
    for r in range(VF + 8, VF + 16): a.e(f"v_mov_b32 v{r}, 0")
    a.e(f"s_mov_b32 s{sI}, 8")
    a.e("s_waitcnt vmcnt(9)")
    a.e(f"v_mfma_f32_32x32x16_bf16 {v(S,16)}, {v(KF,4)}, {v(Q,4)}, 0")
    a.e("s_waitcnt vmcnt(0)")
    a.nop(12)
    ts(a, 2)
    a.raw(".p2align 3")
    a.label("attn_loop")
    for kb in range(2):
        for c in range(8):
            n = kb * 8 + c
            Sin, Sout = S + 16 * (n & 1), S + 16 * ((n + 1) & 1)
            Pcur, Pprev = P + 8 * (n & 1), P + 8 * ((n + 1) & 1)
            cn = (c + 1) & 7
            kn = kb if c < 7 else kb ^ 1
            Sm = f"v_mfma_f32_32x32x16_bf16 {v(Sout,16)}, {v(KF+4*kn,4)}, {v(Q+4*cn,4)}, 0"
            cp = (c - 1) & 7
            kp = kb if c > 0 else kb ^ 1
            Op = O + 16 * cp
            PV1 = f"v_mfma_f32_32x32x16_bf16 {v(Op,16)}, {v(VF+8*kp,4)}, {v(Pprev,4)}, {v(Op,16)}"
            PV2 = f"v_mfma_f32_32x32x16_bf16 {v(Op,16)}, {v(VF+8*kp+4,4)}, {v(Pprev+4,4)}, {v(Op,16)}"
            extra = {}
            if c == 1:
                nb = kb ^ 1
                extra[1] = [f"s_add_u32 s{sK}, s{sK}, 1024", f"s_add_u32 s{sV}, s{sV}, 2048",
                            f"buffer_load_dwordx4 {v(KF+4*nb,4)}, v{vL16}, {rs}, s{sK} offen",
                            f"buffer_load_dwordx4 {v(VF+8*nb,4)}, v{vL16}, {rs}, s{sV} offen",
                            f"buffer_load_dwordx4 {v(VF+8*nb+4,4)}, v{vL16}, {rs}, s{sV} offen offset:1024"]
            if c == 7:
                extra[0] = ["s_waitcnt vmcnt(0)", "s_nop 0"]
            attn_tile(a, Sin, Sout, Pcur, Pprev, Sm, PV1, PV2, extra)
    a.e(f"s_sub_u32 s{sI}, s{sI}, 1", f"s_cmp_lg_u32 s{sI}, 0", "s_cbranch_scc1 attn_loop")
    ts(a, 3)
    Op = O + 16 * 7
    a.nop(2)
    a.e(f"v_mfma_f32_32x32x16_bf16 {v(Op,16)}, {v(VF+8,4)}, {v(P+8,4)}, {v(Op,16)}")
    a.e(f"v_mfma_f32_32x32x16_bf16 {v(Op,16)}, {v(VF+12,4)}, {v(P+12,4)}, {v(Op,16)}")
    a.nop(16)
    a.e(f"s_mul_i32 s{sT0}, s{sW}, {8*2304}", f"v_add_u32 v2, s{sT0}, v{vL16}")
    a.e(f"v_lshrrev_b32 v3, 2, v{vL16}", f"v_add_u32 v3, s{sT0}, v3")
    for c in range(8):
        a.e(f"ds_write_b128 v2, {v(O+16*c,4)} offset:{c*2304}", f"ds_write_b128 v2, {v(O+16*c+4,4)} offset:{c*2304+1024}",
            f"ds_write_b32 v3, v{O+16*c+8} offset:{c*2304+2048}")
    a.e("s_waitcnt lgkmcnt(0)", "s_barrier")
    a.e(f"s_mul_i32 s{sT0}, s{sW}, {2*2304}", f"v_add_u32 v2, s{sT0}, v{vL16}")
    a.e(f"v_lshrrev_b32 v3, 2, v{vL16}", f"v_add_u32 v3, s{sT0}, v3")
    RB = 64
    for j in range(2):
        for wp in range(4):
            b = RB + (j * 4 + wp) * 12
            off = j * 2304 + wp * 8 * 2304
            a.e(f"ds_read_b128 {v(b,4)}, v2 offset:{off}", f"ds_read_b128 {v(b+4,4)}, v2 offset:{off+1024}", f"ds_read_b32 v{b+8}, v3 offset:{off+2048}")
        a.e("s_waitcnt lgkmcnt(0)")
    for j in range(2):
        b0 = RB + j * 48
        for r in range(9):
            a.e(f"v_add_f32 v{b0+r}, v{b0+r}, v{b0+12+r}", f"v_add_f32 v{b0+24+r}, v{b0+24+r}, v{b0+36+r}")
        for r in range(9):
            a.e(f"v_add_f32 v{b0+r}, v{b0+r}, v{b0+24+r}")
        a.e(f"v_rcp_f32 v{b0+9}, v{b0+8}")
        a.e("s_nop 0")
        for r in range(8): a.e(f"v_mul_f32 v{b0+r}, v{b0+r}, v{b0+9}")
        for q in range(4): a.e(f"v_cvt_pk_bf16_f32 v{b0+12+q}, v{b0+2*q}, v{b0+2*q+1}")
    a.e(f"s_lshl_b32 s{sT0}, s{sW}, 10", f"s_add_u32 s{sT0}, s{sT0}, s{sQ}", f"s_add_u32 s{sT0}, s{sT0}, {WS_O}", f"s_add_u32 s{sT1}, s{sT0}, 32768")
    a.e(f"buffer_store_dwordx4 {v(RB+12,4)}, v{vL16}, {rs}, s{sT0} offen")
    a.e(f"buffer_store_dwordx4 {v(RB+48+12,4)}, v{vL16}, {rs}, s{sT1} offen")
    if INSTR:
        ts(a, 6); ts(a, 7, True)
        ts_dump(a, 1, 2, sW, R_WS)
    a.e("s_endpgm")

def gen_ffn1(a):
    R_G, R_U, R_WS = 16, 20, 28
    sW, sTP, sAP, sT0, sT1, sT2, sTB, sFS = 32, 33, 34, 37, 38, 39, 40, 41
    sI, sSW, sSX, sDW, sDX, sGK, sGX = 45, 46, 47, 48, 49, 50, 51
    vL16, vGo, vUo, vXB = 1, 13, 14, 12
    vWA = 8
    vWb, vXb = 16, 20
    AF, BF, ACC = 64, 96, 128
    LW, LX = 0, 49152
    ts(a, 0, True); ts(a, 1)
    a.e("s_mov_b32 s77, s2")
    a.e("s_setprio 3")
    a.e("s_load_dwordx4 s[4:7], s[0:1], 48", "s_load_dwordx2 s[12:13], s[0:1], 88")
    a.e("v_lshrrev_b32 v2, 6, v0", "v_and_b32 v3, 63, v0")
    a.e("s_sub_u32 s2, s2, 256", f"s_and_b32 s{sT0}, s2, 7", f"s_lshr_b32 s{sT1}, s2, 3",
        f"s_mul_i32 s{sT2}, s{sT1}, 37", f"s_lshr_b32 s{sT2}, s{sT2}, 8",
        f"s_lshr_b32 s{sTB}, s{sT0}, 1", f"s_lshl_b32 s{sTB}, s{sTB}, 2", f"s_add_u32 s{sTB}, s{sTB}, s{sT2}",
        f"s_mul_i32 s{sT2}, s{sT2}, 7", f"s_sub_u32 s{sT1}, s{sT1}, s{sT2}",
        f"s_and_b32 s{sT0}, s{sT0}, 1", f"s_mul_i32 s{sT0}, s{sT0}, 7", f"s_add_u32 s{sFS}, s{sT0}, s{sT1}")
    a.e(f"v_readfirstlane_b32 s{sW}, v2", f"v_lshlrev_b32 v{vL16}, 4, v3")
    a.e("s_waitcnt lgkmcnt(0)")
    srd(a, R_G, 4, 512 * 3584); srd(a, R_U, 6, 512 * 3584); srd(a, R_WS, 12, WS_SIZE)
    a.e(f"s_and_b32 s{sTP}, s{sW}, 1", f"s_lshr_b32 s{sAP}, s{sW}, 1")
    a.e("v_lshrrev_b32 v4, 4, v3", "v_mul_u32_u24 v5, 3584, v4", "v_lshlrev_b32 v4, 1, v4", "v_and_b32 v6, 15, v3", "v_xor_b32 v6, v6, v4",
        "v_xor_b32 v7, 8, v6", "v_lshlrev_b32 v6, 4, v6", "v_lshlrev_b32 v7, 4, v7")
    a.e(f"s_lshl_b32 s{sT0}, s{sFS}, 8", f"v_add_u32 v5, s{sT0}, v5", f"v_add_u32 v{vGo}, v5, v6", f"v_add_u32 v{vUo}, v5, v7")
    a.e("v_and_b32 v4, 15, v3", "v_lshrrev_b32 v5, 2, v4",
        "v_lshrrev_b32 v6, 4, v3", "v_and_b32 v6, 1, v6",
        "v_lshrrev_b32 v7, 5, v3", "v_lshlrev_b32 v7, 3, v7", "v_add_u32 v7, v7, v5", "v_lshlrev_b32 v7, 8, v7",
        "v_lshlrev_b32 v2, 13, v6", "v_add_u32 v7, v7, v2",
        "v_lshlrev_b32 v6, 2, v6", "v_xor_b32 v5, v5, v6", "v_lshlrev_b32 v5, 5, v5", "v_add_u32 v7, v7, v5",
        "v_and_b32 v4, 3, v3", "v_lshlrev_b32 v4, 3, v4", "v_add_u32 v7, v7, v4")
    a.e(f"s_lshl_b32 s{sT0}, s{sAP}, 7", f"v_xor_b32 v{vWb}, s{sT0}, v7")
    for q in range(1, 4): a.e(f"v_xor_b32 v{vWb+q}, {q << 5}, v{vWb}")
    a.e(f"s_lshl_b32 s{sT0}, s{sTP}, 12", f"s_add_u32 s{sT0}, s{sT0}, {LX}", f"v_add_u32 v{vXb}, s{sT0}, v{vL16}")
    a.e(f"s_mul_i32 s{sGK}, s{sW}, {8*3584}")
    a.e(f"s_lshl_b32 s{sGX}, s{sTB}, 2", f"s_add_u32 s{sGX}, s{sGX}, s{sW}", f"s_lshl_b32 s{sGX}, s{sGX}, 15")
    if WS_XN: a.e(f"s_add_u32 s{sGX}, s{sGX}, {WS_XN}")
    def dma_stage():
        a.e(f"s_lshl_b32 s{sT0}, s{sW}, 11", f"s_add_u32 s{sT0}, s{sT0}, s{sDW}")
        a.e(f"s_mov_b32 m0, s{sT0}", f"s_add_u32 s{sT1}, s{sGK}, {4*3584}")
        a.e(f"buffer_load_dwordx4 v{vGo}, s[{R_G}:{R_G+3}], s{sGK} offen lds")
        a.e(f"s_add_u32 m0, s{sT0}, 1024", "s_nop 0")
        a.e(f"buffer_load_dwordx4 v{vGo}, s[{R_G}:{R_G+3}], s{sT1} offen lds")
        a.e(f"s_add_u32 m0, s{sT0}, 8192", "s_nop 0")
        a.e(f"buffer_load_dwordx4 v{vUo}, s[{R_U}:{R_U+3}], s{sGK} offen lds")
        a.e(f"s_add_u32 m0, s{sT0}, {8192+1024}", "s_nop 0")
        a.e(f"buffer_load_dwordx4 v{vUo}, s[{R_U}:{R_U+3}], s{sT1} offen lds")
        a.e(f"s_lshl_b32 s{sT0}, s{sW}, 11", f"s_add_u32 s{sT0}, s{sT0}, s{sDX}")
        a.e(f"s_mov_b32 m0, s{sT0}", f"s_add_u32 s{sT1}, s{sGX}, 1024")
        a.e(f"buffer_load_dwordx4 v{vL16}, s[{R_WS}:{R_WS+3}], s{sGX} offen lds")
        a.e(f"s_add_u32 m0, s{sT0}, 1024", "s_nop 0")
        a.e(f"buffer_load_dwordx4 v{vL16}, s[{R_WS}:{R_WS+3}], s{sT1} offen lds")
        a.e(f"s_add_u32 s{sGK}, s{sGK}, {32*3584}", f"s_add_u32 s{sGX}, s{sGX}, 2048")
    def adv(sw, sx):
        a.e(f"s_add_u32 s{sw}, s{sw}, 16384", f"s_add_u32 s{sx}, s{sx}, 8192", f"s_cmp_eq_u32 s{sw}, 49152",
            f"s_cselect_b32 s{sw}, 0, s{sw}")
        a.e(f"s_cselect_b32 s{sT0}, 24576, 0", f"s_sub_u32 s{sx}, s{sx}, s{sT0}")
    a.e(f"s_mov_b32 s{sDW}, {LW}", f"s_mov_b32 s{sDX}, {LX}")
    dma_stage(); adv(sDW, sDX)
    dma_stage(); adv(sDW, sDX)
    for r in range(ACC, ACC + 128): a.e(f"v_mov_b32 v{r}, 0")
    a.e(f"s_mov_b32 s{sSW}, 0", f"s_mov_b32 s{sSX}, 0", f"s_mov_b32 s{sI}, 16")
    ts(a, 2)
    a.label("ffn1_loop")
    a.e("s_waitcnt vmcnt(6)", "s_barrier")
    for q in range(4): a.e(f"v_add_u32 v{vWA+q}, s{sSW}, v{vWb+q}")
    a.e(f"v_add_u32 v{vXB}, s{sSX}, v{vXb}")
    def reads(ks, st):
        for t in range(2):
            a.e(f"ds_read_b128 {v(BF+8*st+4*t,4)}, v{vXB} offset:{(t*2+ks)*1024}")
        for q in range(4):
            b = AF + 16 * st + 4 * q
            a.e(f"ds_read_b64_tr_b16 {v(b,2)}, v{vWA+q} offset:{ks*4096}", f"ds_read_b64_tr_b16 {v(b+2,2)}, v{vWA+q} offset:{ks*4096+1024}")
    def mfmas(st):
        for q in range(4):
            for t in range(2):
                ac = ACC + (q * 2 + t) * 16
                a.e(f"v_mfma_f32_32x32x16_bf16 {v(ac,16)}, {v(AF+16*st+4*q,4)}, {v(BF+8*st+4*t,4)}, {v(ac,16)}")
    reads(0, 0)
    dma_stage(); adv(sDW, sDX)
    a.e("s_waitcnt lgkmcnt(0)")
    reads(1, 1)
    mfmas(0)
    a.e("s_waitcnt lgkmcnt(0)")
    mfmas(1)
    a.e(f"s_add_u32 s{sSW}, s{sSW}, 16384", f"s_add_u32 s{sSX}, s{sSX}, 8192", f"s_cmp_eq_u32 s{sSW}, 49152",
        f"s_cselect_b32 s{sSW}, 0, s{sSW}", f"s_cselect_b32 s{sSX}, 0, s{sSX}")
    a.e(f"s_sub_u32 s{sI}, s{sI}, 1", f"s_cmp_lg_u32 s{sI}, 0", "s_cbranch_scc1 ffn1_loop")
    ts(a, 3)
    a.nop(16)
    a.e(f"s_lshl_b32 s{sT0}, s{sTB}, 2", f"s_lshl_b32 s{sT1}, s{sTP}, 1", f"s_add_u32 s{sT0}, s{sT0}, s{sT1}", f"s_mul_i32 s{sT0}, s{sT0}, {112*1024}",
        f"s_lshl_b32 s{sT1}, s{sFS}, 13", f"s_add_u32 s{sT0}, s{sT0}, s{sT1}", f"s_lshl_b32 s{sT1}, s{sAP}, 12", f"s_add_u32 s{sT0}, s{sT0}, s{sT1}",
        f"s_add_u32 s{sT0}, s{sT0}, {WS_H}", f"s_add_u32 s{sT1}, s{sT0}, {112*1024}")
    k = 0
    for q in range(4):
        for t in range(2):
            ac = ACC + (q * 2 + t) * 16
            for r in range(8): a.e(f"v_max_f32 v{ac+r}, 0, v{ac+r}")
            for r in range(8): a.e(f"v_mul_f32 v{ac+r}, v{ac+r}, v{ac+8+r}")
            pk = AF + 4 * (k % 8); k += 1
            for j in range(4): a.e(f"v_cvt_pk_bf16_f32 v{pk+j}, v{ac+2*j}, v{ac+2*j+1}")
            a.e(f"buffer_store_dwordx4 {v(pk,4)}, v{vL16}, s[{R_WS}:{R_WS+3}], s{sT1 if t else sT0} offen offset:{q*1024}")
    a.e("s_waitcnt vmcnt(0)")
    if INSTR:
        ts(a, 6); ts(a, 7, True)
        ts_dump(a, 1, 77, sW, R_WS)
    a.e("s_endpgm")

def gen_k2(a):
    name = "k2_kernel"
    kernel_header(a, name)
    a.e("s_cmp_ge_u32 s2, 480", "s_cbranch_scc1 k2_end")
    a.e("s_cmp_ge_u32 s2, 256", "s_cbranch_scc1 k2_ffn1")
    gen_attn(a)
    a.label("k2_ffn1")
    gen_ffn1(a)
    a.label("k2_end")
    a.e("s_endpgm")
    return name, 256, (480, K2_LDS, 256)

K3_D = 6
K3_LDS = 65536
def gen_k3(a):
    name = "k3_kernel"
    kernel_header(a, name)
    R_D, R_O, R_WS, R_X, R_OUT = 16, 20, 28, 24, 52
    sW, sTB64, sNB, sT0, sT1, sT2 = 32, 35, 36, 37, 38, 39
    sGW, sGB0, sGB1, sLW = 40, 41, 42, 43
    D = K3_D
    NS = D + 1
    a.e("s_cmp_ge_u32 s2, 256", "s_cbranch_scc1 k3_end")
    ts(a, 0, True); ts(a, 1)
    a.e("s_load_dwordx2 s[4:5], s[0:1], 64", "s_load_dwordx2 s[6:7], s[0:1], 32", "s_load_dwordx2 s[8:9], s[0:1], 0",
        "s_load_dwordx2 s[10:11], s[0:1], 72", "s_load_dwordx2 s[12:13], s[0:1], 88")
    vLane, vL16, vWo, vWA0, vWA1 = 3, 1, 8, 9, 10
    a.e("v_lshrrev_b32 v2, 6, v0", f"v_and_b32 v{vLane}, 63, v0")
    a.e(f"s_and_b32 s{sT0}, s2, 7", f"s_lshl_b32 s{sT0}, s{sT0}, 2", f"s_lshr_b32 s{sT1}, s2, 3", f"s_and_b32 s{sT1}, s{sT1}, 3",
        f"s_add_u32 s{sTB64}, s{sT0}, s{sT1}", f"s_lshr_b32 s{sNB}, s2, 5")
    a.e(f"v_readfirstlane_b32 s{sW}, v2", f"v_lshlrev_b32 v{vL16}, 4, v{vLane}")
    a.e("s_waitcnt lgkmcnt(0)")
    srd(a, R_D, 4, 1792 * 1024); srd(a, R_O, 6, 512 * 1024); srd(a, R_X, 8, 2048 * 1024); srd(a, R_OUT, 10, 2048 * 1024); srd(a, R_WS, 12, WS_SIZE)
    a.e(f"v_lshrrev_b32 v4, 3, v{vLane}", "v_lshlrev_b32 v4, 10, v4", f"v_lshrrev_b32 v5, 4, v{vLane}", "v_and_b32 v5, 1, v5", "v_lshlrev_b32 v5, 2, v5",
        f"v_and_b32 v6, 7, v{vLane}", "v_xor_b32 v6, v6, v5", "v_lshlrev_b32 v6, 4, v6", f"v_add_u32 v{vWo}, v4, v6")
    a.e(f"s_lshl_b32 s{sT0}, s{sNB}, 7", f"v_add_u32 v{vWo}, s{sT0}, v{vWo}")
    a.e(f"v_and_b32 v4, 15, v{vLane}", "v_lshrrev_b32 v5, 2, v4", f"v_lshrrev_b32 v6, 5, v{vLane}", "v_lshlrev_b32 v6, 2, v6", "v_add_u32 v5, v5, v6",
        "v_lshlrev_b32 v5, 7, v5", "v_lshrrev_b32 v6, 3, v4", "v_lshlrev_b32 v6, 6, v6", "v_add_u32 v5, v5, v6",
        f"v_lshrrev_b32 v6, 4, v{vLane}", "v_and_b32 v6, 1, v6", "v_lshlrev_b32 v6, 5, v6", "v_add_u32 v5, v5, v6",
        f"v_and_b32 v6, 3, v{vLane}", "v_lshlrev_b32 v6, 3, v6", "v_add_u32 v5, v5, v6")
    a.e(f"s_mul_i32 s{sLW}, s{sW}, {NS*2048}", f"v_add_u32 v{vWA0}, s{sLW}, v5", f"v_xor_b32 v{vWA1}, 64, v{vWA0}")
    BF = 64
    AF = 32
    ACC = 128
    for r in range(ACC, ACC + 64): a.e(f"v_mov_b32 v{r}, 0")
    steps = [("h", j) for j in range(28)] + [("o", j) for j in range(8)]
    sGWd, sGH0, sGH1, sGWo, sGO0, sGO1 = 44, 45, 46, 47, 48, 49
    a.e(f"s_mul_i32 s{sGWd}, s{sW}, {28*16*1024}")
    a.e(f"s_mul_i32 s{sGH0}, s{sTB64}, {2*112*1024}", f"s_mul_i32 s{sT0}, s{sW}, {28*1024}", f"s_add_u32 s{sGH0}, s{sGH0}, s{sT0}",
        f"s_add_u32 s{sGH0}, s{sGH0}, {WS_H}", f"s_add_u32 s{sGH1}, s{sGH0}, {112*1024}")
    a.e(f"s_lshl_b32 s{sGWo}, s{sW}, 17")
    a.e(f"s_lshl_b32 s{sGO0}, s{sTB64}, 16", f"s_lshl_b32 s{sT0}, s{sW}, 13", f"s_add_u32 s{sGO0}, s{sGO0}, s{sT0}", f"s_add_u32 s{sGO0}, s{sGO0}, {WS_O}",
        f"s_add_u32 s{sGO1}, s{sGO0}, 32768")
    def issue(n):
        kind, j = steps[n]
        slot = n % NS
        gw, r, g0, g1 = (sGWd, R_D, sGH0, sGH1) if kind == "h" else (sGWo, R_O, sGO0, sGO1)
        a.e(f"s_add_u32 m0, s{sLW}, {slot*2048}")
        a.e(f"s_add_u32 s{sT1}, s{gw}, 8192")
        a.e(f"buffer_load_dwordx4 v{vWo}, s[{r}:{r+3}], s{gw} offen lds")
        a.e(f"s_add_u32 m0, s{sLW}, {slot*2048+1024}", "s_nop 0")
        a.e(f"buffer_load_dwordx4 v{vWo}, s[{r}:{r+3}], s{sT1} offen lds")
        a.e(f"buffer_load_dwordx4 {v(BF+8*slot,4)}, v{vL16}, s[{R_WS}:{R_WS+3}], s{g0} offen")
        a.e(f"buffer_load_dwordx4 {v(BF+8*slot+4,4)}, v{vL16}, s[{R_WS}:{R_WS+3}], s{g1} offen")
        a.e(f"s_add_u32 s{gw}, s{gw}, 16384", f"s_add_u32 s{g0}, s{g0}, 1024", f"s_add_u32 s{g1}, s{g1}, 1024")
    N = len(steps)
    for n in range(D): issue(n)
    ts(a, 2)
    for n in range(N):
        if n + D < N:
            issue(n + D)
            a.e(f"s_waitcnt vmcnt({4*D})")
        else:
            a.e(f"s_waitcnt vmcnt({4*(N-1-n)})")
        slot = n % NS
        st = n & 1
        b = AF + 8 * st
        a.e(f"ds_read_b64_tr_b16 {v(b,2)}, v{vWA0} offset:{slot*2048}", f"ds_read_b64_tr_b16 {v(b+2,2)}, v{vWA0} offset:{slot*2048+1024}",
            f"ds_read_b64_tr_b16 {v(b+4,2)}, v{vWA1} offset:{slot*2048}", f"ds_read_b64_tr_b16 {v(b+6,2)}, v{vWA1} offset:{slot*2048+1024}")
        a.e("s_waitcnt lgkmcnt(0)")
        for nt in range(2):
            for tt in range(2):
                ac = ACC + (nt * 2 + tt) * 16
                a.e(f"v_mfma_f32_32x32x16_bf16 {v(ac,16)}, {v(b+4*nt,4)}, {v(BF+8*slot+4*tt,4)}, {v(ac,16)}")
    ts(a, 3)
    a.nop(16)
    a.e("s_barrier")
    a.e(f"s_lshl_b32 s{sT0}, s{sW}, 14", f"v_add_u32 v2, s{sT0}, v{vL16}")
    for t in range(4):
        for q in range(4):
            a.e(f"ds_write_b128 v2, {v(ACC+16*t+4*q,4)} offset:{t*4096+q*1024}")
    a.e(f"v_and_b32 v4, 31, v{vLane}", "v_lshlrev_b32 v4, 10, v4", f"v_lshrrev_b32 v5, 5, v{vLane}", "v_lshlrev_b32 v5, 3, v5", "v_add_u32 v4, v4, v5")
    a.e(f"s_lshl_b32 s{sT0}, s{sTB64}, 16", f"s_and_b32 s{sT1}, s{sW}, 1", f"s_lshl_b32 s{sT1}, s{sT1}, 15", f"s_add_u32 s{sT0}, s{sT0}, s{sT1}",
        f"s_lshl_b32 s{sT1}, s{sNB}, 7", f"s_add_u32 s{sT0}, s{sT0}, s{sT1}", f"s_lshr_b32 s{sT1}, s{sW}, 1", f"s_lshl_b32 s{sT1}, s{sT1}, 6",
        f"s_add_u32 s{sT0}, s{sT0}, s{sT1}")
    XR = 16
    for q in range(4):
        a.e(f"buffer_load_dwordx2 {v(XR+2*q,2)}, v4, s[{R_X}:{R_X+3}], s{sT0} offen offset:{q*16}")
    a.e("s_waitcnt lgkmcnt(0)", "s_barrier")
    a.e(f"s_lshl_b32 s{sT1}, s{sW}, 12", f"v_add_u32 v2, s{sT1}, v{vL16}")
    RB = 64
    for wp in range(4):
        for q in range(4):
            a.e(f"ds_read_b128 {v(RB+16*wp+4*q,4)}, v2 offset:{wp*16384+q*1024}")
        a.e("s_waitcnt lgkmcnt(0)")
    for r in range(16):
        a.e(f"v_add_f32 v{RB+r}, v{RB+r}, v{RB+16+r}", f"v_add_f32 v{RB+32+r}, v{RB+32+r}, v{RB+48+r}")
    for r in range(16): a.e(f"v_add_f32 v{RB+r}, v{RB+r}, v{RB+32+r}")
    a.e("s_waitcnt vmcnt(0)")
    a.e(f"s_mov_b32 s{sT2}, 0xffff0000")
    for q in range(4):
        for d in range(2):
            r = XR + 2 * q + d
            a.e(f"v_lshlrev_b32 v5, 16, v{r}", f"v_and_b32 v6, s{sT2}, v{r}",
                f"v_add_f32 v{RB+4*q+2*d}, v{RB+4*q+2*d}, v5", f"v_add_f32 v{RB+4*q+2*d+1}, v{RB+4*q+2*d+1}, v6")
    for q in range(4):
        for d in range(2):
            a.e(f"v_cvt_pk_bf16_f32 v{XR+2*q+d}, v{RB+4*q+2*d}, v{RB+4*q+2*d+1}")
    for q in range(4):
        a.e(f"buffer_store_dwordx2 {v(XR+2*q,2)}, v4, s[{R_OUT}:{R_OUT+3}], s{sT0} offen offset:{q*16}")
    if INSTR:
        ts(a, 6); ts(a, 7, True)
        ts_dump(a, 2, 2, sW, R_WS)
    a.label("k3_end")
    a.e("s_endpgm")
    return name, 192, (256, K3_LDS, 256)

HEADER = open("cdna_kernels/" + NAME + ".s.ref").read().split("; Override launch geometry")[0]

def build(kernels, outpath):
    a = Asm()
    launches = []
    descs = []
    for g in kernels:
        name, nv, (grid, lds, block) = g(a)
        launches.append(f"; @launch kernel={name} grid=({grid},1,1) block=({block},1,1) lds={lds}")
        descs.append(kernel_desc(name, nv))
    body = a.text()
    probs = check_text(body)
    for p in probs: print("HAZARD:", p, file=sys.stderr)
    out = HEADER + "\n".join(launches) + "\n" + '.amdgcn_target "amdgcn-amd-amdhsa--gfx950"\n.text\n' + body + "".join(descs)
    open(outpath, "w").write(out)
    return out

if __name__ == "__main__":
    if len(sys.argv) > 1 and sys.argv[1] == "instr":
        INSTR = True
        build([gen_k1, gen_k2, gen_k3], "v1i.s")
        sys.exit(0)
    build([gen_k1, gen_k2, gen_k3], "v1.s")
```

```python
import sys
import gen
from gen import Asm, v, s, srd, kernel_header, kernel_desc, f2u, ts, ts_dump, gen_k1, check_text, HEADER
from gen import WS_XN, WS_Q, WS_O, WS_KF, WS_VF, WS_H, WS_SIZE

WS_OB = 16 << 20
MF = "v_mfma_f32_32x32x16_bf16"
KNOB = set()

class Sched:
    def __init__(self, a):
        self.a = a; self.vm = []; self.lg = []; self.inloop = False
    def vmem(self, ins, tag):
        if "nodma" in KNOB and " lds" in ins and self.inloop: return
        if "nokv" in KNOB and tag[0] in "KV" and self.inloop: return
        self.a.e(ins); self.vm.append(tag)
    def wait_vm(self, tags):
        if isinstance(tags, str): tags = [tags]
        idx = max([i for i, t in enumerate(self.vm) if t in tags], default=-1)
        if idx < 0: return
        n = len(self.vm) - 1 - idx
        assert n <= 63
        self.a.e(f"s_waitcnt vmcnt({n})"); self.vm = self.vm[idx + 1:]
    def lds(self, ins, tag):
        if "nods" in KNOB and self.inloop: return
        self.a.e(ins); self.lg.append(tag)
    def wait_lg(self, tags=None):
        if tags is None:
            if self.lg: self.a.e("s_waitcnt lgkmcnt(0)")
            self.lg = []; return
        if isinstance(tags, str): tags = [tags]
        idx = max([i for i, t in enumerate(self.lg) if t in tags], default=-1)
        if idx < 0: return
        n = len(self.lg) - 1 - idx
        assert n <= 15, n
        self.a.e(f"s_waitcnt lgkmcnt({n})"); self.lg = self.lg[idx + 1:]

vL16 = 1
Q, KF, VF, S, P, O = 8, 24, 32, 48, 80, 96
GA, GB, GACC = 160, 176, 192
R_WS = 28
RS = f"s[{R_WS}:{R_WS+3}]"
sW, sTB64, sHG, sT0, sT1, sT2, sK, sV, sQ = 32, 35, 36, 37, 38, 39, 43, 44, 46
NT = 32

class NoGemm:
    def prologue(self, a, sc): pass
    def first_reads(self, a, sc): pass
    def tile_start(self, a, sc, t): pass
    def mfmas(self, t): return []
    def after(self, a, sc, t, pos): pass
    def epilogue(self, a, sc): pass

class Ffn1:
    R = 4
    LW, LX = 0, 65536
    R_G, R_U = 16, 20
    vGo, vUo, vWA0, vWA1, vXB = 2, 3, 4, 5, 6
    sTP, sAP, sTB, sFS, sGK, sGX, sMW, sMX = 33, 34, 40, 41, 50, 51, 52, 53
    def prologue(self, a, sc):
        srd(a, self.R_G, 4, 512 * 3584); srd(a, self.R_U, 6, 512 * 3584)
        sTP, sAP, sTB, sFS = self.sTP, self.sAP, self.sTB, self.sFS
        a.e(f"s_and_b32 s{sT0}, s2, 7", f"s_lshr_b32 s{sT1}, s2, 3",
            f"s_mul_i32 s{sT2}, s{sT1}, 37", f"s_lshr_b32 s{sT2}, s{sT2}, 8",
            f"s_lshr_b32 s{sTB}, s{sT0}, 1", f"s_lshl_b32 s{sTB}, s{sTB}, 2", f"s_add_u32 s{sTB}, s{sTB}, s{sT2}",
            f"s_mul_i32 s{sT2}, s{sT2}, 7", f"s_sub_u32 s{sT1}, s{sT1}, s{sT2}",
            f"s_and_b32 s{sT0}, s{sT0}, 1", f"s_mul_i32 s{sT0}, s{sT0}, 7", f"s_add_u32 s{sFS}, s{sT0}, s{sT1}")
        a.e(f"s_and_b32 s{sTP}, s{sW}, 1", f"s_lshr_b32 s{sAP}, s{sW}, 1")
        a.e("v_lshrrev_b32 v4, 4, v7", "v_mul_u32_u24 v5, 3584, v4", "v_lshlrev_b32 v4, 1, v4", "v_and_b32 v6, 15, v7", "v_xor_b32 v6, v6, v4",
            "v_xor_b32 v0, 8, v6", "v_lshlrev_b32 v6, 4, v6", "v_lshlrev_b32 v0, 4, v0")
        a.e(f"s_lshl_b32 s{sT0}, s{sFS}, 8", f"v_add_u32 v5, s{sT0}, v5", f"v_add_u32 v{self.vGo}, v5, v6", f"v_add_u32 v{self.vUo}, v5, v0")
        a.e(f"s_mul_i32 s{self.sGK}, s{sW}, {4*3584}")
        a.e(f"s_lshl_b32 s{self.sGX}, s{sTB}, 2", f"s_add_u32 s{self.sGX}, s{self.sGX}, s{sAP}", f"s_lshl_b32 s{self.sGX}, s{self.sGX}, 15",
            f"s_lshl_b32 s{sT0}, s{sTP}, 10", f"s_add_u32 s{self.sGX}, s{self.sGX}, s{sT0}")
        if WS_XN: a.e(f"s_add_u32 s{self.sGX}, s{self.sGX}, {WS_XN}")
        a.e(f"s_lshl_b32 s{self.sMW}, s{sW}, 10", f"s_add_u32 s{self.sMX}, s{self.sMW}, {self.LX}")
        for st in range(self.R): self.dma(a, sc, st)
        a.e("v_and_b32 v4, 15, v7", "v_lshrrev_b32 v5, 2, v4", "v_lshrrev_b32 v6, 4, v7", "v_and_b32 v6, 1, v6",
            "v_lshrrev_b32 v0, 5, v7", "v_lshlrev_b32 v0, 3, v0", "v_add_u32 v0, v0, v5", "v_lshlrev_b32 v0, 8, v0",
            "v_lshlrev_b32 v4, 13, v6", "v_add_u32 v0, v0, v4",
            "v_lshlrev_b32 v6, 2, v6", "v_xor_b32 v5, v5, v6", "v_lshlrev_b32 v5, 5, v5", "v_add_u32 v0, v0, v5",
            "v_and_b32 v4, 3, v7", "v_lshlrev_b32 v4, 3, v4", "v_add_u32 v0, v0, v4")
        a.e(f"s_lshl_b32 s{sT0}, s{sAP}, 6", f"v_xor_b32 v{self.vWA0}, s{sT0}, v0", f"v_xor_b32 v{self.vWA1}, 32, v{self.vWA0}")
        a.e(f"s_lshl_b32 s{sT0}, s{sTP}, 12", f"s_add_u32 s{sT0}, s{sT0}, {self.LX}", f"v_add_u32 v{self.vXB}, s{sT0}, v{vL16}")
    def dma(self, a, sc, st):
        if st >= 16: return
        b = st % self.R
        a.e(f"s_add_u32 m0, s{self.sMW}, {b*16384}", f"s_add_u32 s{sT0}, s{self.sGK}, {st*32*3584}")
        sc.vmem(f"buffer_load_dwordx4 v{self.vGo}, s[{self.R_G}:{self.R_G+3}], s{sT0} offen lds", f"st{st}")
        a.e(f"s_add_u32 m0, s{self.sMW}, {b*16384+8192}", f"s_add_u32 s{sT1}, s{self.sGX}, {st*2048}")
        sc.vmem(f"buffer_load_dwordx4 v{self.vUo}, s[{self.R_U}:{self.R_U+3}], s{sT0} offen lds", f"st{st}")
        a.e(f"s_add_u32 m0, s{self.sMX}, {b*8192}", "s_nop 0")
        sc.vmem(f"buffer_load_dwordx4 v{vL16}, {RS}, s{sT1} offen lds", f"st{st}")
    def reads(self, a, sc, k):
        if k >= 32: return
        st, ks, bs = k // 2, k & 1, k & 1
        b = st % self.R
        for t in range(2):
            sc.lds(f"ds_read_b128 {v(GB+8*bs+4*t,4)}, v{self.vXB} offset:{b*8192+(t*2+ks)*1024}", f"k{k}")
        for q, ad in enumerate((self.vWA0, self.vWA1)):
            r = GA + 8 * bs + 4 * q
            sc.lds(f"ds_read_b64_tr_b16 {v(r,2)}, v{ad} offset:{b*16384+ks*4096}", f"k{k}")
            sc.lds(f"ds_read_b64_tr_b16 {v(r+2,2)}, v{ad} offset:{b*16384+ks*4096+1024}", f"k{k}")
    def first_reads(self, a, sc):
        sc.wait_vm("st0"); a.e("s_barrier")
        self.reads(a, sc, 0)
    def tile_start(self, a, sc, t):
        sc.wait_lg(f"k{t}")
        if t & 1 and t + 1 < 32:
            i = (t + 1) // 2
            sc.wait_vm(f"st{i}")
            if "nobar" not in KNOB: a.e("s_barrier")
    def mfmas(self, t):
        bs = t & 1
        out = []
        for q in range(2):
            for tt in range(2):
                ac = GACC + (q * 2 + tt) * 16
                c = "0" if t == 0 else v(ac, 16)
                out.append(f"{MF} {v(ac,16)}, {v(GA+8*bs+4*q,4)}, {v(GB+8*bs+4*tt,4)}, {c}")
        return out
    def after(self, a, sc, t, pos):
        if pos == 0: self.reads(a, sc, t + 1)
        if pos == 1 and (t & 1) and t + 1 < 32:
            self.dma(a, sc, (t + 1) // 2 + self.R - 1)
    def epilogue(self, a, sc):
        sTB, sTP, sFS, sAP = self.sTB, self.sTP, self.sFS, self.sAP
        a.e(f"s_lshl_b32 s{sT0}, s{sTB}, 2", f"s_lshl_b32 s{sT1}, s{sTP}, 1", f"s_add_u32 s{sT0}, s{sT0}, s{sT1}", f"s_mul_i32 s{sT0}, s{sT0}, {112*1024}",
            f"s_lshl_b32 s{sT1}, s{sFS}, 13", f"s_add_u32 s{sT0}, s{sT0}, s{sT1}", f"s_lshl_b32 s{sT1}, s{sAP}, 11", f"s_add_u32 s{sT0}, s{sT0}, s{sT1}",
            f"s_add_u32 s{sT0}, s{sT0}, {WS_H}", f"s_add_u32 s{sT1}, s{sT0}, {112*1024}")
        k = 0
        for q in range(2):
            for t in range(2):
                ac = GACC + (q * 2 + t) * 16
                for r in range(8): a.e(f"v_max_f32 v{ac+r}, 0, v{ac+r}")
                for r in range(8): a.e(f"v_mul_f32 v{ac+r}, v{ac+r}, v{ac+8+r}")
                pk = GA + 4 * k; k += 1
                for j in range(4): a.e(f"v_cvt_pk_bf16_f32 v{pk+j}, v{ac+2*j}, v{ac+2*j+1}")
                sc.vmem(f"buffer_store_dwordx4 {v(pk,4)}, v{vL16}, {RS}, s{sT1 if t else sT0} offen offset:{q*1024}", "hst")

class Ffn2:
    R = 4
    NK = 16
    R_D, R_O = 16, 20
    vWo, vWA0, vWA1, vBB = 2, 4, 5, 6
    sLB, sGWd, sGH, sGWo, sGO = 50, 51, 52, 53, 54
    START = 3
    def ktile(self, j): return self.START + (j * (NT - self.START)) // self.NK
    def prologue(self, a, sc):
        srd(a, self.R_D, 4, 1792 * 1024); srd(a, self.R_O, 6, 512 * 1024)
        a.e("v_lshrrev_b32 v4, 3, v7", "v_lshlrev_b32 v4, 10, v4", "v_lshrrev_b32 v5, 4, v7", "v_and_b32 v5, 1, v5", "v_lshlrev_b32 v5, 2, v5",
            "v_and_b32 v6, 7, v7", "v_xor_b32 v6, v6, v5", "v_lshlrev_b32 v6, 4, v6", f"v_add_u32 v{self.vWo}, v4, v6")
        a.e(f"s_lshl_b32 s{sT0}, s{sHG}, 7", f"v_add_u32 v{self.vWo}, s{sT0}, v{self.vWo}")
        a.e(f"s_lshl_b32 s{self.sLB}, s{sW}, 14")
        a.e(f"s_mul_i32 s{self.sGWd}, s{sW}, {14*16*1024}")
        a.e(f"s_mul_i32 s{self.sGH}, s{sTB64}, {2*112*1024}", f"s_mul_i32 s{sT0}, s{sW}, {14*1024}", f"s_add_u32 s{self.sGH}, s{self.sGH}, s{sT0}",
            f"s_add_u32 s{self.sGH}, s{self.sGH}, {WS_H}")
        a.e(f"s_lshl_b32 s{self.sGWo}, s{sW}, 16")
        a.e(f"s_lshl_b32 s{self.sGO}, s{sTB64}, 16", f"s_lshl_b32 s{sT0}, s{sW}, 12", f"s_add_u32 s{self.sGO}, s{self.sGO}, s{sT0}",
            f"s_add_u32 s{self.sGO}, s{self.sGO}, {WS_O}")
        for j in range(self.R): self.dma(a, sc, j)
        a.e("v_and_b32 v4, 15, v7", "v_lshrrev_b32 v5, 2, v4", "v_lshrrev_b32 v6, 5, v7", "v_lshlrev_b32 v6, 2, v6", "v_add_u32 v5, v5, v6",
            "v_lshlrev_b32 v5, 7, v5", "v_lshrrev_b32 v6, 3, v4", "v_lshlrev_b32 v6, 6, v6", "v_add_u32 v5, v5, v6",
            "v_lshrrev_b32 v6, 4, v7", "v_and_b32 v6, 1, v6", "v_lshlrev_b32 v6, 5, v6", "v_add_u32 v5, v5, v6",
            "v_and_b32 v6, 3, v7", "v_lshlrev_b32 v6, 3, v6", "v_add_u32 v5, v5, v6")
        a.e(f"v_add_u32 v{self.vWA0}, s{self.sLB}, v5", f"v_xor_b32 v{self.vWA1}, 64, v{self.vWA0}", f"v_add_u32 v{self.vBB}, s{self.sLB}, v{vL16}")
    def dma(self, a, sc, j):
        if j >= self.NK: return
        slot = j % self.R
        if j < 14:
            r, gw, gwo, gb, gbo, tstride = self.R_D, self.sGWd, j * 16384, self.sGH, j * 1024, 112 * 1024
        else:
            r, gw, gwo, gb, gbo, tstride = self.R_O, self.sGWo, (j - 14) * 16384, self.sGO, (j - 14) * 1024, 32768
        a.e(f"s_add_u32 m0, s{self.sLB}, {slot*4096}", f"s_add_u32 s{sT0}, s{gw}, {gwo}")
        sc.vmem(f"buffer_load_dwordx4 v{self.vWo}, s[{r}:{r+3}], s{sT0} offen lds", f"d{j}")
        a.e(f"s_add_u32 m0, s{self.sLB}, {slot*4096+1024}", f"s_add_u32 s{sT0}, s{sT0}, 8192")
        sc.vmem(f"buffer_load_dwordx4 v{self.vWo}, s[{r}:{r+3}], s{sT0} offen lds", f"d{j}")
        a.e(f"s_add_u32 m0, s{self.sLB}, {slot*4096+2048}", f"s_add_u32 s{sT0}, s{gb}, {gbo}")
        sc.vmem(f"buffer_load_dwordx4 v{vL16}, {RS}, s{sT0} offen lds", f"d{j}")
        a.e(f"s_add_u32 m0, s{self.sLB}, {slot*4096+3072}", f"s_add_u32 s{sT0}, s{sT0}, {tstride}")
        sc.vmem(f"buffer_load_dwordx4 v{vL16}, {RS}, s{sT0} offen lds", f"d{j}")
    def reads(self, a, sc, j):
        slot, bs = j % self.R, j & 1
        sc.wait_vm(f"d{j}")
        for t in range(2):
            sc.lds(f"ds_read_b128 {v(GB+8*bs+4*t,4)}, v{self.vBB} offset:{slot*4096+2048+t*1024}", f"k{j}")
        for q, ad in enumerate((self.vWA0, self.vWA1)):
            r = GA + 8 * bs + 4 * q
            sc.lds(f"ds_read_b64_tr_b16 {v(r,2)}, v{ad} offset:{slot*4096}", f"k{j}")
            sc.lds(f"ds_read_b64_tr_b16 {v(r+2,2)}, v{ad} offset:{slot*4096+1024}", f"k{j}")
    def first_reads(self, a, sc): pass
    def plan(self):
        m = {}
        for j in range(self.NK):
            t = self.ktile(j)
            t2 = min(t + 1, NT - 1)
            if j + 1 < self.NK and self.ktile(j + 1) <= t + 1 and False: t2 = t
            m.setdefault(t, []).append((j, 0)); m.setdefault(t2, []).append((j, 1))
        return m
    def tile_start(self, a, sc, t):
        for (j, nt) in self.plan().get(t, []):
            if nt == 0: sc.wait_lg(f"k{j}")
    def mfmas(self, t):
        out = []
        for (j, nt) in self.plan().get(t, []):
            bs = j & 1
            for tt in range(2):
                ac = GACC + (nt * 2 + tt) * 16
                c = "0" if j == 0 else v(ac, 16)
                out.append(f"{MF} {v(ac,16)}, {v(GA+8*bs+4*nt,4)}, {v(GB+8*bs+4*tt,4)}, {c}")
        return out
    def after(self, a, sc, t, pos):
        for j in range(self.NK):
            if self.ktile(j) - 1 == t and pos == 0:
                self.reads(a, sc, j)
            if self.ktile(j) == t and pos == 1:
                self.dma(a, sc, j + self.R)
    def epilogue(self, a, sc): pass

def attn_phase(a, sc, g, phase, pfx):
    a.e(f"s_lshl_b32 s{sQ}, s{sTB64}, 16", f"s_lshl_b32 s{sT0}, s{sHG}, 12", f"s_add_u32 s{sQ}, s{sQ}, s{sT0}")
    if phase: a.e(f"s_add_u32 s{sQ}, s{sQ}, 2048")
    a.e(f"s_add_u32 s{sT0}, s{sQ}, {WS_Q}", f"s_add_u32 s{sT1}, s{sT0}, 32768")
    a.e(f"s_lshl_b32 s{sK}, s{sW}, 13", f"s_add_u32 s{sK}, s{sK}, {WS_KF}", f"s_lshl_b32 s{sV}, s{sW}, 14", f"s_add_u32 s{sV}, s{sV}, {WS_VF}")
    def loadK(kt):
        if kt >= 8: return
        sc.vmem(f"buffer_load_dwordx4 {v(KF+4*(kt&1),4)}, v{vL16}, {RS}, s{sK} offen offset:{(kt&3)*1024}", f"K{kt}")
    def loadV(kt):
        if kt >= 8: return
        for h in range(2):
            sc.vmem(f"buffer_load_dwordx4 {v(VF+8*(kt&1)+4*h,4)}, v{vL16}, {RS}, s{sV} offen offset:{(kt&1)*2048+h*1024}", f"V{kt}")
    loadK(0)
    for c in range(4):
        sc.vmem(f"buffer_load_dwordx4 {v(Q+4*c,4)}, v{vL16}, {RS}, s{sT1 if c & 1 else sT0} offen offset:{(c>>1)*1024}", f"Q{c}")
    loadV(0); loadK(1)
    g.prologue(a, sc)
    sc.wait_vm(["K0", "Q0"])
    a.e(f"{MF} {v(S,16)}, {v(KF,4)}, {v(Q,4)}, 0")
    g.first_reads(a, sc)
    sc.wait_vm(["Q3"])
    a.nop(12)
    ts(a, 2)
    a.raw(".p2align 3")
    sc.inloop = True
    for t in range(NT):
        kt, c = t // 4, t & 3
        Sin, Sout = S + 16 * (t & 1), S + 16 * ((t + 1) & 1)
        Pcur, Pprev = P + 8 * (t & 1), P + 8 * ((t + 1) & 1)
        g.tile_start(a, sc, t)
        nt = t + 1
        if nt < NT and (nt & 3) == 0: sc.wait_vm(f"K{nt//4}")
        pt = t - 1
        if pt >= 0 and (pt & 3) == 0: sc.wait_vm(f"V{pt//4}")
        Sm = f"{MF} {v(Sout,16)}, {v(KF+4*((nt//4)&1),4)}, {v(Q+4*(nt&3),4)}, 0" if nt < NT else None
        PV1 = PV2 = None
        if pt >= 0:
            Op = O + 16 * (pt & 3); vb = VF + 8 * ((pt // 4) & 1)
            c0 = "0" if pt < 4 else v(Op, 16)
            PV1 = f"{MF} {v(Op,16)}, {v(vb,4)}, {v(Pprev,4)}, {c0}"
            PV2 = f"{MF} {v(Op,16)}, {v(vb+4,4)}, {v(Pprev+4,4)}, {v(Op,16)}"
        gm = g.mfmas(t)
        if "nogm" in KNOB: gm = []
        assert len(gm) <= 4
        gm = gm + [None] * (4 - len(gm))
        e = lambda i: a.e(f"v_exp_f32 v{Sin+i}, v{Sin+i}")
        cv = lambda j: a.e(f"v_cvt_pk_bf16_f32 v{Pcur+j}, v{Sin+2*j}, v{Sin+2*j+1}")
        def M(x):
            if x: a.e(x)
        e(0); e(1); M(Sm)
        g.after(a, sc, t, 0)
        e(2); e(3); cv(0); M(PV1); e(4); e(5); cv(1); M(gm[0])
        g.after(a, sc, t, 1)
        if c == 3:
            if ((kt + 2) & 3) == 0 and kt + 2 < 8: a.e(f"s_add_u32 s{sK}, s{sK}, 4096")
            loadK(kt + 2)
        if c == 1:
            if ((kt + 1) & 1) == 0 and kt + 1 < 8: a.e(f"s_add_u32 s{sV}, s{sV}, 4096")
            loadV(kt + 1)
        e(6); e(7); cv(2); M(gm[1]); e(8); e(9); cv(3); e(10); e(11); M(PV2); cv(4); e(12); e(13); cv(5); M(gm[2]); e(14); e(15); cv(6); cv(7); M(gm[3])
    sc.inloop = False
    ts(a, 3)
    pt = NT - 1
    Op = O + 16 * 3; vb = VF + 8 * 1; Pp = P + 8 * (pt & 1)
    a.nop(2)
    a.e(f"{MF} {v(Op,16)}, {v(vb,4)}, {v(Pp,4)}, {v(Op,16)}", f"{MF} {v(Op,16)}, {v(vb+4,4)}, {v(Pp+4,4)}, {v(Op,16)}")

def attn_reduce(a, sc, lbase):
    a.e(f"s_mul_i32 s{sT0}, s{sW}, {4*2304}")
    if lbase: a.e(f"s_add_u32 s{sT0}, s{sT0}, {lbase}")
    a.e(f"v_add_u32 v2, s{sT0}, v{vL16}", f"v_lshrrev_b32 v3, 2, v{vL16}", f"v_add_u32 v3, s{sT0}, v3")
    for c in range(4):
        a.e(f"ds_write_b128 v2, {v(O+16*c,4)} offset:{c*2304}", f"ds_write_b128 v2, {v(O+16*c+4,4)} offset:{c*2304+1024}",
            f"ds_write_b32 v3, v{O+16*c+8} offset:{c*2304+2048}")
    a.e("s_waitcnt lgkmcnt(0)", "s_barrier")
    a.e(f"s_lshr_b32 s{sT1}, s{sW}, 1", f"s_mul_i32 s{sT0}, s{sT1}, 2304")
    if lbase: a.e(f"s_add_u32 s{sT0}, s{sT0}, {lbase}")
    a.e(f"v_lshrrev_b32 v3, 2, v{vL16}", f"v_add_u32 v3, s{sT0}, v3", "v_add_u32 v3, 2048, v3")
    a.e(f"s_and_b32 s{sT2}, s{sW}, 1", f"s_lshl_b32 s{sT2}, s{sT2}, 10", f"s_add_u32 s{sT0}, s{sT0}, s{sT2}", f"v_add_u32 v2, s{sT0}, v{vL16}")
    RB = S
    for wp in range(8):
        a.e(f"ds_read_b128 {v(RB+4*wp,4)}, v2 offset:{wp*4*2304}")
        if wp == 6: a.e("s_waitcnt lgkmcnt(4)")
    for wp in range(8):
        a.e(f"ds_read_b32 v{RB+32+wp}, v3 offset:{wp*4*2304}")
    a.e("s_waitcnt lgkmcnt(0)")
    for st in (4, 2, 1):
        for wp in range(st):
            for r in range(4): a.e(f"v_add_f32 v{RB+4*wp+r}, v{RB+4*wp+r}, v{RB+4*(wp+st)+r}")
            a.e(f"v_add_f32 v{RB+32+wp}, v{RB+32+wp}, v{RB+32+wp+st}")
    a.e(f"v_rcp_f32 v{RB+33}, v{RB+32}", "s_nop 0")
    for r in range(4): a.e(f"v_mul_f32 v{RB+r}, v{RB+r}, v{RB+33}")
    a.e(f"v_cvt_pk_bf16_f32 v{RB+4}, v{RB}, v{RB+1}", f"v_cvt_pk_bf16_f32 v{RB+5}, v{RB+2}, v{RB+3}")
    a.e(f"s_and_b32 s{sT0}, s{sT1}, 1", f"s_lshl_b32 s{sT0}, s{sT0}, 15", f"s_lshr_b32 s{sT1}, s{sT1}, 1", f"s_lshl_b32 s{sT1}, s{sT1}, 10",
        f"s_add_u32 s{sT0}, s{sT0}, s{sT1}", f"s_add_u32 s{sT0}, s{sT0}, s{sQ}", f"s_add_u32 s{sT0}, s{sT0}, {WS_O}",
        f"s_lshr_b32 s{sT2}, s{sT2}, 7", f"s_add_u32 s{sT0}, s{sT0}, s{sT2}")
    sc.vmem(f"buffer_store_dwordx2 {v(RB+4,2)}, v{vL16}, {RS}, s{sT0} offen", "ost")

def common_pro(a, ptr_loads):
    ts(a, 0, True); ts(a, 1)
    a.e("s_load_dwordx2 s[12:13], s[0:1], 88", *ptr_loads)
    a.e("v_lshrrev_b32 v2, 6, v0", "v_and_b32 v7, 63, v0")
    a.e(f"s_and_b32 s{sT0}, s2, 7", f"s_lshl_b32 s{sT0}, s{sT0}, 2", f"s_lshr_b32 s{sT1}, s2, 3", f"s_and_b32 s{sT1}, s{sT1}, 3",
        f"s_add_u32 s{sTB64}, s{sT0}, s{sT1}", f"s_lshr_b32 s{sHG}, s2, 5")
    a.e(f"v_readfirstlane_b32 s{sW}, v2", f"v_lshlrev_b32 v{vL16}, 4, v7")
    a.e("s_waitcnt lgkmcnt(0)")
    srd(a, R_WS, 12, WS_SIZE)

def dump8(a, kidx):
    if not gen.INSTR: return
    ts(a, 6); ts(a, 7, True)
    a.e("s_waitcnt lgkmcnt(0)")
    a.e(f"s_lshl_b32 s78, s2, 3", f"s_add_u32 s78, s78, s{sW}", "s_lshl_b32 s78, s78, 6", f"s_add_u32 s78, s78, {gen.WS_TS + kidx * (1 << 20)}")
    a.e("s_mov_b64 exec, 1", "v_mov_b32 v2, 0")
    for i in range(8):
        a.e(f"v_mov_b32 v3, s{80+2*i}", f"buffer_store_dword v3, v2, {RS}, s78 offen offset:{4*i}", "s_nop 1")
    a.e("s_mov_b64 exec, -1")

K2A_LDS = 98304
def gen_k2a(a):
    name = "k2a_kernel"
    kernel_header(a, name)
    a.e("s_cmp_ge_u32 s2, 256", "s_cbranch_scc1 k2a_end")
    common_pro(a, ["s_load_dwordx4 s[4:7], s[0:1], 48"])
    a.e("s_cmp_ge_u32 s2, 224", "s_cbranch_scc1 k2a_nog")
    for variant in (0, 1):
        if variant: a.label("k2a_nog")
        sc = Sched(a)
        g = Ffn1() if variant == 0 else NoGemm()
        attn_phase(a, sc, g, 0, f"k2a{variant}")
        a.nop(12)
        g.epilogue(a, sc)
        ts(a, 4)
        a.e("s_barrier")
        attn_reduce(a, sc, 0)
        dump8(a, 1)
        a.e("s_endpgm")
    a.label("k2a_end")
    a.e("s_endpgm")
    return name, 256, (256, K2A_LDS, 512)

K2B_LDS = 131072
def gen_k2b(a):
    name = "k2b_kernel"
    kernel_header(a, name)
    a.e("s_cmp_ge_u32 s2, 256", "s_cbranch_scc1 k2b_end")
    common_pro(a, ["s_load_dwordx2 s[4:5], s[0:1], 64", "s_load_dwordx2 s[6:7], s[0:1], 32", "s_load_dwordx2 s[8:9], s[0:1], 0"])
    srd(a, 24, 8, 2048 * 1024)
    sc = Sched(a)
    g = Ffn2()
    attn_phase(a, sc, g, 1, "k2b")
    a.nop(12)
    ts(a, 4)
    a.e("s_barrier")
    attn_reduce(a, sc, 0)
    a.e("s_barrier")
    a.e(f"s_lshl_b32 s{sT0}, s{sW}, 14", f"v_add_u32 v2, s{sT0}, v{vL16}")
    for t in range(4):
        for q in range(4):
            a.e(f"ds_write_b128 v2, {v(GACC+16*t+4*q,4)} offset:{t*4096+q*1024}")
    a.e(f"v_and_b32 v4, 31, v7", "v_lshlrev_b32 v4, 10, v4", f"v_lshrrev_b32 v5, 5, v7", "v_lshlrev_b32 v5, 3, v5", "v_add_u32 v4, v4, v5")
    a.e(f"s_lshl_b32 s{sT0}, s{sTB64}, 16", f"s_lshr_b32 s{sT1}, s{sW}, 1", f"s_and_b32 s{sT1}, s{sT1}, 1", f"s_lshl_b32 s{sT1}, s{sT1}, 15", f"s_add_u32 s{sT0}, s{sT0}, s{sT1}",
        f"s_lshl_b32 s{sT1}, s{sHG}, 7", f"s_add_u32 s{sT0}, s{sT0}, s{sT1}", f"s_lshr_b32 s{sT1}, s{sW}, 2", f"s_lshl_b32 s{sT1}, s{sT1}, 6",
        f"s_add_u32 s{sT0}, s{sT0}, s{sT1}", f"s_and_b32 s{sT1}, s{sW}, 1", f"s_lshl_b32 s{sT1}, s{sT1}, 5", f"s_add_u32 s{sT0}, s{sT0}, s{sT1}")
    XR = Q
    for q in range(2):
        a.e(f"buffer_load_dwordx2 {v(XR+2*q,2)}, v4, s[24:27], s{sT0} offen offset:{q*16}")
    a.e("s_waitcnt lgkmcnt(0)", "s_barrier")
    a.e(f"s_lshr_b32 s{sT1}, s{sW}, 1", f"s_lshl_b32 s{sT1}, s{sT1}, 12", f"s_and_b32 s{sT2}, s{sW}, 1", f"s_lshl_b32 s{sT2}, s{sT2}, 11",
        f"s_add_u32 s{sT1}, s{sT1}, s{sT2}", f"v_add_u32 v2, s{sT1}, v{vL16}")
    a.e("v_add_u32 v3, 65536, v2")
    RB = O
    for wp in range(8):
        for q in range(2):
            ad = "v2" if wp < 4 else "v3"
            a.e(f"ds_read_b128 {v(RB+8*wp+4*q,4)}, {ad} offset:{(wp&3)*16384+q*1024}")
        if wp in (3, 6): a.e("s_waitcnt lgkmcnt(0)")
    a.e("s_waitcnt lgkmcnt(0)")
    for st in (4, 2, 1):
        for wp in range(st):
            for r in range(8): a.e(f"v_add_f32 v{RB+8*wp+r}, v{RB+8*wp+r}, v{RB+8*(wp+st)+r}")
    a.e("s_waitcnt vmcnt(0)")
    a.e(f"s_mov_b32 s{sT2}, 0xffff0000")
    for q in range(2):
        for d in range(2):
            r = XR + 2 * q + d
            a.e(f"v_lshlrev_b32 v5, 16, v{r}", f"v_and_b32 v6, s{sT2}, v{r}",
                f"v_add_f32 v{RB+4*q+2*d}, v{RB+4*q+2*d}, v5", f"v_add_f32 v{RB+4*q+2*d+1}, v{RB+4*q+2*d+1}, v6")
    a.e(f"s_lshl_b32 s{sT0}, s2, 14", f"s_add_u32 s{sT0}, s{sT0}, s{sT1}", f"s_add_u32 s{sT0}, s{sT0}, {WS_OB}")
    for q in range(2):
        a.e(f"buffer_store_dwordx4 {v(RB+4*q,4)}, v{vL16}, {RS}, s{sT0} offen offset:{q*1024}")
    dump8(a, 2)
    a.label("k2b_end")
    a.e("s_endpgm")
    return name, 256, (256, K2B_LDS, 512)

K3_LDS = 32768
def gen_k3b(a):
    name = "k3_kernel"
    kernel_header(a, name)
    R_O, R_OUT = 20, 52
    a.e("s_cmp_ge_u32 s2, 256", "s_cbranch_scc1 k3_end")
    common_pro(a, ["s_load_dwordx2 s[6:7], s[0:1], 32", "s_load_dwordx2 s[10:11], s[0:1], 72"])
    srd(a, R_O, 6, 512 * 1024); srd(a, R_OUT, 10, 2048 * 1024)
    vWo, vWA = 2, 4
    a.e("v_lshrrev_b32 v4, 3, v7", "v_lshlrev_b32 v4, 10, v4", "v_lshrrev_b32 v5, 4, v7", "v_and_b32 v5, 1, v5", "v_lshlrev_b32 v5, 2, v5",
        "v_and_b32 v6, 7, v7", "v_xor_b32 v6, v6, v5", "v_lshlrev_b32 v6, 4, v6", f"v_add_u32 v{vWo}, v4, v6")
    a.e(f"s_lshl_b32 s{sT0}, s{sHG}, 7", f"v_add_u32 v{vWo}, s{sT0}, v{vWo}")
    a.e(f"s_lshl_b32 s40, s{sW}, 17", f"s_lshl_b32 s41, s{sW}, 13")
    for jj in range(4):
        head_off = (4 * (jj >> 1) + 2 + (jj & 1)) * 16 * 1024
        for hh in range(2):
            a.e(f"s_add_u32 m0, s41, {jj*2048+hh*1024}", f"s_add_u32 s{sT0}, s40, {head_off+hh*8192}")
            a.e(f"buffer_load_dwordx4 v{vWo}, s[{R_O}:{R_O+3}], s{sT0} offen lds")
    BF = 64
    a.e(f"s_and_b32 s{sT1}, s{sW}, 1", f"s_lshl_b32 s{sT1}, s{sT1}, 15", f"s_lshl_b32 s{sT0}, s{sTB64}, 16", f"s_add_u32 s{sT0}, s{sT0}, s{sT1}",
        f"s_add_u32 s{sT0}, s{sT0}, {WS_O}")
    for j in range(16):
        head = 4 * (j >> 1) + 2 + (j & 1)
        if j % 2 == 0:
            a.e(f"s_add_u32 s{sT1}, s{sT0}, {(head // 4) * 4096}")
        a.e(f"buffer_load_dwordx4 {v(BF+4*j,4)}, v{vL16}, {RS}, s{sT1} offen offset:{(head % 4)*1024}")
    ACC = 16
    a.e(f"s_lshl_b32 s{sT0}, s2, 14", f"s_lshl_b32 s{sT1}, s{sW}, 12", f"s_add_u32 s{sT0}, s{sT0}, s{sT1}", f"s_add_u32 s{sT0}, s{sT0}, {WS_OB}")
    for q in range(4):
        a.e(f"buffer_load_dwordx4 {v(ACC+4*q,4)}, v{vL16}, {RS}, s{sT0} offen offset:{q*1024}")
    a.e("v_and_b32 v4, 15, v7", "v_lshrrev_b32 v5, 2, v4", "v_lshrrev_b32 v6, 5, v7", "v_lshlrev_b32 v6, 2, v6", "v_add_u32 v5, v5, v6",
        "v_lshlrev_b32 v5, 7, v5", "v_lshrrev_b32 v6, 3, v4", "v_lshlrev_b32 v6, 6, v6", "v_add_u32 v5, v5, v6",
        "v_lshrrev_b32 v6, 4, v7", "v_and_b32 v6, 1, v6", "v_lshlrev_b32 v6, 5, v6", "v_add_u32 v5, v5, v6",
        "v_and_b32 v6, 3, v7", "v_lshlrev_b32 v6, 3, v6", "v_add_u32 v5, v5, v6")
    a.e(f"s_lshr_b32 s{sT1}, s{sW}, 1", f"s_lshl_b32 s{sT1}, s{sT1}, 6", f"v_xor_b32 v{vWA}, s{sT1}, v5")
    a.e("s_waitcnt vmcnt(0)", "s_barrier")
    AF = 32
    for j in range(16):
        b = AF + 4 * (j % 8)
        a.e(f"ds_read_b64_tr_b16 {v(b,2)}, v{vWA} offset:{j*2048}", f"ds_read_b64_tr_b16 {v(b+2,2)}, v{vWA} offset:{j*2048+1024}")
        if j == 6: a.e("s_waitcnt lgkmcnt(6)")
        if j >= 7 or j == 15:
            pass
        if j == 7:
            a.e("s_waitcnt lgkmcnt(0)")
            for jj in range(8): a.e(f"{MF} {v(ACC,16)}, {v(AF+4*jj,4)}, {v(BF+4*jj,4)}, {v(ACC,16)}")
    a.e("s_waitcnt lgkmcnt(0)")
    for jj in range(8): a.e(f"{MF} {v(ACC,16)}, {v(AF+4*jj,4)}, {v(BF+4*(8+jj),4)}, {v(ACC,16)}")
    a.nop(14)
    a.e(f"v_and_b32 v4, 31, v7", "v_lshlrev_b32 v4, 10, v4", f"v_lshrrev_b32 v5, 5, v7", "v_lshlrev_b32 v5, 3, v5", "v_add_u32 v4, v4, v5")
    a.e(f"s_lshl_b32 s{sT0}, s{sTB64}, 16", f"s_and_b32 s{sT1}, s{sW}, 1", f"s_lshl_b32 s{sT1}, s{sT1}, 15", f"s_add_u32 s{sT0}, s{sT0}, s{sT1}",
        f"s_lshl_b32 s{sT1}, s{sHG}, 7", f"s_add_u32 s{sT0}, s{sT0}, s{sT1}", f"s_lshr_b32 s{sT1}, s{sW}, 1", f"s_lshl_b32 s{sT1}, s{sT1}, 6",
        f"s_add_u32 s{sT0}, s{sT0}, s{sT1}")
    for q in range(4):
        for d in range(2):
            a.e(f"v_cvt_pk_bf16_f32 v{32+2*q+d}, v{ACC+4*q+2*d}, v{ACC+4*q+2*d+1}")
    for q in range(4):
        a.e(f"buffer_store_dwordx2 {v(32+2*q,2)}, v4, s[{R_OUT}:{R_OUT+3}], s{sT0} offen offset:{q*16}")
    if gen.INSTR:
        ts(a, 6); ts(a, 7, True)
        ts_dump(a, 3, 2, sW, R_WS)
    a.label("k3_end")
    a.e("s_endpgm")
    return name, 128, (256, K3_LDS, 256)

if __name__ == "__main__":
    if len(sys.argv) > 1 and sys.argv[1] == "instr":
        gen.INSTR = True
        for k in sys.argv[3:]: KNOB.add(k)
        gen.build([gen_k1, gen_k2a, gen_k2b, gen_k3b], sys.argv[2] if len(sys.argv) > 2 else "v2i.s")
    else:
        gen.build([gen_k1, gen_k2a, gen_k2b, gen_k3b], "v2.s")
```

```python
import sys
import gen
from gen import Asm, v, s, srd, kernel_header, kernel_desc, f2u, ts, ts_dump, gen_k1, check_text, HEADER
from gen import WS_XN, WS_Q, WS_O, WS_KF, WS_VF, WS_H, WS_SIZE
from gen2 import Sched, MF, KNOB, WS_OB
import gen2

vL16 = 1
Q, KF, VF, S, P, O = 8, 24, 32, 48, 80, 96
GA, GB, GACC = 160, 176, 192
R_WS = 28
RS = f"s[{R_WS}:{R_WS+3}]"
sW, sTB64, sHG, sT0, sT1, sT2, sK, sV, sQ, sKQ, sCH = 32, 35, 36, 37, 38, 39, 43, 44, 46, 47, 48
NT = 64
NKT = 16

class Stream:
    def __init__(self): self.items = []
    def add(self, kind, x, tile, dl=None): self.items.append((kind, x, tile, dl))

class Ffn2:
    R = 4
    NK = 14
    R_D = 16
    vWo, vWo2, vWA0, vWA1, vBB, vB2 = 2, 3, 4, 5, 6, 7
    sLB, sGW, sGB = 50, 51, 52
    T0 = 8
    STEP = 4
    def tj(self, j): return self.T0 + self.STEP * j
    def setup_items(self):
        pass
    def prologue(self, a, sc):
        srd(a, self.R_D, 4, 1792 * 1024)
        L = "v0"
        a.e(f"v_lshrrev_b32 v4, 3, {L}", "v_lshlrev_b32 v4, 10, v4", f"v_lshrrev_b32 v5, 4, {L}", "v_and_b32 v5, 1, v5", "v_lshlrev_b32 v5, 2, v5",
            f"v_and_b32 v6, 7, {L}", "v_xor_b32 v6, v6, v5", "v_lshlrev_b32 v6, 4, v6", f"v_add_u32 v{self.vWo}, v4, v6")
        a.e(f"s_lshl_b32 s{sT0}, s{sHG}, 7", f"v_add_u32 v{self.vWo}, s{sT0}, v{self.vWo}", f"v_add_u32 v{self.vWo2}, {8192-1024}, v{self.vWo}")
        a.e(f"v_add_u32 v{self.vB2}, {112*1024-1024}, v{vL16}")
        a.e(f"s_lshl_b32 s{self.sLB}, s{sW}, 14")
        a.e(f"s_mul_i32 s{self.sGW}, s{sW}, {14*16*1024}")
        a.e(f"s_mul_i32 s{self.sGB}, s{sTB64}, {2*112*1024}", f"s_mul_i32 s{sT0}, s{sW}, {14*1024}", f"s_add_u32 s{self.sGB}, s{self.sGB}, s{sT0}",
            f"s_add_u32 s{self.sGB}, s{self.sGB}, {WS_H - 2048}")
        a.e(f"v_and_b32 v4, 15, {L}", "v_lshrrev_b32 v5, 2, v4", f"v_lshrrev_b32 v6, 5, {L}", "v_lshlrev_b32 v6, 2, v6", "v_add_u32 v5, v5, v6",
            "v_lshlrev_b32 v5, 7, v5", "v_lshrrev_b32 v6, 3, v4", "v_lshlrev_b32 v6, 6, v6", "v_add_u32 v5, v5, v6",
            f"v_lshrrev_b32 v6, 4, {L}", "v_and_b32 v6, 1, v6", "v_lshlrev_b32 v6, 5, v6", "v_add_u32 v5, v5, v6",
            f"v_and_b32 v6, 3, {L}", "v_lshlrev_b32 v6, 3, v6", "v_add_u32 v5, v5, v6")
        a.e(f"v_add_u32 v{self.vWA0}, s{self.sLB}, v5", f"v_xor_b32 v{self.vWA1}, 64, v{self.vWA0}", f"v_add_u32 v{self.vBB}, s{self.sLB}, v{vL16}")
    def dma_items(self, st, sc, j, tile):
        if j >= self.NK: return
        slot = j % self.R
        r = self.R_D
        st.add('s', f"s_add_u32 m0, s{self.sLB}, {slot*4096}", tile)
        st.add('v', lambda: sc.vmem(f"buffer_load_dwordx4 v{self.vWo}, s[{r}:{r+3}], s{self.sGW} offen lds", f"d{j}"), tile)
        st.add('v', lambda: sc.vmem(f"buffer_load_dwordx4 v{self.vWo2}, s[{r}:{r+3}], s{self.sGW} offen offset:1024 lds", f"d{j}"), tile)
        st.add('v', lambda: sc.vmem(f"buffer_load_dwordx4 v{vL16}, {RS}, s{self.sGB} offen offset:2048 lds", f"d{j}"), tile)
        st.add('v', lambda: sc.vmem(f"buffer_load_dwordx4 v{self.vB2}, {RS}, s{self.sGB} offen offset:3072 lds", f"d{j}"), tile)
        st.add('s', f"s_add_u32 s{self.sGW}, s{self.sGW}, 16384", tile)
        st.add('s', f"s_add_u32 s{self.sGB}, s{self.sGB}, 1024", tile)
    def read_items(self, st, sc, j, tile):
        slot, bs = j % self.R, j & 1
        st.add('w', lambda: sc.wait_vm(f"d{j}"), tile)
        for t in range(2):
            st.add('v', (lambda t=t: sc.lds(f"ds_read_b128 {v(GB+8*bs+4*t,4)}, v{self.vBB} offset:{slot*4096+2048+t*1024}", f"k{j}")), tile, self.tj(j))
        for q, ad in enumerate((self.vWA0, self.vWA1)):
            r = GA + 8 * bs + 4 * q
            st.add('v', (lambda r=r, ad=ad: sc.lds(f"ds_read_b64_tr_b16 {v(r,2)}, v{ad} offset:{slot*4096}", f"k{j}")), tile, self.tj(j))
            st.add('v', (lambda r=r, ad=ad: sc.lds(f"ds_read_b64_tr_b16 {v(r+2,2)}, v{ad} offset:{slot*4096+1024}", f"k{j}")), tile, self.tj(j))
    def build(self, sc):
        nonm = {t: [] for t in range(NT)}; gm = {}; pre = {t: [] for t in range(NT)}
        st = Stream()
        for j in range(self.R): self.dma_items(st, sc, j, j)
        for j in range(self.NK):
            t = self.tj(j)
            self.read_items(st, sc, j, t - 2)
            if j + self.R < self.NK + 0: self.dma_items(st, sc, j + self.R, t)
            bs = j & 1
            pre[t].append(lambda j=j: sc.wait_lg(f"k{j}"))
            i = 0
            for nt in range(2):
                for tt in range(2):
                    ac = GACC + (nt * 2 + tt) * 16
                    c = "0" if j == 0 else v(ac, 16)
                    gm[t + i] = f"{MF} {v(ac,16)}, {v(GA+8*bs+4*nt,4)}, {v(GB+8*bs+4*tt,4)}, {c}"
                    i += 1
        items = sorted(st.items, key=lambda x: x[2])
        cap = 3
        cur = 0; cnt = 0
        for kind, x, tile, dl in items:
            if tile > cur: cur = tile; cnt = 0
            if kind == 'v':
                if cnt >= cap: cur += 1; cnt = 0
                cnt += 1
            assert dl is None or cur < dl, (cur, dl)
            nonm[cur].append((kind, x))
        return nonm, gm, pre

def attn_main(a, sc, g):
    a.e(f"s_and_b32 s{sKQ}, s{sW}, 3", f"s_lshr_b32 s{sCH}, s{sW}, 2")
    a.e(f"s_lshl_b32 s{sQ}, s{sTB64}, 16", f"s_lshl_b32 s{sT0}, s{sHG}, 12", f"s_add_u32 s{sQ}, s{sQ}, s{sT0}")
    a.e(f"s_lshl_b32 s{sT0}, s{sCH}, 11", f"s_add_u32 s{sT0}, s{sT0}, s{sQ}", f"s_add_u32 s{sT0}, s{sT0}, {WS_Q}", f"s_add_u32 s{sT1}, s{sT0}, 32768")
    a.e(f"s_lshl_b32 s{sK}, s{sKQ}, 14", f"s_add_u32 s{sK}, s{sK}, {WS_KF}", f"s_lshl_b32 s{sV}, s{sKQ}, 15", f"s_add_u32 s{sV}, s{sV}, {WS_VF}")
    def loadK(kt):
        if kt >= NKT: return
        sc.vmem(f"buffer_load_dwordx4 {v(KF+4*(kt&1),4)}, v{vL16}, {RS}, s{sK} offen offset:{(kt&3)*1024}", f"K{kt}")
    def loadV(kt, h):
        if kt >= NKT: return
        sc.vmem(f"buffer_load_dwordx4 {v(VF+8*(kt&1)+4*h,4)}, v{vL16}, {RS}, s{sV} offen offset:{(kt&1)*2048+h*1024}", f"V{kt}")
    loadK(0)
    for c in range(4):
        sc.vmem(f"buffer_load_dwordx4 {v(Q+4*c,4)}, v{vL16}, {RS}, s{sT1 if c & 1 else sT0} offen offset:{(c>>1)*1024}", f"Q{c}")
    loadV(0, 0); loadV(0, 1); loadK(1)
    g.prologue(a, sc)
    nonm, gm, pre = g.build(sc)
    sc.wait_vm(["K0", "Q0"])
    a.e(f"{MF} {v(S,16)}, {v(KF,4)}, {v(Q,4)}, 0")
    sc.wait_vm(["Q3"])
    a.nop(12)
    ts(a, 2)
    a.raw(".p2align 3")
    sc.inloop = True
    for t in range(NT):
        kt, c = t // 4, t & 3
        Sin, Sout = S + 16 * (t & 1), S + 16 * ((t + 1) & 1)
        Pcur, Pprev = P + 8 * (t & 1), P + 8 * ((t + 1) & 1)
        q = list(nonm[t])
        if c == 3 and kt + 2 < NKT:
            if ((kt + 2) & 3) == 0: q.append(('s', f"s_add_u32 s{sK}, s{sK}, 4096"))
            q.append(('v', lambda kt=kt: loadK(kt + 2)))
        if c == 1 and kt + 1 < NKT:
            if ((kt + 1) & 1) == 0: q.append(('s', f"s_add_u32 s{sV}, s{sV}, 4096"))
            q.append(('v', lambda kt=kt: loadV(kt + 1, 0))); q.append(('v', lambda kt=kt: loadV(kt + 1, 1)))
        for f in pre[t]: f()
        nt = t + 1; pt = t - 1
        if pt >= 0 and (pt & 3) == 0: sc.wait_vm(f"V{pt//4}")
        if nt < NT and (nt & 3) == 0: sc.wait_vm(f"K{nt//4}")
        Sm = f"{MF} {v(Sout,16)}, {v(KF+4*((nt//4)&1),4)}, {v(Q+4*(nt&3),4)}, 0" if nt < NT else None
        PV1 = PV2 = None
        if pt >= 0:
            Op = O + 16 * (pt & 3); vb = VF + 8 * ((pt // 4) & 1)
            c0 = "0" if pt < 4 else v(Op, 16)
            PV1 = f"{MF} {v(Op,16)}, {v(vb,4)}, {v(Pprev,4)}, {c0}"
            PV2 = f"{MF} {v(Op,16)}, {v(vb+4,4)}, {v(Pprev+4,4)}, {v(Op,16)}"
        G = gm.get(t)
        if "nogm" in KNOB: G = None
        e = lambda i: a.e(f"v_exp_f32 v{Sin+i}, v{Sin+i}")
        cv = lambda j: a.e(f"v_cvt_pk_bf16_f32 v{Pcur+j}, v{Sin+2*j}, v{Sin+2*j+1}")
        nslots = 4
        per = [(len(q) + nslots - 1 - i) // nslots for i in range(nslots)]
        def M(x, slot):
            if x: a.e(x)
            for _ in range(per[slot]):
                kind, it = q.pop(0)
                if kind == 's': a.e(it)
                else: it()
        M(PV1, 0); e(0); e(1); e(2); e(3); cv(0)
        M(Sm, 1); e(4); e(5); cv(1); e(6); e(7); cv(2)
        M(PV2, 2); e(8); e(9); cv(3); e(10); e(11); cv(4)
        M(G, 3); e(12); e(13); cv(5); e(14); e(15); cv(6); cv(7)
        assert not q
    sc.inloop = False
    ts(a, 3)
    pt = NT - 1
    Op = O + 16 * 3; vb = VF + 8 * 1; Pp = P + 8 * (pt & 1)
    a.nop(2)
    a.e(f"{MF} {v(Op,16)}, {v(vb,4)}, {v(Pp,4)}, {v(Op,16)}", f"{MF} {v(Op,16)}, {v(vb+4,4)}, {v(Pp+4,4)}, {v(Op,16)}")

def attn_reduce(a, sc):
    a.e(f"s_mul_i32 s{sT0}, s{sW}, {4*2304}")
    a.e(f"v_add_u32 v2, s{sT0}, v{vL16}", f"v_lshrrev_b32 v3, 2, v{vL16}", f"v_add_u32 v3, s{sT0}, v3")
    for c in range(4):
        a.e(f"ds_write_b128 v2, {v(O+16*c,4)} offset:{c*2304}", f"ds_write_b128 v2, {v(O+16*c+4,4)} offset:{c*2304+1024}",
            f"ds_write_b32 v3, v{O+16*c+8} offset:{c*2304+2048}")
    a.e("s_waitcnt lgkmcnt(0)", "s_barrier")
    a.e(f"s_mul_i32 s{sT0}, s{sCH}, {16*2304}", f"s_mul_i32 s{sT1}, s{sKQ}, 2304", f"s_add_u32 s{sT0}, s{sT0}, s{sT1}")
    a.e(f"v_add_u32 v2, s{sT0}, v{vL16}", f"v_lshrrev_b32 v3, 2, v{vL16}", f"v_add_u32 v3, s{sT0}, v3")
    RB = S
    for kq in range(4):
        a.e(f"ds_read_b128 {v(RB+12*kq,4)}, v2 offset:{kq*4*2304}", f"ds_read_b128 {v(RB+12*kq+4,4)}, v2 offset:{kq*4*2304+1024}",
            f"ds_read_b32 v{RB+12*kq+8}, v3 offset:{kq*4*2304+2048}")
    a.e("s_waitcnt lgkmcnt(0)")
    for r in range(9): a.e(f"v_add_f32 v{RB+r}, v{RB+r}, v{RB+12+r}", f"v_add_f32 v{RB+24+r}, v{RB+24+r}, v{RB+36+r}")
    for r in range(9): a.e(f"v_add_f32 v{RB+r}, v{RB+r}, v{RB+24+r}")
    a.e(f"v_rcp_f32 v{RB+9}, v{RB+8}", "s_nop 0")
    for r in range(8): a.e(f"v_mul_f32 v{RB+r}, v{RB+r}, v{RB+9}")
    for q in range(4): a.e(f"v_cvt_pk_bf16_f32 v{RB+12+q}, v{RB+2*q}, v{RB+2*q+1}")
    a.e(f"s_and_b32 s{sT0}, s{sKQ}, 1", f"s_lshl_b32 s{sT0}, s{sT0}, 15", f"s_lshr_b32 s{sT1}, s{sKQ}, 1", f"s_lshl_b32 s{sT1}, s{sT1}, 10",
        f"s_add_u32 s{sT0}, s{sT0}, s{sT1}", f"s_lshl_b32 s{sT1}, s{sCH}, 11", f"s_add_u32 s{sT0}, s{sT0}, s{sT1}",
        f"s_add_u32 s{sT0}, s{sT0}, s{sQ}", f"s_add_u32 s{sT0}, s{sT0}, {WS_O}")
    sc.vmem(f"buffer_store_dwordx4 {v(RB+12,4)}, v{vL16}, {RS}, s{sT0} offen", "ost")

def common_pro(a, ptr_loads):
    ts(a, 0, True); ts(a, 1)
    a.e("s_load_dwordx2 s[12:13], s[0:1], 88", *ptr_loads)
    a.e("v_lshrrev_b32 v2, 6, v0", "v_and_b32 v0, 63, v0")
    a.e(f"s_and_b32 s{sT0}, s2, 7", f"s_lshl_b32 s{sT0}, s{sT0}, 2", f"s_lshr_b32 s{sT1}, s2, 3", f"s_and_b32 s{sT1}, s{sT1}, 3",
        f"s_add_u32 s{sTB64}, s{sT0}, s{sT1}", f"s_lshr_b32 s{sHG}, s2, 5")
    a.e(f"v_readfirstlane_b32 s{sW}, v2", f"v_lshlrev_b32 v{vL16}, 4, v0")
    a.e("s_waitcnt lgkmcnt(0)")
    srd(a, R_WS, 12, WS_SIZE)

K2_LDS = 131072
def gen_k2(a):
    name = "k2_kernel"
    kernel_header(a, name)
    a.e("s_cmp_ge_u32 s2, 256", "s_cbranch_scc1 k2_end")
    common_pro(a, ["s_load_dwordx2 s[4:5], s[0:1], 64", "s_load_dwordx2 s[8:9], s[0:1], 0"])
    srd(a, 24, 8, 2048 * 1024)
    sc = Sched(a)
    g = Ffn2()
    attn_main(a, sc, g)
    a.nop(12)
    ts(a, 4)
    a.e("s_barrier")
    attn_reduce(a, sc)
    a.e("v_lshrrev_b32 v0, 4, v1")
    a.e("s_barrier")
    a.e(f"s_lshl_b32 s{sT0}, s{sW}, 14", f"v_add_u32 v2, s{sT0}, v{vL16}")
    for t in range(4):
        for q in range(4):
            a.e(f"ds_write_b128 v2, {v(GACC+16*t+4*q,4)} offset:{t*4096+q*1024}")
    a.e(f"v_and_b32 v4, 31, v0", "v_lshlrev_b32 v4, 10, v4", f"v_lshrrev_b32 v5, 5, v0", "v_lshlrev_b32 v5, 3, v5", "v_add_u32 v4, v4, v5")
    a.e(f"s_lshl_b32 s{sT0}, s{sTB64}, 16", f"s_lshr_b32 s{sT1}, s{sW}, 1", f"s_and_b32 s{sT1}, s{sT1}, 1", f"s_lshl_b32 s{sT1}, s{sT1}, 15", f"s_add_u32 s{sT0}, s{sT0}, s{sT1}",
        f"s_lshl_b32 s{sT1}, s{sHG}, 7", f"s_add_u32 s{sT0}, s{sT0}, s{sT1}", f"s_lshr_b32 s{sT1}, s{sW}, 2", f"s_lshl_b32 s{sT1}, s{sT1}, 6",
        f"s_add_u32 s{sT0}, s{sT0}, s{sT1}", f"s_and_b32 s{sT1}, s{sW}, 1", f"s_lshl_b32 s{sT1}, s{sT1}, 5", f"s_add_u32 s{sT0}, s{sT0}, s{sT1}")
    XR = Q
    for q in range(2):
        a.e(f"buffer_load_dwordx2 {v(XR+2*q,2)}, v4, s[24:27], s{sT0} offen offset:{q*16}")
    a.e("s_waitcnt lgkmcnt(0)", "s_barrier")
    a.e(f"s_lshr_b32 s{sT1}, s{sW}, 1", f"s_lshl_b32 s{sT1}, s{sT1}, 12", f"s_and_b32 s{sT2}, s{sW}, 1", f"s_lshl_b32 s{sT2}, s{sT2}, 11",
        f"s_add_u32 s{sT1}, s{sT1}, s{sT2}", f"v_add_u32 v2, s{sT1}, v{vL16}")
    a.e("v_add_u32 v3, 65536, v2")
    RB = O
    for wp in range(8):
        for q in range(2):
            ad = "v2" if wp < 4 else "v3"
            a.e(f"ds_read_b128 {v(RB+8*wp+4*q,4)}, {ad} offset:{(wp&3)*16384+q*1024}")
        if wp in (3, 6): a.e("s_waitcnt lgkmcnt(0)")
    a.e("s_waitcnt lgkmcnt(0)")
    for st in (4, 2, 1):
        for wp in range(st):
            for r in range(8): a.e(f"v_add_f32 v{RB+8*wp+r}, v{RB+8*wp+r}, v{RB+8*(wp+st)+r}")
    a.e("s_waitcnt vmcnt(0)")
    a.e(f"s_mov_b32 s{sT2}, 0xffff0000")
    for q in range(2):
        for d in range(2):
            r = XR + 2 * q + d
            a.e(f"v_lshlrev_b32 v5, 16, v{r}", f"v_and_b32 v6, s{sT2}, v{r}",
                f"v_add_f32 v{RB+4*q+2*d}, v{RB+4*q+2*d}, v5", f"v_add_f32 v{RB+4*q+2*d+1}, v{RB+4*q+2*d+1}, v6")
    a.e(f"s_lshl_b32 s{sT0}, s2, 14", f"s_add_u32 s{sT0}, s{sT0}, s{sT1}", f"s_add_u32 s{sT0}, s{sT0}, {WS_OB}")
    for q in range(2):
        a.e(f"buffer_store_dwordx4 {v(RB+4*q,4)}, v{vL16}, {RS}, s{sT0} offen offset:{q*1024}")
    gen2.dump8(a, 2)
    a.label("k2_end")
    a.e("s_endpgm")
    return name, 256, (256, K2_LDS, 512)

K3_LDS = 65536
def gen_k3(a):
    name = "k3_kernel"
    kernel_header(a, name)
    R_O, R_OUT = 20, 52
    a.e("s_cmp_ge_u32 s2, 256", "s_cbranch_scc1 k3_end")
    common_pro(a, ["s_load_dwordx2 s[6:7], s[0:1], 32", "s_load_dwordx2 s[10:11], s[0:1], 72"])
    srd(a, R_O, 6, 512 * 1024); srd(a, R_OUT, 10, 2048 * 1024)
    vWo, vWo2, vWA = 2, 3, 4
    L = "v0"
    a.e(f"v_lshrrev_b32 v4, 3, {L}", "v_lshlrev_b32 v4, 10, v4", f"v_lshrrev_b32 v5, 4, {L}", "v_and_b32 v5, 1, v5", "v_lshlrev_b32 v5, 2, v5",
        f"v_and_b32 v6, 7, {L}", "v_xor_b32 v6, v6, v5", "v_lshlrev_b32 v6, 4, v6", f"v_add_u32 v{vWo}, v4, v6")
    a.e(f"s_lshl_b32 s{sT0}, s{sHG}, 7", f"v_add_u32 v{vWo}, s{sT0}, v{vWo}", f"v_add_u32 v{vWo2}, {8192-1024}, v{vWo}")
    a.e(f"s_lshl_b32 s40, s{sW}, 17", f"s_lshl_b32 s41, s{sW}, 14")
    for jj in range(8):
        a.e(f"s_add_u32 m0, s41, {jj*2048}", f"s_add_u32 s{sT0}, s40, {jj*16384}")
        a.e(f"buffer_load_dwordx4 v{vWo}, s[{R_O}:{R_O+3}], s{sT0} offen lds")
        a.e(f"buffer_load_dwordx4 v{vWo2}, s[{R_O}:{R_O+3}], s{sT0} offen offset:1024 lds")
    BF = 64
    a.e(f"s_and_b32 s{sT1}, s{sW}, 1", f"s_lshl_b32 s{sT1}, s{sT1}, 15", f"s_lshl_b32 s{sT0}, s{sTB64}, 16", f"s_add_u32 s{sT0}, s{sT0}, s{sT1}",
        f"s_add_u32 s{sT0}, s{sT0}, {WS_O}")
    for j in range(32):
        if j % 4 == 0 and j: a.e(f"s_add_u32 s{sT0}, s{sT0}, 4096")
        a.e(f"buffer_load_dwordx4 {v(BF+4*j,4)}, v{vL16}, {RS}, s{sT0} offen offset:{(j % 4)*1024}")
    ACC = 16
    a.e(f"s_lshl_b32 s{sT0}, s2, 14", f"s_lshl_b32 s{sT1}, s{sW}, 12", f"s_add_u32 s{sT0}, s{sT0}, s{sT1}", f"s_add_u32 s{sT0}, s{sT0}, {WS_OB}")
    for q in range(4):
        a.e(f"buffer_load_dwordx4 {v(ACC+4*q,4)}, v{vL16}, {RS}, s{sT0} offen offset:{q*1024}")
    a.e(f"v_and_b32 v4, 15, {L}", "v_lshrrev_b32 v5, 2, v4", f"v_lshrrev_b32 v6, 5, {L}", "v_lshlrev_b32 v6, 2, v6", "v_add_u32 v5, v5, v6",
        "v_lshlrev_b32 v5, 7, v5", "v_lshrrev_b32 v6, 3, v4", "v_lshlrev_b32 v6, 6, v6", "v_add_u32 v5, v5, v6",
        f"v_lshrrev_b32 v6, 4, {L}", "v_and_b32 v6, 1, v6", "v_lshlrev_b32 v6, 5, v6", "v_add_u32 v5, v5, v6",
        f"v_and_b32 v6, 3, {L}", "v_lshlrev_b32 v6, 3, v6", "v_add_u32 v5, v5, v6")
    a.e(f"s_lshr_b32 s{sT1}, s{sW}, 1", f"s_lshl_b32 s{sT1}, s{sT1}, 6", f"v_xor_b32 v{vWA}, s{sT1}, v5")
    a.e("s_waitcnt vmcnt(36)", "s_barrier")
    AF = 32
    def rd(j):
        b = AF + 4 * (j % 8)
        a.e(f"ds_read_b64_tr_b16 {v(b,2)}, v{vWA} offset:{j*2048}", f"ds_read_b64_tr_b16 {v(b+2,2)}, v{vWA} offset:{j*2048+1024}")
    for j in range(6): rd(j)
    a.e("s_waitcnt vmcnt(0)")
    for j in range(32):
        if j + 6 < 32:
            rd(j + 6)
            a.e("s_waitcnt lgkmcnt(12)")
        else:
            a.e(f"s_waitcnt lgkmcnt({2*(31-j)})")
        a.e(f"{MF} {v(ACC,16)}, {v(AF+4*(j%8),4)}, {v(BF+4*j,4)}, {v(ACC,16)}")
    a.nop(14)
    a.e(f"v_and_b32 v4, 31, {L}", "v_lshlrev_b32 v4, 10, v4", f"v_lshrrev_b32 v5, 5, {L}", "v_lshlrev_b32 v5, 3, v5", "v_add_u32 v4, v4, v5")
    a.e(f"s_lshl_b32 s{sT0}, s{sTB64}, 16", f"s_and_b32 s{sT1}, s{sW}, 1", f"s_lshl_b32 s{sT1}, s{sT1}, 15", f"s_add_u32 s{sT0}, s{sT0}, s{sT1}",
        f"s_lshl_b32 s{sT1}, s{sHG}, 7", f"s_add_u32 s{sT0}, s{sT0}, s{sT1}", f"s_lshr_b32 s{sT1}, s{sW}, 1", f"s_lshl_b32 s{sT1}, s{sT1}, 6",
        f"s_add_u32 s{sT0}, s{sT0}, s{sT1}")
    for q in range(4):
        for d in range(2):
            a.e(f"v_cvt_pk_bf16_f32 v{32+2*q+d}, v{ACC+4*q+2*d}, v{ACC+4*q+2*d+1}")
    for q in range(4):
        a.e(f"buffer_store_dwordx2 {v(32+2*q,2)}, v4, s[{R_OUT}:{R_OUT+3}], s{sT0} offen offset:{q*16}")
    if gen.INSTR:
        ts(a, 6); ts(a, 7, True)
        ts_dump(a, 3, 2, sW, R_WS)
    a.label("k3_end")
    a.e("s_endpgm")
    return name, 192, (256, K3_LDS, 256)

def gen_ffn1k(a):
    name = "f1_kernel"
    kernel_header(a, name)
    a.e("s_cmp_ge_u32 s2, 224", "s_cbranch_scc1 f1_end")
    a.e("s_add_u32 s2, s2, 256")
    gen.gen_ffn1(a)
    a.label("f1_end")
    a.e("s_endpgm")
    return name, 256, (224, gen.K2_LDS, 256)

if __name__ == "__main__":
    ks = [gen_k1, gen_ffn1k, gen_k2, gen_k3]
    if len(sys.argv) > 1 and sys.argv[1] == "instr":
        gen.INSTR = True
        for k in sys.argv[3:]: KNOB.add(k)
        gen.build(ks, sys.argv[2] if len(sys.argv) > 2 else "v3i.s")
    else:
        gen.build(ks, "v3.s")
```

```python
import sys
import gen
from gen import Asm, v, s, srd, kernel_header, kernel_desc, f2u, ts, ts_dump, gen_k1, check_text, HEADER
from gen import WS_XN, WS_Q, WS_O, WS_KF, WS_VF, WS_H, WS_SIZE
from gen2 import Sched, MF, KNOB, WS_OB
import gen2, gen3
from gen3 import Stream, common_pro, gen_k3, gen_ffn1k

vL16 = 1
Q, KF, VF, S, P, O = 8, 24, 32, 48, 80, 96
GA, GB, GACC = 160, 176, 192
R_WS = 28
RS = f"s[{R_WS}:{R_WS+3}]"
sW, sTB64, sHG, sT0, sT1, sT2, sK, sV, sQ, sKQ, sCH = 32, 35, 36, 37, 38, 39, 43, 44, 46, 47, 48
NT = 64
NKT = 16
RING = 5
BAR_TILE = 32
L_AP = 4 * RING * 4096
K2_LDS = L_AP + 8 * 4 * 2304

class Ffn2:
    R = RING
    NK = 28
    R_D = 16
    vWo, vWo2, vWA0, vWA1, vBB, vB2 = 2, 3, 4, 5, 6, 7
    sLB, sGW, sGB = 50, 51, 52
    T0 = 7
    def tj(self, j): return self.T0 + 2 * j
    def prologue(self, a, sc):
        srd(a, self.R_D, 4, 1792 * 1024)
        L = "v0"
        a.e(f"v_lshrrev_b32 v4, 3, {L}", "v_lshlrev_b32 v4, 10, v4", f"v_lshrrev_b32 v5, 4, {L}", "v_and_b32 v5, 1, v5", "v_lshlrev_b32 v5, 2, v5",
            f"v_and_b32 v6, 7, {L}", "v_xor_b32 v6, v6, v5", "v_lshlrev_b32 v6, 4, v6", f"v_add_u32 v{self.vWo}, v4, v6")
        a.e(f"s_lshl_b32 s{sT0}, s{sHG}, 7", f"v_add_u32 v{self.vWo}, s{sT0}, v{self.vWo}", f"v_add_u32 v{self.vWo2}, {8192-1024}, v{self.vWo}")
        a.e(f"v_add_u32 v{self.vB2}, {112*1024-1024}, v{vL16}")
        a.e(f"s_mul_i32 s{self.sLB}, s{sW}, {self.R*4096}")
        a.e(f"s_mul_i32 s{self.sGW}, s{sW}, {28*16*1024}", f"s_sub_u32 s{self.sGW}, s{self.sGW}, 16384")
        a.e(f"s_mul_i32 s{self.sGB}, s{sTB64}, {2*112*1024}", f"s_mul_i32 s{sT0}, s{sW}, {28*1024}", f"s_add_u32 s{self.sGB}, s{self.sGB}, s{sT0}",
            f"s_add_u32 s{self.sGB}, s{self.sGB}, {WS_H - 2048 - 1024}")
        a.e(f"v_and_b32 v4, 15, {L}", "v_lshrrev_b32 v5, 2, v4", f"v_lshrrev_b32 v6, 5, {L}", "v_lshlrev_b32 v6, 2, v6", "v_add_u32 v5, v5, v6",
            "v_lshlrev_b32 v5, 7, v5", "v_lshrrev_b32 v6, 3, v4", "v_lshlrev_b32 v6, 6, v6", "v_add_u32 v5, v5, v6",
            f"v_lshrrev_b32 v6, 4, {L}", "v_and_b32 v6, 1, v6", "v_lshlrev_b32 v6, 5, v6", "v_add_u32 v5, v5, v6",
            f"v_and_b32 v6, 3, {L}", "v_lshlrev_b32 v6, 3, v6", "v_add_u32 v5, v5, v6")
        a.e(f"v_add_u32 v{self.vWA0}, s{self.sLB}, v5", f"v_xor_b32 v{self.vWA1}, 64, v{self.vWA0}", f"v_add_u32 v{self.vBB}, s{self.sLB}, v{vL16}")
    def dma_items(self, st, sc, j, tile):
        if j >= self.NK: return
        slot = j % self.R
        r = self.R_D
        st.add('s', f"s_add_u32 m0, s{self.sLB}, {slot*4096}", tile)
        st.add('s', f"s_add_u32 s{self.sGW}, s{self.sGW}, 16384", tile)
        st.add('s', f"s_add_u32 s{self.sGB}, s{self.sGB}, 1024", tile)
        st.add('v', lambda: sc.vmem(f"buffer_load_dwordx4 v{self.vWo}, s[{r}:{r+3}], s{self.sGW} offen lds", f"d{j}"), tile)
        st.add('v', lambda: sc.vmem(f"buffer_load_dwordx4 v{self.vWo2}, s[{r}:{r+3}], s{self.sGW} offen offset:1024 lds", f"d{j}"), tile)
        st.add('v', lambda: sc.vmem(f"buffer_load_dwordx4 v{vL16}, {RS}, s{self.sGB} offen offset:2048 lds", f"d{j}"), tile)
        st.add('v', lambda: sc.vmem(f"buffer_load_dwordx4 v{self.vB2}, {RS}, s{self.sGB} offen offset:3072 lds", f"d{j}"), tile)
    def read_items(self, st, sc, j, tile):
        slot, bs = j % self.R, j & 1
        dl = self.tj(j)
        st.add('w', lambda: sc.wait_vm(f"d{j}"), tile)
        for t in range(2):
            st.add('v', (lambda t=t: sc.lds(f"ds_read_b128 {v(GB+8*bs+4*t,4)}, v{self.vBB} offset:{slot*4096+2048+t*1024}", f"k{j}")), tile, dl)
        for q, ad in enumerate((self.vWA0, self.vWA1)):
            r = GA + 8 * bs + 4 * q
            st.add('v', (lambda r=r, ad=ad: sc.lds(f"ds_read_b64_tr_b16 {v(r,2)}, v{ad} offset:{slot*4096}", f"k{j}")), tile, dl)
            st.add('v', (lambda r=r, ad=ad: sc.lds(f"ds_read_b64_tr_b16 {v(r+2,2)}, v{ad} offset:{slot*4096+1024}", f"k{j}")), tile, dl)
    def build(self, sc):
        nonm = {t: [] for t in range(NT)}; gm = {t: [] for t in range(NT)}; pre = {t: [] for t in range(NT)}
        st = Stream()
        for j in range(self.R): self.dma_items(st, sc, j, j)
        for j in range(self.NK):
            t = self.tj(j)
            self.read_items(st, sc, j, t - 2)
            self.dma_items(st, sc, j + self.R, t)
            bs = j & 1
            pre[t].append(lambda j=j: sc.wait_lg(f"k{j}"))
            i = 0
            for nt in range(2):
                for tt in range(2):
                    ac = GACC + (nt * 2 + tt) * 16
                    c = "0" if j == 0 else v(ac, 16)
                    gm[t + nt].append(f"{MF} {v(ac,16)}, {v(GA+8*bs+4*nt,4)}, {v(GB+8*bs+4*tt,4)}, {c}")
        items = sorted(enumerate(st.items), key=lambda x: (x[1][2], 0 if x[1][3] is not None or x[1][0] == 'w' else 1, x[0]))
        items = [x[1] for x in items]
        cap = 5
        cur = 0; cnt = 0
        for kind, x, tile, dl in items:
            if tile > cur: cur = tile; cnt = 0
            if kind == 'v':
                if cnt >= cap: cur += 1; cnt = 0
                cnt += 1
            assert dl is None or cur < dl, (cur, dl)
            nonm[cur].append((kind, x))
        return nonm, gm, pre

class NoG:
    def prologue(self, a, sc): pass
    def build(self, sc): return {t: [] for t in range(NT)}, {t: [] for t in range(NT)}, {t: [] for t in range(NT)}

def attn_main(a, sc, g, bar_tile=None):
    def loadK(kt):
        if kt >= NKT: return
        sc.vmem(f"buffer_load_dwordx4 {v(KF+4*(kt&1),4)}, v{vL16}, {RS}, s{sK} offen offset:{(kt&3)*1024}", f"K{kt}")
    def loadV(kt, h):
        if kt >= NKT: return
        sc.vmem(f"buffer_load_dwordx4 {v(VF+8*(kt&1)+4*h,4)}, v{vL16}, {RS}, s{sV} offen offset:{(kt&1)*2048+h*1024}", f"V{kt}")
    sc.vm = ["K0", "Q0", "Q1", "Q2", "Q3", "V0", "V0", "K1"]
    g.prologue(a, sc)
    nonm, gm, pre = g.build(sc)
    sc.wait_vm(["K0", "Q0"])
    a.e(f"{MF} {v(S,16)}, {v(KF,4)}, {v(Q,4)}, 0")
    sc.wait_vm(["Q3"])
    a.nop(12)
    ts(a, 2)
    a.raw(".p2align 3")
    sc.inloop = True
    for t in range(NT):
        kt, c = t // 4, t & 3
        Sin, Sout = S + 16 * (t & 1), S + 16 * ((t + 1) & 1)
        Pcur, Pprev = P + 8 * (t & 1), P + 8 * ((t + 1) & 1)
        q = list(nonm[t])
        if c == 3 and kt + 2 < NKT:
            if ((kt + 2) & 3) == 0: q.append(('s', f"s_add_u32 s{sK}, s{sK}, 4096"))
            q.append(('v', lambda kt=kt: loadK(kt + 2)))
        if c == 1 and kt + 1 < NKT:
            if ((kt + 1) & 1) == 0: q.append(('s', f"s_add_u32 s{sV}, s{sV}, 4096"))
            q.append(('v', lambda kt=kt: loadV(kt + 1, 0))); q.append(('v', lambda kt=kt: loadV(kt + 1, 1)))
        if bar_tile == t: a.e("s_barrier")
        for f in pre[t]: f()
        nt = t + 1; pt = t - 1
        if pt >= 0 and (pt & 3) == 0: sc.wait_vm(f"V{pt//4}")
        if nt < NT and (nt & 3) == 0: sc.wait_vm(f"K{nt//4}")
        Sm = f"{MF} {v(Sout,16)}, {v(KF+4*((nt//4)&1),4)}, {v(Q+4*(nt&3),4)}, 0" if nt < NT else None
        PV1 = PV2 = None
        if pt >= 0:
            Op = O + 16 * (pt & 3); vb = VF + 8 * ((pt // 4) & 1)
            c0 = "0" if pt < 4 else v(Op, 16)
            PV1 = f"{MF} {v(Op,16)}, {v(vb,4)}, {v(Pprev,4)}, {c0}"
            PV2 = f"{MF} {v(Op,16)}, {v(vb+4,4)}, {v(Pprev+4,4)}, {v(Op,16)}"
        G = list(gm[t])
        if "nogm" in KNOB: G = []
        e = lambda i: a.e(f"v_exp_f32 v{Sin+i}, v{Sin+i}")
        cv = lambda j: a.e(f"v_cvt_pk_bf16_f32 v{Pcur+j}, v{Sin+2*j}, v{Sin+2*j+1}")
        ms = [PV1, Sm] + ([G[0]] if G else []) + [PV2] + ([G[1]] if len(G) > 1 else [])
        nslots = len(ms)
        per = [(len(q) + nslots - 1 - i) // nslots for i in range(nslots)]
        it_m = iter(range(nslots))
        def M():
            i = next(it_m)
            if ms[i]: a.e(ms[i])
            for _ in range(per[i]):
                kind, it = q.pop(0)
                if kind == 's': a.e(it)
                else: it()
        if nslots == 3:
            M(); e(0); e(1); e(2); e(3); cv(0); e(4); e(5); cv(1)
            M(); e(6); e(7); cv(2); e(8); e(9); cv(3)
            M(); e(10); e(11); cv(4); e(12); e(13); cv(5); e(14); e(15); cv(6); cv(7)
        elif nslots == 4:
            M(); e(0); e(1); e(2); e(3); cv(0)
            M(); e(4); e(5); cv(1); e(6); e(7); cv(2)
            M(); e(8); e(9); cv(3); e(10); e(11); cv(4)
            M(); e(12); e(13); cv(5); e(14); e(15); cv(6); cv(7)
        else:
            M(); e(0); e(1); e(2); e(3)
            M(); cv(0); e(4); e(5); cv(1); e(6); e(7)
            M(); cv(2); e(8); e(9); cv(3)
            M(); e(10); e(11); cv(4); e(12); e(13)
            M(); cv(5); e(14); e(15); cv(6); cv(7)
        assert not q
    sc.inloop = False
    ts(a, 3)
    pt = NT - 1
    Op = O + 16 * 3; vb = VF + 8 * 1; Pp = P + 8 * (pt & 1)
    a.nop(2)
    a.e(f"{MF} {v(Op,16)}, {v(vb,4)}, {v(Pp,4)}, {v(Op,16)}", f"{MF} {v(Op,16)}, {v(vb+4,4)}, {v(Pp+4,4)}, {v(Op,16)}")

def attn_write(a):
    a.e(f"s_mul_i32 s{sT0}, s{sW}, {4*2304}", f"s_add_u32 s{sT0}, s{sT0}, {L_AP}")
    a.e(f"v_add_u32 v2, s{sT0}, v{vL16}", f"v_lshrrev_b32 v3, 2, v{vL16}", f"v_add_u32 v3, s{sT0}, v3")
    for c in range(4):
        a.e(f"ds_write_b128 v2, {v(O+16*c,4)} offset:{c*2304}", f"ds_write_b128 v2, {v(O+16*c+4,4)} offset:{c*2304+1024}",
            f"ds_write_b32 v3, v{O+16*c+8} offset:{c*2304+2048}")

def attn_red(a, sc):
    a.e(f"s_mul_i32 s{sT0}, s{sCH}, {16*2304}", f"s_mul_i32 s{sT1}, s{sKQ}, 2304", f"s_add_u32 s{sT0}, s{sT0}, s{sT1}", f"s_add_u32 s{sT0}, s{sT0}, {L_AP}")
    a.e(f"v_add_u32 v2, s{sT0}, v{vL16}", f"v_lshrrev_b32 v3, 2, v{vL16}", f"v_add_u32 v3, s{sT0}, v3")
    RB = S
    for kq in range(4):
        a.e(f"ds_read_b128 {v(RB+12*kq,4)}, v2 offset:{kq*4*2304}", f"ds_read_b128 {v(RB+12*kq+4,4)}, v2 offset:{kq*4*2304+1024}",
            f"ds_read_b32 v{RB+12*kq+8}, v3 offset:{kq*4*2304+2048}")
    a.e(f"s_and_b32 s{sT0}, s{sKQ}, 1", f"s_lshl_b32 s{sT0}, s{sT0}, 15", f"s_lshr_b32 s{sT1}, s{sKQ}, 1", f"s_lshl_b32 s{sT1}, s{sT1}, 10",
        f"s_add_u32 s{sT0}, s{sT0}, s{sT1}", f"s_lshl_b32 s{sT1}, s{sCH}, 11", f"s_add_u32 s{sT0}, s{sT0}, s{sT1}",
        f"s_add_u32 s{sT0}, s{sT0}, s{sQ}", f"s_add_u32 s{sT0}, s{sT0}, {WS_O}")
    a.e("s_waitcnt lgkmcnt(0)")
    for r in range(9): a.e(f"v_add_f32 v{RB+r}, v{RB+r}, v{RB+12+r}", f"v_add_f32 v{RB+24+r}, v{RB+24+r}, v{RB+36+r}")
    for r in range(9): a.e(f"v_add_f32 v{RB+r}, v{RB+r}, v{RB+24+r}")
    a.e(f"v_rcp_f32 v{RB+9}, v{RB+8}", "s_nop 0")
    for r in range(8): a.e(f"v_mul_f32 v{RB+r}, v{RB+r}, v{RB+9}")
    for q in range(4): a.e(f"v_cvt_pk_bf16_f32 v{RB+12+q}, v{RB+2*q}, v{RB+2*q+1}")
    sc.vmem(f"buffer_store_dwordx4 {v(RB+12,4)}, v{vL16}, {RS}, s{sT0} offen", "ost")

def gen_k2(a):
    name = "k2_kernel"
    kernel_header(a, name)
    a.e("s_cmp_ge_u32 s2, 256", "s_cbranch_scc1 k2_end")
    common_pro(a, ["s_load_dwordx2 s[4:5], s[0:1], 64", "s_load_dwordx2 s[8:9], s[0:1], 0"])
    a.e(f"s_and_b32 s{sKQ}, s{sW}, 3", f"s_lshr_b32 s{sCH}, s{sW}, 2")
    a.e(f"s_lshl_b32 s{sQ}, s{sTB64}, 16", f"s_lshl_b32 s{sT0}, s{sHG}, 12", f"s_add_u32 s{sQ}, s{sQ}, s{sT0}")
    a.e(f"s_lshl_b32 s{sT0}, s{sCH}, 11", f"s_add_u32 s{sT0}, s{sT0}, s{sQ}", f"s_add_u32 s{sT0}, s{sT0}, {WS_Q}", f"s_add_u32 s{sT1}, s{sT0}, 32768")
    a.e(f"s_lshl_b32 s{sK}, s{sKQ}, 14", f"s_add_u32 s{sK}, s{sK}, {WS_KF}", f"s_lshl_b32 s{sV}, s{sKQ}, 15", f"s_add_u32 s{sV}, s{sV}, {WS_VF}")
    a.e(f"buffer_load_dwordx4 {v(KF,4)}, v{vL16}, {RS}, s{sK} offen")
    for c in range(4):
        a.e(f"buffer_load_dwordx4 {v(Q+4*c,4)}, v{vL16}, {RS}, s{sT1 if c & 1 else sT0} offen offset:{(c>>1)*1024}")
    a.e(f"buffer_load_dwordx4 {v(VF,4)}, v{vL16}, {RS}, s{sV} offen", f"buffer_load_dwordx4 {v(VF+4,4)}, v{vL16}, {RS}, s{sV} offen offset:1024")
    a.e(f"buffer_load_dwordx4 {v(KF+4,4)}, v{vL16}, {RS}, s{sK} offen offset:1024")
    a.e(f"s_cmp_lg_u32 s{sCH}, 0", "s_cbranch_scc1 k2_young")
    srd(a, 24, 8, 2048 * 1024)
    sc = Sched(a)
    g = Ffn2()
    attn_main(a, sc, g)
    a.nop(12)
    attn_write(a)
    a.e(f"v_add_u32 v2, s{g.sLB}, v{vL16}")
    for t in range(4):
        for q in range(4):
            a.e(f"ds_write_b128 v2, {v(GACC+16*t+4*q,4)} offset:{t*4096+q*1024}")
    a.e("v_lshrrev_b32 v0, 4, v1")
    a.e(f"v_and_b32 v4, 31, v0", "v_lshlrev_b32 v4, 10, v4", f"v_lshrrev_b32 v5, 5, v0", "v_lshlrev_b32 v5, 3, v5", "v_add_u32 v4, v4, v5")
    a.e(f"s_lshl_b32 s{sT0}, s{sTB64}, 16", f"s_and_b32 s{sT1}, s{sW}, 1", f"s_lshl_b32 s{sT1}, s{sT1}, 15", f"s_add_u32 s{sT0}, s{sT0}, s{sT1}",
        f"s_lshl_b32 s{sT1}, s{sHG}, 7", f"s_add_u32 s{sT0}, s{sT0}, s{sT1}", f"s_lshr_b32 s{sT1}, s{sW}, 1", f"s_lshl_b32 s{sT1}, s{sT1}, 6",
        f"s_add_u32 s{sT0}, s{sT0}, s{sT1}")
    XR = Q
    for q in range(4):
        a.e(f"buffer_load_dwordx2 {v(XR+2*q,2)}, v4, s[24:27], s{sT0} offen offset:{q*16}")
    a.e("s_waitcnt lgkmcnt(0)")
    ts(a, 4)
    a.e("s_barrier")
    attn_red(a, sc)
    a.e(f"s_lshl_b32 s{sT1}, s{sW}, 12", f"v_add_u32 v2, s{sT1}, v{vL16}")
    RB = O
    for wp in range(4):
        for q in range(4):
            a.e(f"ds_read_b128 {v(RB+16*wp+4*q,4)}, v2 offset:{wp*RING*4096+q*1024}")
        if wp in (2,): a.e("s_waitcnt lgkmcnt(4)")
    a.e("s_waitcnt lgkmcnt(0)")
    for r in range(16): a.e(f"v_add_f32 v{RB+r}, v{RB+r}, v{RB+16+r}", f"v_add_f32 v{RB+32+r}, v{RB+32+r}, v{RB+48+r}")
    for r in range(16): a.e(f"v_add_f32 v{RB+r}, v{RB+r}, v{RB+32+r}")
    a.e("s_waitcnt vmcnt(0)")
    a.e(f"s_mov_b32 s{sT2}, 0xffff0000")
    for q in range(4):
        for d in range(2):
            r = XR + 2 * q + d
            a.e(f"v_lshlrev_b32 v5, 16, v{r}", f"v_and_b32 v6, s{sT2}, v{r}",
                f"v_add_f32 v{RB+4*q+2*d}, v{RB+4*q+2*d}, v5", f"v_add_f32 v{RB+4*q+2*d+1}, v{RB+4*q+2*d+1}, v6")
    a.e(f"s_lshl_b32 s{sT0}, s2, 14", f"s_add_u32 s{sT0}, s{sT0}, s{sT1}", f"s_add_u32 s{sT0}, s{sT0}, {WS_OB}")
    for q in range(4):
        a.e(f"buffer_store_dwordx4 {v(RB+4*q,4)}, v{vL16}, {RS}, s{sT0} offen offset:{q*1024}")
    ts(a, 5)
    a.e("s_barrier")
    gen2.dump8(a, 2)
    a.e("s_endpgm")
    a.label("k2_young")
    sc = Sched(a)
    attn_main(a, sc, NoG(), bar_tile=BAR_TILE)
    a.nop(12)
    attn_write(a)
    a.e("s_waitcnt lgkmcnt(0)")
    ts(a, 4)
    a.e("s_barrier")
    attn_red(a, sc)
    ts(a, 5)
    gen2.dump8(a, 2)
    a.label("k2_end")
    a.e("s_endpgm")
    return name, 256, (256, K2_LDS, 512)

if __name__ == "__main__":
    ks = [gen_k1, gen_ffn1k, gen_k2, gen_k3]
    if len(sys.argv) > 1 and sys.argv[1] == "instr":
        gen.INSTR = True
        for k in sys.argv[3:]: KNOB.add(k)
        gen.build(ks, sys.argv[2] if len(sys.argv) > 2 else "v4i.s")
    else:
        gen.build(ks, "v4.s")
```

```python
import sys
import gen
from gen import Asm, v, s, srd, kernel_header, kernel_desc, f2u, ts, ts_dump, check_text, HEADER, QSCALE
from gen import WS_XN, WS_Q, WS_O, WS_KF, WS_VF, WS_H, WS_SIZE
from gen2 import Sched, MF, KNOB, WS_OB
import gen2, gen3, gen4

TSA, TSB = 8, 20
WS_ST = 20 << 20
WS_CS = 21 << 20
R = 4
LW, LX, LF = 0, 65536, 98304
L_ST, L_CS, L_NR = 102400, 103424, 104704
G1_LDS = 105728
R_WS = 28
RS = f"s[{R_WS}:{R_WS+3}]"
R_G, R_U, R_X, R_F, R_DBG = 16, 20, 24, 56, 68
sW, sAP, sTP, sTB, sJ, sT0, sT1, sT2, sT3 = 32, 33, 34, 35, 36, 37, 38, 39, 40
sGK, sGX, sGF, sMW, sMX, sSTR, sONES = 41, 42, 43, 44, 45, 46, 47
sBK, sBX, sS, sS0, sPS, sPC = 52, 53, 54, 55, 72, 73
vL16, vGo, vGo2, vUo, vUo2, vXo, vXo2 = 1, 2, 3, 4, 5, 6, 7
vWA, vXB, vFA, vL4 = 8, 12, 16, 17
vSUM, vSQ, vCF = 20, 22, 18
T = 28
LS, LQ, LC, LCF, UT, SEL = 36, 38, 40, 48, 52, 24
sMASK = 74
FF, AF, BF, KV, ACC = 56, 64, 96, 112, 128

def make(a, kind):
    sc = Sched(a)
    q_type = kind != 'f'
    def dma(st):
        if st >= 16: return []
        b = st % R
        it = []
        S_ = lambda x: it.append(('s', x))
        V_ = lambda x, tag=f"st{st}": it.append(('v', lambda: sc.vmem(x, tag)))
        S_(f"s_mul_i32 s{sGK}, s{sS}, s{sSTR}"); S_(f"s_add_u32 m0, s{sMW}, {b*16384}"); S_(f"s_add_u32 s{sGK}, s{sGK}, s{sBK}")
        V_(f"buffer_load_dwordx4 v{vGo}, s[{R_G}:{R_G+3}], s{sGK} offen lds")
        V_(f"buffer_load_dwordx4 v{vGo2}, s[{R_G}:{R_G+3}], s{sGK} offen offset:1024 lds")
        S_(f"s_add_u32 m0, s{sMW}, {b*16384+8192}"); S_(f"s_lshl_b32 s{sGX}, s{sS}, 6")
        V_(f"buffer_load_dwordx4 v{vUo}, s[{R_U}:{R_U+3}], s{sGK} offen lds")
        V_(f"buffer_load_dwordx4 v{vUo2}, s[{R_U}:{R_U+3}], s{sGK} offen offset:1024 lds")
        S_(f"s_add_u32 m0, s{sMX}, {b*8192}"); S_(f"s_add_u32 s{sGX}, s{sGX}, s{sBX}")
        V_(f"buffer_load_dwordx4 v{vXo}, s[{R_X}:{R_X+3}], s{sGX} offen lds")
        V_(f"buffer_load_dwordx4 v{vXo2}, s[{R_X}:{R_X+3}], s{sGX} offen offset:1024 lds")
        if q_type:
            S_(f"s_mov_b32 m0, {LF + b*1024}"); S_(f"s_lshl_b32 s{sGF}, s{sS}, 10")
            V_(f"buffer_load_dwordx4 v{vL16}, s[{R_F}:{R_F+3}], s{sGF} offen lds")
        S_(f"s_add_u32 s{sS}, s{sS}, 1"); S_(f"s_and_b32 s{sS}, s{sS}, 15")
        return it
    def reads(k):
        if k >= 32: return []
        st, ks, bs = k // 2, k & 1, k & 1
        b = st % R
        it = []
        L_ = lambda x, tag: it.append(('v', lambda: sc.lds(x, tag)))
        for t in range(2):
            L_(f"ds_read_b128 {v(BF+8*bs+4*t,4)}, v{vXB+2*t+ks} offset:{b*8192}", f"k{k}a")
        for q in range(4):
            r = AF + 16 * bs + 4 * q
            tag = f"k{k}a" if q < 2 else f"k{k}b"
            L_(f"ds_read_b64_tr_b16 {v(r,2)}, v{vWA+q} offset:{b*16384+ks*4096}", tag)
            L_(f"ds_read_b64_tr_b16 {v(r+2,2)}, v{vWA+q} offset:{b*16384+ks*4096+1024}", tag)
        if q_type:
            r = FF + 4 * bs
            L_(f"ds_read_b64_tr_b16 {v(r,2)}, v{vFA} offset:{b*1024+ks*512}", f"k{k}b")
            L_(f"ds_read_b64_tr_b16 {v(r+2,2)}, v{vFA} offset:{b*1024+ks*512+128}", f"k{k}b")
        return it
    def emit(it):
        kind_, x = it
        if kind_ == 'v' or kind_ == 'f': x()
        else: a.e(x)
    return sc, dma, reads, emit

def g1_main(a, kind, sc, dma, reads, emit):
    q_type = kind != 'f'
    DB = f"s[{R_DBG}:{R_DBG+3}]"
    sc.wait_vm("st0"); a.e("s_barrier")
    for it in reads(0): emit(it)
    ts(a, 2)
    a.raw(".p2align 3")
    sc.inloop = True
    extra = {k: [] for k in range(33)}
    pending_dma = []
    for k in range(32):
        bs = k & 1
        if k == TSA: ts(a, 4)
        if k == TSB: ts(a, 5)
        sc.wait_lg(f"k{k}a")
        newstage = (k & 1) and k + 1 < 32
        mf = []
        for qq in range(4):
            for t in range(2):
                ac = ACC + (qq * 2 + t) * 16
                c = "0" if k == 0 else v(ac, 16)
                mf.append(f"{MF} {v(ac,16)}, {v(AF+16*bs+4*qq,4)}, {v(BF+8*bs+4*t,4)}, {c}")
        if q_type:
            c = "0" if k == 0 else v(KV, 16)
            if kind == 'k': mf.append(f"{MF} {v(KV,16)}, {v(FF+4*bs,4)}, {v(BF+8*bs,4)}, {c}")
            else: mf.append(f"{MF} {v(KV,16)}, {v(BF+8*bs,4)}, {v(FF+4*bs,4)}, {c}")
        dots = []; fd = []
        ti = [0]
        for r in range(4):
            x = BF + 8 * bs + r
            p = UT + 2 * (r & 1)
            dots += [f"v_lshlrev_b32 v{p}, 16, v{x}", f"v_and_b32 v{p+1}, s{sMASK}, v{x}",
                     f"v_add_f32 v{LS}, v{LS}, v{p}", f"v_add_f32 v{LS+1}, v{LS+1}, v{p+1}",
                     f"v_fma_f32 v{LQ}, v{p}, v{p}, v{LQ}", f"v_fma_f32 v{LQ+1}, v{p+1}, v{p+1}, v{LQ+1}"]
        if "nodot" in KNOB: dots = []
        M16 = "v_mfma_f32_16x16x32_bf16"
        cs_m = []
        for qq in range(2):
            c = "0" if k == 0 else v(LC + 4 * qq, 4)
            cs_m.append(f"{M16} {v(LC+4*qq,4)}, {v(AF+16*bs+4*qq,4)}, {v(SEL,4)}, {c}")
        if "nocs" in KNOB: cs_m = []
        mf2 = []
        for i, m in enumerate(mf):
            mf2.append(m)
        if q_type:
            c = "0" if k == 0 else v(LCF, 4)
            fd.append(f"{M16} {v(LCF,4)}, {v(FF+4*bs,4)}, {v(SEL,4)}, {c}")
        n = len(mf)
        if newstage:
            i = (k + 1) // 2
            q1 = []; q2 = reads(k + 1)
            pending_dma = dma(i + R - 1)
            slots2 = list(range(4, n))
        else:
            q1 = reads(k + 1) + pending_dma + extra[k]; pending_dma = []
            q2 = []
        if newstage and extra[k]: q1 = list(extra[k])
        if newstage:
            per = [(len(q1) + 3 - i) // 4 for i in range(4)] + [(len(q2) + (n - 4) - 1 - i) // (n - 4) for i in range(n - 4)]
        else:
            per = [(len(q1) + n - 1 - i) // n for i in range(n)]
        perd = [(len(dots) + 7 - i) // 8 for i in range(8)] + [0]
        for i in range(n):
            if i == 4:
                sc.wait_lg(f"k{k}b")
                if newstage:
                    sc.wait_vm(f"st{(k+1)//2}")
                    if "nobar" not in KNOB: a.e("s_barrier")
            a.e(mf[i])
            if i in (1, 3) and cs_m: a.e(cs_m.pop(0))
            qq_ = q1 if (not newstage or i < 4) else q2
            for _ in range(per[i]): emit(qq_.pop(0))
            for _ in range(perd[i]): a.e(dots.pop(0))
            if i == n - 1:
                for d in fd: a.e(d)
        assert not q1 and not q2
    sc.inloop = False
    ts(a, 3)

def stats_exchange(a, q_type):
    a.nop(8)
    a.e(f"v_add_f32 v{vSUM}, v{LS}, v{LS+1}", f"v_add_f32 v{vSQ}, v{LQ}, v{LQ+1}")
    a.nop(2)
    a.e(f"v_permlane32_swap_b32 v{vSUM}, v{vSQ}")
    a.nop(1)
    a.e(f"v_add_f32 v{vSUM}, v{vSUM}, v{vSQ}")
    a.e(f"s_lshl_b32 s{sT0}, s{sTP}, 1", f"s_add_u32 s{sT0}, s{sT0}, s{sAP}", f"s_lshl_b32 s{sT0}, s{sT0}, 8", f"s_add_u32 s{sT0}, s{sT0}, {L_ST}",
        f"v_add_u32 v{T+1}, s{sT0}, v{vL4}", f"ds_write_b32 v{T+1}, v{vSUM}")
    a.e("v_and_b32 v19, 15, v0", "v_lshlrev_b32 v21, 6, v19", "v_lshrrev_b32 v23, 4, v0", "v_lshlrev_b32 v23, 4, v23", "v_add_u32 v21, v21, v23", "v_cmp_gt_u32 vcc, 2, v19")
    a.e(f"s_lshl_b32 s{sT0}, s{sAP}, 2", f"s_lshl_b32 s{sT1}, s{sTP}, 1", f"s_add_u32 s{sT0}, s{sT0}, s{sT1}", f"s_lshl_b32 s{sT0}, s{sT0}, 7", f"s_add_u32 s{sT0}, s{sT0}, {L_CS}",
        f"v_add_u32 v{T+3}, s{sT0}, v21")
    a.e("s_and_saveexec_b64 s[60:61], vcc", f"ds_write_b128 v{T+3}, {v(LC,4)}", f"ds_write_b128 v{T+3}, {v(LC+4,4)} offset:128")
    if q_type:
        a.e(f"v_add_u32 v{T+1}, {L_CS + 8*128}, v21", f"ds_write_b128 v{T+1}, {v(LCF,4)}")
    a.e("s_mov_b64 exec, s[60:61]")
    a.e("s_waitcnt lgkmcnt(0)", "s_barrier")
    NM, RSD = T + 4, T + 8
    a.e(f"v_and_b32 v{T}, 124, v{vL4}")
    for t in range(2):
        a.e(f"s_xor_b32 s{sT0}, s{sAP}, {t}", f"s_lshl_b32 s{sT1}, s{sTP}, 1", f"s_add_u32 s{sT0}, s{sT0}, s{sT1}", f"s_lshl_b32 s{sT0}, s{sT0}, 8",
            f"s_add_u32 s{sT0}, s{sT0}, {L_ST}", f"v_add_u32 v{T+1}, s{sT0}, v{T}", f"ds_read2_b32 v[{NM+2*t}:{NM+2*t+1}], v{T+1} offset0:0 offset1:32")
    a.e(f"v_lshrrev_b32 v{T+2}, 9, v{vL16}", f"v_lshlrev_b32 v{T+2}, 4, v{T+2}")
    return NM, RSD

def finish_stats(a, NM, RSD):
    a.e("s_waitcnt lgkmcnt(0)")
    for t in range(2):
        m, q2 = NM + 2 * t, NM + 2 * t + 1
        a.e(f"v_mul_f32 v{m}, {f2u(1/512):#x}, v{m}", f"v_mul_f32 v{q2}, {f2u(1/512):#x}, v{q2}", f"v_fma_f32 v{q2}, -v{m}, v{m}, v{q2}",
            f"v_max_f32 v{q2}, 0, v{q2}", f"v_add_f32 v{q2}, {f2u(1e-5):#x}, v{q2}", f"v_rsq_f32 v{RSD+2*t}, v{q2}", f"v_sub_f32 v{m}, 0, v{m}",
            f"v_mov_b32 v{m+1}, v{m}", f"v_mov_b32 v{RSD+2*t+1}, v{RSD+2*t}")

def cs_read(a, q, dst):
    a.e(f"s_lshl_b32 s{sT1}, s{sTP}, 1", f"s_xor_b32 s{sT0}, s{sT1}, {q}", f"s_lshl_b32 s{sT1}, s{sAP}, 2", f"s_add_u32 s{sT0}, s{sT0}, s{sT1}",
        f"s_lshl_b32 s{sT0}, s{sT0}, 7", f"s_add_u32 s{sT0}, s{sT0}, {L_CS}", f"v_add_u32 v{T+3}, s{sT0}, v{T+2}")
    for g in range(4):
        a.e(f"ds_read_b128 {v(dst+4*g,4)}, v{T+3} offset:{g*32}")

def gen_g1(a):
    name = "g1_kernel"
    kernel_header(a, name)
    a.e("s_cmp_ge_u32 s2, 256", "s_cbranch_scc1 g1_end")
    ts(a, 0, True); ts(a, 1)
    a.e("s_load_dwordx4 s[4:7], s[0:1], 0", "s_load_dwordx4 s[8:11], s[0:1], 16", "s_load_dwordx4 s[48:51], s[0:1], 48", "s_load_dwordx4 s[12:15], s[0:1], 80")
    a.e("v_lshrrev_b32 v2, 6, v0", "v_and_b32 v0, 63, v0")
    a.e(f"s_and_b32 s{sT0}, s2, 7", f"s_lshr_b32 s{sT1}, s2, 3", f"s_lshr_b32 s{sTB}, s{sT0}, 1", f"s_lshl_b32 s{sTB}, s{sTB}, 2", f"s_and_b32 s{sT2}, s{sT1}, 3",
        f"s_add_u32 s{sTB}, s{sTB}, s{sT2}", f"s_and_b32 s{sJ}, s{sT0}, 1", f"s_lshl_b32 s{sJ}, s{sJ}, 3", f"s_lshr_b32 s{sT2}, s{sT1}, 2", f"s_add_u32 s{sJ}, s{sJ}, s{sT2}")
    a.e(f"v_readfirstlane_b32 s{sW}, v2", f"v_lshlrev_b32 v{vL16}, 4, v0", f"v_lshlrev_b32 v{vL4}, 2, v0", f"s_mov_b32 s{sONES}, 0x3f803f80")
    a.e(f"s_and_b32 s{sTP}, s{sW}, 1", f"s_lshr_b32 s{sAP}, s{sW}, 1")
    a.e(f"s_mov_b32 s{sS}, 0")
    a.e("v_lshrrev_b32 v20, 4, v0", "v_and_b32 v21, 15, v0", "v_lshlrev_b32 v22, 1, v20", "v_xor_b32 v21, v21, v22", "v_xor_b32 v22, 8, v21")
    a.e("v_lshrrev_b32 v24, 2, v0", "v_lshlrev_b32 v24, 10, v24", "v_lshrrev_b32 v25, 4, v0", "v_and_b32 v25, 3, v25", "v_and_b32 v26, 3, v0", "v_xor_b32 v25, v25, v26",
        "v_lshlrev_b32 v25, 4, v25", f"v_add_u32 v{vXo}, v24, v25", f"v_add_u32 v{vXo2}, {16*1024-1024}, v{vXo}")
    a.e(f"s_lshl_b32 s{sBX}, s{sTB}, 17", f"s_lshl_b32 s{sT1}, s{sW}, 15", f"s_add_u32 s{sBX}, s{sBX}, s{sT1}")
    a.e(f"s_lshl_b32 s{sMW}, s{sW}, 11", f"s_add_u32 s{sMX}, s{sMW}, {LX}")
    a.e(f"s_lshl_b32 s{sPS}, s{sTB}, 14", f"s_lshl_b32 s{sT0}, s{sTP}, 1", f"s_add_u32 s{sT0}, s{sT0}, s{sAP}", f"s_lshl_b32 s{sT0}, s{sT0}, 8", f"s_add_u32 s{sPS}, s{sPS}, s{sT0}",
        f"s_add_u32 s{sPS}, s{sPS}, {WS_ST}")
    a.e(f"s_lshl_b32 s{sPC}, s{sJ}, 15", f"s_lshl_b32 s{sT0}, s{sAP}, 2", f"s_lshl_b32 s{sT1}, s{sTP}, 1", f"s_add_u32 s{sT0}, s{sT0}, s{sT1}", f"s_lshl_b32 s{sT0}, s{sT0}, 7",
        f"s_add_u32 s{sPC}, s{sPC}, s{sT0}", f"s_add_u32 s{sPC}, s{sPC}, {WS_CS}")
    a.e("s_waitcnt lgkmcnt(0)")
    srd(a, R_X, 4, 2048 * 1024); srd(a, R_WS, 14, WS_SIZE); srd(a, R_DBG, 12, 256)
    a.e(f"s_cmp_eq_u32 s{sJ}, 14", f"s_cselect_b32 s{R_F}, s8, s10", f"s_cselect_b32 s{R_F+1}, s9, s11", f"s_and_b32 s{R_F+1}, s{R_F+1}, 0xffff",
        f"s_mov_b32 s{R_F+2}, 16384", f"s_mov_b32 s{R_F+3}, 0x20000")
    a.e(f"s_cmp_ge_u32 s{sJ}, 14", "s_cbranch_scc1 g1_qsetup")
    srd(a, R_G, 48, 512 * 3584); srd(a, R_U, 50, 512 * 3584)
    a.e(f"s_mov_b32 s{sT3}, 3584", f"s_lshl_b32 s{sT0}, s{sJ}, 8")
    a.e("v_lshlrev_b32 v21, 4, v21", "v_lshlrev_b32 v22, 4, v22")
    a.e("s_branch g1_setup2")
    a.label("g1_qsetup")
    srd(a, R_G, 6, 512 * 1024); srd(a, R_U, 6, 512 * 1024)
    a.e(f"s_mov_b32 s{sT3}, 1024", f"s_sub_u32 s{sT0}, s{sJ}, 14", f"s_lshl_b32 s{sT0}, s{sT0}, 9")
    a.e("v_lshrrev_b32 v23, 1, v21", "v_lshlrev_b32 v23, 2, v23", "v_and_b32 v21, 1, v21", "v_add_u32 v21, v21, v23", "v_lshlrev_b32 v21, 4, v21")
    a.e("v_lshrrev_b32 v23, 1, v22", "v_lshlrev_b32 v23, 2, v23", "v_and_b32 v22, 1, v22", "v_add_u32 v22, v22, v23", "v_add_u32 v22, 2, v22", "v_lshlrev_b32 v22, 4, v22")
    a.label("g1_setup2")
    a.e(f"v_mul_lo_u32 v20, v20, s{sT3}", f"v_add_u32 v20, s{sT0}, v20", f"v_add_u32 v{vGo}, v20, v21", f"v_add_u32 v{vUo}, v20, v22")
    a.e(f"s_lshl_b32 s{sT1}, s{sT3}, 2", f"s_sub_u32 s{sT1}, s{sT1}, 1024", f"v_add_u32 v{vGo2}, s{sT1}, v{vGo}", f"v_add_u32 v{vUo2}, s{sT1}, v{vUo}")
    a.e(f"s_lshl_b32 s{sSTR}, s{sT3}, 5")
    a.e(f"s_lshl_b32 s{sBK}, s{sW}, 3", f"s_mul_i32 s{sBK}, s{sBK}, s{sT3}")
    def addr_regs():
        a.e("v_and_b32 v20, 15, v0", "v_lshrrev_b32 v21, 2, v20", "v_lshrrev_b32 v22, 4, v0", "v_and_b32 v22, 1, v22",
            "v_lshrrev_b32 v23, 5, v0", "v_lshlrev_b32 v23, 3, v23", "v_add_u32 v23, v23, v21", "v_lshlrev_b32 v23, 8, v23",
            "v_lshlrev_b32 v24, 13, v22", "v_add_u32 v23, v23, v24",
            "v_lshlrev_b32 v22, 2, v22", "v_xor_b32 v21, v21, v22", "v_lshlrev_b32 v21, 5, v21", "v_add_u32 v23, v23, v21",
            "v_and_b32 v21, 3, v0", "v_lshlrev_b32 v21, 3, v21", "v_add_u32 v23, v23, v21")
        a.e(f"s_lshl_b32 s{sT0}, s{sAP}, 2", f"s_lshl_b32 s{sT1}, s{sTP}, 1", f"s_add_u32 s{sT0}, s{sT0}, s{sT1}", f"s_lshl_b32 s{sT0}, s{sT0}, 5")
        a.e(f"v_xor_b32 v{vWA}, s{sT0}, v23")
        for q in range(1, 4): a.e(f"v_xor_b32 v{vWA+q}, {q << 5}, v{vWA}")
        a.e("v_and_b32 v20, 31, v0", "v_lshrrev_b32 v21, 2, v20", "v_and_b32 v21, 3, v21", "v_lshrrev_b32 v22, 5, v0", "v_xor_b32 v21, v21, v22",
            "v_lshlrev_b32 v21, 4, v21", "v_lshlrev_b32 v20, 6, v20", "v_add_u32 v20, v20, v21")
        for t in range(2):
            a.e(f"s_xor_b32 s{sT0}, s{sAP}, {t}", f"s_lshl_b32 s{sT1}, s{sTP}, 1", f"s_add_u32 s{sT0}, s{sT0}, s{sT1}", f"s_lshl_b32 s{sT0}, s{sT0}, 11",
                f"s_add_u32 s{sT0}, s{sT0}, {LX}", f"v_add_u32 v{vXB+2*t}, s{sT0}, v20", f"v_xor_b32 v{vXB+2*t+1}, 32, v{vXB+2*t}")
        a.e("v_and_b32 v20, 15, v0", "v_lshlrev_b32 v20, 3, v20", "v_lshrrev_b32 v21, 5, v0", "v_lshlrev_b32 v21, 8, v21", "v_add_u32 v20, v20, v21",
            f"v_add_u32 v{vFA}, {LF}, v20")
        for r in range(LS, LS + 4): a.e(f"v_mov_b32 v{r}, 0")
        a.e(f"s_mov_b32 s{sMASK}, 0xffff0000")
        a.e("v_and_b32 v20, 15, v0", "v_lshrrev_b32 v21, 4, v0", "v_and_b32 v21, 1, v21", "v_cmp_eq_u32 vcc, v20, v21", f"v_mov_b32 v22, s{sONES}", "s_nop 0",
            f"v_cndmask_b32 v{SEL}, 0, v22, vcc")
        for r in range(1, 4): a.e(f"v_mov_b32 v{SEL+r}, v{SEL}")
    a.e(f"s_cmp_ge_u32 s{sJ}, 14", "s_cbranch_scc1 g1_q")
    for kind in ('f', 'k', 'v'):
        if kind == 'k':
            a.label("g1_q")
            a.e(f"s_cmp_eq_u32 s{sJ}, 15", "s_cbranch_scc1 g1_v")
        if kind == 'v': a.label("g1_v")
        q_type = kind != 'f'
        sc, dma, reads, emit = make(a, kind)
        for st in range(2):
            for it in dma(st): emit(it)
        addr_regs()
        for st in range(2, R):
            for it in dma(st): emit(it)
        g1_main(a, kind, sc, dma, reads, emit)
        NM, RSD = stats_exchange(a, q_type)
        if kind == 'f':
            CS = AF
            for q in range(4): cs_read(a, q, CS + 16 * q)
            finish_stats(a, NM, RSD)
            for t in range(2): a.e(f"v_mul_f32 v{RSD+2*t}, v{RSD+2*t}, v{RSD+2*t}", f"v_mov_b32 v{RSD+2*t+1}, v{RSD+2*t}")
            for t in range(2):
                a.e(f"s_xor_b32 s{sT0}, s{sAP}, {t}", f"s_lshl_b32 s{sT1}, s{sTP}, 1", f"s_add_u32 s{sT0}, s{sT0}, s{sT1}", f"s_lshl_b32 s{sT1}, s{sTB}, 2",
                    f"s_add_u32 s{sT0}, s{sT0}, s{sT1}", f"s_mul_i32 s{sT0}, s{sT0}, {112*1024}", f"s_lshl_b32 s{sT1}, s{sJ}, 13", f"s_add_u32 s{sT0}, s{sT0}, s{sT1}",
                    f"s_add_u32 s{62+t}, s{sT0}, {WS_H}")
            a.e(f"s_lshl_b32 s{sT0}, s{sAP}, 2", f"s_lshl_b32 s{sT1}, s{sTP}, 1", f"s_add_u32 s{sT0}, s{sT0}, s{sT1}", f"s_lshl_b32 s{sT0}, s{sT0}, 10")
            for q in range(4): a.e(f"s_xor_b32 s{64+q}, s{sT0}, {q << 10}")
            k = 0
            for q in range(4):
                for t in range(2):
                    ac = ACC + (q * 2 + t) * 16; cs = CS + 16 * q
                    nm, r2 = NM + 2 * t, RSD + 2 * t
                    for r in range(0, 16, 2): a.e(f"v_pk_fma_f32 {v(ac+r,2)}, {v(cs+r,2)}, {v(nm,2)}, {v(ac+r,2)}")
                    for r in range(8): a.e(f"v_max_f32 v{ac+r}, 0, v{ac+r}")
                    for r in range(0, 8, 2): a.e(f"v_pk_mul_f32 {v(ac+r,2)}, {v(ac+r,2)}, {v(ac+8+r,2)}")
                    for r in range(0, 8, 2): a.e(f"v_pk_mul_f32 {v(ac+r,2)}, {v(ac+r,2)}, {v(r2,2)}")
                    pk = T + 16 + 4 * (k % 3); k += 1
                    for jj in range(4): a.e(f"v_cvt_pk_bf16_f32 v{pk+jj}, v{ac+2*jj}, v{ac+2*jj+1}")
                    a.e(f"s_add_u32 s{sT2}, s{62+t}, s{64+q}")
                    a.e(f"buffer_store_dwordx4 {v(pk,4)}, v{vL16}, {RS}, s{sT2} offen")
        else:
            CS = AF
            a.e(f"s_mov_b32 s{sT3}, {f2u(QSCALE):#x}")
            for half in range(2):
                for q in (2 * half, 2 * half + 1): cs_read(a, q, CS + 16 * (q & 1))
                if half == 0:
                    finish_stats(a, NM, RSD)
                    for t in range(2):
                        a.e(f"v_mov_b32 v{T+12+t}, v{RSD+2*t}", f"v_mul_f32 v{RSD+2*t}, s{sT3}, v{RSD+2*t}", f"v_mov_b32 v{RSD+2*t+1}, v{RSD+2*t}")
                    for t in range(2):
                        a.e(f"s_xor_b32 s{sT0}, s{sAP}, {t}", f"s_lshl_b32 s{sT1}, s{sTP}, 1", f"s_add_u32 s{sT0}, s{sT0}, s{sT1}", f"s_lshl_b32 s{sT1}, s{sTB}, 2",
                            f"s_add_u32 s{sT0}, s{sT0}, s{sT1}", f"s_lshl_b32 s{sT0}, s{sT0}, 15", f"s_sub_u32 s{sT1}, s{sJ}, 14", f"s_lshl_b32 s{sT1}, s{sT1}, 14",
                            f"s_add_u32 s{sT0}, s{sT0}, s{sT1}", f"s_add_u32 s{62+t}, s{sT0}, {WS_Q}")
                    a.e(f"s_lshl_b32 s{sT0}, s{sAP}, 2", f"s_lshl_b32 s{sT1}, s{sTP}, 1", f"s_add_u32 s{sT0}, s{sT0}, s{sT1}", f"s_lshl_b32 s{sT0}, s{sT0}, 11")
                    for q in range(4): a.e(f"s_xor_b32 s{64+q}, s{sT0}, {q << 11}")
                else:
                    a.e("s_waitcnt lgkmcnt(0)")
                k = 0
                for q in (2 * half, 2 * half + 1):
                    for t in range(2):
                        ac = ACC + (q * 2 + t) * 16; cs = CS + 16 * (q & 1)
                        nm, rc = NM + 2 * t, RSD + 2 * t
                        for r in range(0, 16, 2): a.e(f"v_pk_fma_f32 {v(ac+r,2)}, {v(cs+r,2)}, {v(nm,2)}, {v(ac+r,2)}")
                        for r in range(0, 16, 2): a.e(f"v_pk_mul_f32 {v(ac+r,2)}, {v(ac+r,2)}, {v(rc,2)}")
                        pk = BF + 8 * (k % 2); k += 1
                        for jj in range(8): a.e(f"v_cvt_pk_bf16_f32 v{pk+jj}, v{ac+2*jj}, v{ac+2*jj+1}")
                        a.e(f"s_add_u32 s{sT2}, s{62+t}, s{64+q}")
                        a.e(f"buffer_store_dwordx4 {v(pk,4)}, v{vL16}, {RS}, s{sT2} offen")
                        a.e(f"buffer_store_dwordx4 {v(pk+4,4)}, v{vL16}, {RS}, s{sT2} offen offset:1024")
            a.e(f"s_lshl_b32 s{sT0}, s{sTP}, 1", f"s_add_u32 s{sT0}, s{sT0}, s{sAP}", f"s_lshl_b32 s{sT1}, s{sTB}, 2", f"s_add_u32 s{sT3}, s{sT0}, s{sT1}")
            if kind == 'k':
                a.e(f"v_add_u32 v{T+3}, {L_CS + 8*128}, v{T+2}")
                a.e(f"ds_read_b128 {v(CS,4)}, v{T+3}", f"ds_read_b128 {v(CS+4,4)}, v{T+3} offset:32")
                a.e(f"v_mov_b32 v{T+14}, v{T+12}", f"v_mov_b32 v{T+15}, v{T+12}")
                a.e("s_waitcnt lgkmcnt(0)")
                for r in range(0, 8, 2): a.e(f"v_pk_fma_f32 {v(KV+r,2)}, {v(CS+r,2)}, {v(NM,2)}, {v(KV+r,2)}")
                for r in range(0, 8, 2): a.e(f"v_pk_mul_f32 {v(KV+r,2)}, {v(KV+r,2)}, {v(T+14,2)}")
                for jj in range(4): a.e(f"v_cvt_pk_bf16_f32 v{CS+8+jj}, v{KV+2*jj}, v{KV+2*jj+1}")
                a.e(f"s_lshl_b32 s{sT0}, s{sT3}, 10", f"s_add_u32 s{sT0}, s{sT0}, {WS_KF}")
                a.e(f"buffer_store_dwordx4 {v(CS+8,4)}, v{vL16}, {RS}, s{sT0} offen")
            else:
                a.e(f"v_and_b32 v{T}, 60, v{vL4}", f"v_add_u32 v{T}, {L_CS + 8*128}, v{T}", f"ds_read_b32 v{vCF}, v{T}")
                a.e(f"v_cmp_gt_u32 vcc, 128, v{vL4}")
                a.e(f"s_lshl_b32 s{sT0}, s{sW}, 8", f"s_add_u32 s{sT0}, s{sT0}, {L_NR}")
                a.e(f"v_cndmask_b32 v{T+1}, v{T+12}, v{NM}, vcc")
                a.e(f"v_add_u32 v{T}, s{sT0}, v{vL4}", f"ds_write_b32 v{T}, v{T+1}")
                a.e(f"v_add_u32 v{T+3}, s{sT0}, v{T+2}")
                a.e("s_waitcnt lgkmcnt(0)")
                for g in range(4):
                    a.e(f"ds_read_b128 {v(CS+4*g,4)}, v{T+3} offset:{g*32}", f"ds_read_b128 {v(CS+16+4*g,4)}, v{T+3} offset:{128+g*32}")
                a.e("s_waitcnt lgkmcnt(0)")
                for r in range(16): a.e(f"v_fma_f32 v{KV+r}, v{CS+r}, v{vCF}, v{KV+r}")
                for r in range(0, 16, 2): a.e(f"v_pk_mul_f32 {v(KV+r,2)}, {v(KV+r,2)}, {v(CS+16+r,2)}")
                PK2 = BF
                for jj in range(8): a.e(f"v_cvt_pk_bf16_f32 v{PK2+jj}, v{KV+2*jj}, v{KV+2*jj+1}")
                a.e(f"v_and_b32 v{T}, 31, v0", f"v_and_b32 v{T+1}, 27, v0", f"v_cmp_eq_u32 vcc, 16, v{T+1}",
                    f"v_mov_b32 v{T+2}, 0", f"v_mov_b32 v{T+3}, s{sONES}")
                a.e(f"v_cndmask_b32 v{T+2}, v{T+2}, v{T+3}, vcc", f"v_cmp_gt_u32 vcc, 16, v{T}")
                a.nop(2)
                for jj in range(8): a.e(f"v_cndmask_b32 v{PK2+jj}, v{T+2}, v{PK2+jj}, vcc")
                a.e(f"s_lshl_b32 s{sT0}, s{sT3}, 11", f"s_add_u32 s{sT0}, s{sT0}, {WS_VF}")
                a.e(f"buffer_store_dwordx4 {v(PK2,4)}, v{vL16}, {RS}, s{sT0} offen", f"buffer_store_dwordx4 {v(PK2+4,4)}, v{vL16}, {RS}, s{sT0} offen offset:1024")
        if gen.INSTR:
            ts(a, 6); ts(a, 7, True)
            ts_dump(a, 0, 2, sW, R_WS)
        a.e("s_endpgm")
    a.label("g1_end")
    a.e("s_endpgm")
    return name, 256, (256, G1_LDS, 256)

if __name__ == "__main__":
    ks = [gen_g1, gen4.gen_k2, gen3.gen_k3]
    if len(sys.argv) > 1 and sys.argv[1] == "instr":
        gen.INSTR = True
        for k in sys.argv[3:]: KNOB.add(k)
        gen.build(ks, sys.argv[2] if len(sys.argv) > 2 else "v7i.s")
    else:
        gen.build(ks, "v7.s")
```

```python
import sys
import gen
from gen import Asm, v, s, srd, kernel_header, kernel_desc, f2u, check_text, HEADER, QSCALE, NAME
from gen import WS_O, WS_KF, WS_VF, WS_H, WS_SIZE
from gen2 import Sched, MF, KNOB
from gen3 import Stream

FL_KV = 0
FL_H = 0x8000
FL_O = 0xA000
FL_CS = 0xC000
NLOC = 0xE000
FL_ST = 0x10000
WS_ST = 0x20000
WS_CS = 0x28000
WS_TS = 24 << 20
SPIN = 200000

R_GA, R_GB, R_X, R_WS, R_F, R_D, R_O, R_OUT, R_C = 16, 20, 24, 28, 56, 60, 64, 68, 8
RS = f"s[{R_WS}:{R_WS+3}]"
def SR(r): return f"s[{r}:{r+3}]"
sW, sTB, sJ, sTB2, sNB, sT0, sT1, sT2, sT3 = 32, 33, 34, 35, 36, 37, 38, 39, 40
sGK, sSTR, sMW, sK, sV, sKQ, sCH, sNON, sCNT = 41, 42, 43, 44, 45, 46, 47, 72, 73
sLB, sGW, sGB, sKT, sMASK, sONES = 48, 49, 50, 51, 52, 53
sC0, sC1 = 74, 76
sAP, sTP, sGX, sM0, sM1, sMX, sEND, sCG, sRB = 54, 55, 4, 5, 6, 7, 12, 13, 14

R1 = 4
WST = 16640
UPO, QO = 7296, 14464
L_W = 0
L_X = R1 * WST
L_XT = L_X + 3 * 16384
L_F = 3 * WST
L_ST = L_XT + 32768
L_CS = L_ST + 2048
L_CP = L_CS + 2048
L_Q = L_XT
RING = 5
L_AP = 4 * RING * 4096
LDS = L_AP + 8 * 4 * 2304
assert L_CP + 2048 <= LDS

vL16 = 1
vG0, vG1, vX0, vX1 = 2, 3, 4, 5
vXB = 6
vWA = 10
vPK = 18
vPS = 21
vPC = 23
vPCA, vCA = 48, 49
NM, RR, RQ = 50, 54, 58
ST_ = 44
CS = 64
CSL = 104
AF, BF, ACC = 96, 112, 128
XFR, FFR, DK, XU, RED = 64, 80, 192, 224, 192
vKX, vKF, vSW, vSR, vPW, vPR = 208, 212, 213, 214, 215, 216
KVA = 24
vKX, vKF, vSW, vSR, vPW, vPR = KVA, KVA + 4, KVA + 5, KVA + 6, KVA + 7, 32
SA = 33
Q, KF, VF, S, P, O = 8, 24, 32, 48, 80, 96
GA, GB, GACC = 160, 176, 192
NT, NKT = 64, 16

NTS = 11
TSMAP = None
def tsn(a, name):
    if not gen.INSTR: return
    m = TSP if "tsp" in KNOB else (TSL if "tsl" in KNOB else TSD)
    if name in m: ts(a, m[name])
TSD = {"xt": 2, "loop0": 3, "loop1": 4, "att0": 5, "att1": 6, "m7": 7, "m8": 8}
TSP = {"karg": 2, "dma": 3, "xt": 4, "st1": 5, "mf": 6, "loop0": 7, "loop1": 8}
TSL = {"loop0": 2, "k6": 3, "k12": 4, "k18": 5, "k24": 6, "k27": 7, "loop1": 8}
def ts(a, i, real=False):
    if not gen.INSTR: return
    a.e(f"s_memrealtime s[{80+2*i}:{81+2*i}]" if real else f"s_memtime s[{80+2*i}:{81+2*i}]")
def ts_dump(a):
    if not gen.INSTR: return
    ts(a, 9); ts(a, 10, True)
    a.e("s_waitcnt lgkmcnt(0)")
    a.e(f"s_lshl_b32 s78, s2, 3", f"s_add_u32 s78, s78, s{sW}", "s_lshl_b32 s78, s78, 6", f"s_add_u32 s78, s78, {WS_TS}")
    a.e("s_mov_b64 exec, 1", "v_mov_b32 v2, 0")
    for i in range(NTS):
        a.e(f"v_mov_b32 v3, s{80+2*i}", f"buffer_store_dword v3, v2, {RS}, s78 offen offset:{4*i}", "s_nop 1")
    a.e("s_mov_b64 exec, -1")

class Sched2(Sched):
    def __init__(self, a):
        super().__init__(a); self.count = 0
    def vmem(self, ins, tag):
        self.count += 1
        super().vmem(ins, tag)

spins = []
def poll_check(a, name, vP, vAddr, sOff, imm=0):
    back = f"{name}_ok"
    a.e(f"v_cmp_ne_u32 vcc, s{sNON}, v{vP}", f"s_cbranch_vccnz {name}_spin")
    a.label(back)
    spins.append((name, vP, vAddr, sOff, imm))
def emit_spins(a):
    for name, vP, vAddr, sOff, imm in spins:
        a.label(f"{name}_spin")
        a.e(f"s_mov_b32 s{sCNT}, {SPIN}")
        a.label(f"{name}_loop")
        a.e("s_sleep 4", f"buffer_load_dword v{vP}, v{vAddr}, {RS}, {sOff} offen offset:{imm} sc1", "s_waitcnt vmcnt(0)",
            f"v_cmp_ne_u32 vcc, s{sNON}, v{vP}", f"s_cbranch_vccz {name}_ok",
            f"s_sub_u32 s{sCNT}, s{sCNT}, 1", f"s_cmp_lg_u32 s{sCNT}, 0", f"s_cbranch_scc1 {name}_loop", f"s_branch {name}_ok")
    spins.clear()

def post_flag(a, sc, vN, sOff, imm=0):
    a.e("s_mov_b64 exec, 1")
    sc.vmem(f"buffer_store_dword v{vN}, off, {RS}, s{sOff} offset:{imm} sc1", "flag")
    a.e("s_mov_b64 exec, -1")

sCG, sRB = 78, 79
CL0, CL1, CA = 208, 212, 216
CSL = 38
def p1_prologue(a):
    a.e("s_load_dwordx4 s[4:7], s[0:1], 0", "s_load_dwordx4 s[8:11], s[0:1], 16", "s_load_dwordx2 s[12:13], s[0:1], 32",
        "s_load_dwordx4 s[48:51], s[0:1], 48", "s_load_dwordx4 s[52:55], s[0:1], 64", "s_load_dwordx2 s[14:15], s[0:1], 88")
    a.e("v_lshrrev_b32 v20, 6, v0", "v_and_b32 v0, 63, v0")
    a.e(f"s_and_b32 s{sT0}, s2, 7", f"s_lshr_b32 s{sT1}, s2, 3", f"s_lshr_b32 s{sTB}, s{sT0}, 2", f"s_lshl_b32 s{sTB}, s{sTB}, 3", f"s_and_b32 s{sT2}, s{sT1}, 7",
        f"s_add_u32 s{sTB}, s{sTB}, s{sT2}", f"s_and_b32 s{sJ}, s{sT0}, 3", f"s_lshl_b32 s{sJ}, s{sJ}, 2", f"s_lshr_b32 s{sT2}, s{sT1}, 3", f"s_add_u32 s{sJ}, s{sJ}, s{sT2}")
    a.e(f"v_readfirstlane_b32 s{sW}, v20", f"v_lshlrev_b32 v{vL16}, 4, v0")
    a.e(f"s_lshl_b32 s{sTB2}, s{sT0}, 2", f"s_and_b32 s{sT2}, s{sT1}, 3", f"s_add_u32 s{sTB2}, s{sTB2}, s{sT2}", f"s_lshr_b32 s{sNB}, s2, 5")
    for idx, vg in ((0, vG0), (1, vG1)):
        a.e(f"s_lshl_b32 s{sT0}, s{sW}, 1")
        if idx: a.e(f"s_add_u32 s{sT0}, s{sT0}, 1")
        a.e(f"s_sub_u32 s{sT1}, s{sT0}, 7", f"s_cmp_lt_u32 s{sT0}, 7", f"s_cselect_b32 s{sT1}, s{sT0}, s{sT1}", f"s_cselect_b32 s{sT2}, 0, {UPO}",
            f"s_sub_u32 s{sT3}, s{sT0}, 14", f"s_cmp_ge_u32 s{sT0}, 14", f"s_cselect_b32 s{sT1}, s{sT3}, s{sT1}", f"s_cselect_b32 s{sT2}, {QO}, s{sT2}",
            f"s_lshl_b32 s{sT3}, s{sT1}, 10", f"s_add_u32 s{76+idx}, s{sT2}, s{sT3}")
        a.e(f"s_lshl_b32 s{sT1}, s{sT1}, 6", f"v_add_u32 v20, s{sT1}, v0", "v_mul_u32_u24 v21, 4682, v20", "v_lshrrev_b32 v21, 16, v21", "v_mul_u32_u24 v22, 14, v21", "v_sub_u32 v22, v20, v22",
            "v_mul_u32_u24 v21, 3584, v21", "v_lshlrev_b32 v22, 4, v22", "v_add_u32 v21, v21, v22", f"s_mul_i32 s{sT1}, s{sJ}, 224", f"v_add_u32 v21, s{sT1}, v21",
            "v_lshrrev_b32 v22, 2, v20", "v_lshlrev_b32 v22, 10, v22", "v_and_b32 v23, 3, v20", "v_lshlrev_b32 v23, 4, v23", "v_add_u32 v22, v22, v23", f"s_lshl_b32 s{sT1}, s{sJ}, 6", f"v_add_u32 v22, s{sT1}, v22",
            f"s_cmp_eq_u32 s{sW}, 7", "s_cselect_b64 vcc, -1, 0", "s_nop 1", f"v_cndmask_b32 v{vg}, v21, v22, vcc")
    a.e("v_lshrrev_b32 v24, 3, v0", f"s_lshl_b32 s{sT0}, s{sTB}, 7", f"s_lshl_b32 s{sT1}, s{sW}, 4", f"s_add_u32 s{sT0}, s{sT0}, s{sT1}", f"v_add_u32 v24, s{sT0}, v24", "v_lshlrev_b32 v24, 10, v24",
        "v_lshrrev_b32 v25, 4, v0", "v_and_b32 v26, 7, v0", "v_xor_b32 v25, v25, v26", "v_lshlrev_b32 v25, 4, v25", f"v_add_u32 v{vX0}, v24, v25",
        f"v_xor_b32 v{vX1}, 64, v{vX0}", f"v_add_u32 v{vX1}, 8192, v{vX1}")
    a.e(f"s_lshl_b32 s{sT2}, s{sW}, 2", f"s_and_b32 s{sT2}, s{sT2}, 15", f"s_lshl_b32 s{sT2}, s{sT2}, 4", f"v_xor_b32 v28, s{sT2}, v{vL16}",
        "v_xor_b32 v29, 16, v28", "v_xor_b32 v30, 32, v28", "v_xor_b32 v31, 48, v28")
    a.e(f"s_lshr_b32 s{sT0}, s{sTB}, 3", f"s_lshl_b32 s{sT0}, s{sT0}, 5", f"s_lshr_b32 s{sT1}, s2, 3", f"s_add_u32 s{sT0}, s{sT0}, s{sT1}", f"s_and_b32 s{sRB}, s{sT0}, 3", f"s_lshr_b32 s{sT0}, s{sT0}, 2",
        f"s_lshr_b32 s{sT1}, s{sJ}, 2")
    a.e(f"s_mul_i32 s{sT2}, s{sT1}, 7", f"s_add_u32 s{sT2}, s{sT2}, s{sT0}", f"s_mov_b32 s{sCG}, s{sT2}", f"s_mov_b32 s74, 0", f"s_mov_b32 s{sT3}, 3584",
        f"s_cmp_ge_u32 s{sT0}, 7", f"s_cselect_b32 s74, 1, 0", f"s_sub_u32 s75, s{sT2}, 7", f"s_cmp_ge_u32 s{sT0}, 7", f"s_cselect_b32 s{sT2}, s75, s{sT2}",
        f"s_add_u32 s75, s{sT2}, 28", f"s_cmp_ge_u32 s{sT0}, 7", f"s_cselect_b32 s{sCG}, s75, s{sCG}",
        f"s_lshl_b32 s75, s{sT1}, 1", f"s_add_u32 s75, s75, s{sT0}", f"s_sub_u32 s75, s75, 14", f"s_cmp_ge_u32 s{sT0}, 14",
        f"s_cselect_b32 s{sT2}, s75, s{sT2}", f"s_cselect_b32 s74, 2, s74", f"s_cselect_b32 s{sT3}, 1024, s{sT3}", f"s_add_u32 s75, s75, 56", f"s_cmp_ge_u32 s{sT0}, 14", f"s_cselect_b32 s{sCG}, s75, s{sCG}")
    a.e("v_lshrrev_b32 v24, 3, v0", f"s_lshl_b32 s{sT0}, s{sRB}, 7", f"s_lshl_b32 s{sT1}, s{sW}, 4", f"s_add_u32 s{sT0}, s{sT0}, s{sT1}", f"v_add_u32 v24, s{sT0}, v24", f"v_mul_lo_u32 v24, v24, s{sT3}",
        f"s_lshl_b32 s{sT2}, s{sT2}, 7", "v_and_b32 v25, 7, v0", "v_lshlrev_b32 v25, 4, v25", "v_add_u32 v24, v24, v25", f"v_add_u32 v27, s{sT2}, v24", f"s_lshl_b32 s75, s{sT3}, 3")
    a.e("s_waitcnt lgkmcnt(0)")
    tsn(a, "karg")
    srd(a, R_X, 4, 2048 * 1024)
    a.e(f"s_cmp_lt_u32 s{sJ}, 4", f"s_cselect_b32 s{R_F}, s8, s10", f"s_cselect_b32 s{R_F+1}, s9, s11", f"s_and_b32 s{R_F+1}, s{R_F+1}, 0xffff",
        f"s_mov_b32 s{R_F+2}, 16384", f"s_mov_b32 s{R_F+3}, 0x20000")
    for r, lim in ((R_GA, 4), (R_GB, 3)):
        a.e(f"s_cmp_lt_u32 s{sW}, {lim}", f"s_cselect_b32 s{r}, s48, s50", f"s_cselect_b32 s{r+1}, s49, s51", f"s_mov_b32 s{r+2}, {512*3584}",
            f"s_cmp_eq_u32 s{sW}, 7", f"s_cselect_b32 s{r}, s6, s{r}", f"s_cselect_b32 s{r+1}, s7, s{r+1}", f"s_cselect_b32 s{r+2}, {512*1024}, s{r+2}",
            f"s_and_b32 s{r+1}, s{r+1}, 0xffff", f"s_mov_b32 s{r+3}, 0x20000")
    r = R_C
    a.e(f"s_cmp_eq_u32 s74, 0", f"s_cselect_b32 s{r}, s48, s50", f"s_cselect_b32 s{r+1}, s49, s51", f"s_mov_b32 s{r+2}, {512*3584}",
        f"s_cmp_eq_u32 s74, 2", f"s_cselect_b32 s{r}, s6, s{r}", f"s_cselect_b32 s{r+1}, s7, s{r+1}", f"s_cselect_b32 s{r+2}, {512*1024}, s{r+2}",
        f"s_and_b32 s{r+1}, s{r+1}, 0xffff", f"s_mov_b32 s{r+3}, 0x20000")
    srd(a, R_WS, 14, WS_SIZE); srd(a, R_D, 52, 1792 * 1024); srd(a, R_O, 12, 512 * 1024); srd(a, R_OUT, 54, 2048 * 1024)
    a.e(f"s_load_dword s{sNON}, s[14:15], {NLOC:#x}")
    a.e(f"s_mov_b32 s{sM0}, s76", f"s_mov_b32 s{sM1}, s77")
    a.e(f"s_mov_b32 s{sSTR}, {32*3584}", f"s_cmp_eq_u32 s{sW}, 7", f"s_cselect_b32 s{sSTR}, {32*1024}, s{sSTR}", f"s_lshl_b32 s{sEND}, s{sSTR}, 4")
    if "norot" in KNOB:
        a.e(f"s_mov_b32 s{sGK}, 0", f"s_mov_b32 s{sGX}, 0")
    else:
        a.e(f"s_and_b32 s{sT0}, s{sTB}, 7", f"s_lshl_b32 s{sT0}, s{sT0}, 1", f"s_and_b32 s{sT1}, s{sJ}, 3", f"s_lshl_b32 s{sT1}, s{sT1}, 2", f"s_add_u32 s{sT0}, s{sT0}, s{sT1}",
            f"s_and_b32 s{sT0}, s{sT0}, 15", f"s_mul_i32 s{sGK}, s{sT0}, s{sSTR}", f"s_lshl_b32 s{sGX}, s{sT0}, 6")
    a.e(f"s_lshl_b32 s{sMX}, s{sW}, 11", f"s_add_u32 s{sMX}, s{sMX}, {L_X}")
    a.e(f"s_lshr_b32 s{sAP}, s{sW}, 1", f"s_and_b32 s{sTP}, s{sW}, 1", f"s_and_b32 s{sKQ}, s{sW}, 3", f"s_lshr_b32 s{sCH}, s{sW}, 2")
    a.e(f"s_mov_b32 s{sMASK}, 0xffff0000", f"s_mov_b32 s{sONES}, 0x3f803f80")

def emit_items(a, items):
    for it in items:
        if it[0] == 'v': it[1]()
        else: a.e(it[1])

vCPW = 26
def p1_addr(a, kv):
    a.e("v_and_b32 v40, 15, v0", "v_lshrrev_b32 v41, 2, v40", "v_lshrrev_b32 v42, 5, v0", "v_lshlrev_b32 v43, 3, v42", "v_add_u32 v41, v41, v43",
        "v_lshrrev_b32 v43, 4, v0", "v_and_b32 v43, 1, v43", "v_and_b32 v44, 3, v0", "v_lshlrev_b32 v44, 3, v44")
    a.e("v_and_b32 v47, 31, v0", "v_lshlrev_b32 v36, 15, v42")
    for q in range(2):
        a.e(f"s_xor_b32 s{sT0}, s{sTP}, {q}", f"s_lshl_b32 s{sT1}, s{sAP}, 1", f"s_add_u32 s{sT0}, s{sT0}, s{sT1}")
        a.e(f"s_lshl_b32 s{sT1}, s{sT0}, 5", f"s_mov_b32 s{sT2}, 224", f"s_mov_b32 s{sT3}, {UPO}", f"s_cmp_eq_u32 s{sT0}, 7",
            f"s_cselect_b32 s{sT1}, {QO}, s{sT1}", f"s_cselect_b32 s{sT2}, 64, s{sT2}", f"s_cselect_b32 s{sT3}, 32, s{sT3}")
        b = vWA + 4 * q
        a.e(f"v_mul_lo_u32 v45, v41, s{sT2}", f"v_mul_lo_u32 v46, v43, s{sT3}", "v_add_u32 v45, v45, v46", "v_add_u32 v45, v45, v44", f"v_add_u32 v{b}, s{sT1}, v45",
            f"s_lshl_b32 s{sT1}, s{sT2}, 2", f"v_add_u32 v{b+1}, s{sT1}, v{b}", f"s_lshl_b32 s{sT1}, s{sT2}, 4", f"v_add_u32 v{b+2}, s{sT1}, v{b}", f"v_add_u32 v{b+3}, s{sT1}, v{b+1}")
        a.e(f"s_mul_i32 s{sT1}, s{sJ}, 112", f"s_lshl_b32 s{sT2}, s{sT0}, 4", f"s_add_u32 s{sT1}, s{sT1}, s{sT2}", f"s_mov_b32 s{sT2}, 1776",
            f"s_lshl_b32 s{sT3}, s{sJ}, 5", f"s_add_u32 s{sT3}, s{sT3}, 3584", f"s_cmp_eq_u32 s{sT0}, 7", f"s_cselect_b32 s{sT1}, s{sT3}, s{sT1}", f"s_cselect_b32 s{sT2}, 0, s{sT2}")
        d = vCA if q == 0 else 62
        a.e(f"v_mul_lo_u32 v45, v43, s{sT2}", f"v_add_u32 v45, v45, v47", f"v_add_u32 v45, s{sT1}, v45", "v_lshlrev_b32 v45, 2, v45", f"v_add_u32 v{d}, v45, v36")
        a.e(f"s_lshr_b32 s{74+2*q}, s{sT1}, 6", f"s_lshl_b32 s{74+2*q}, s{74+2*q}, 7", f"s_add_u32 s{sT1}, s{sT1}, s{sT2}", f"s_add_u32 s{sT1}, s{sT1}, 16",
            f"s_lshr_b32 s{75+2*q}, s{sT1}, 6", f"s_lshl_b32 s{75+2*q}, s{75+2*q}, 7")
    a.e("v_and_b32 v45, 4, v0", "v_cmp_ne_u32 vcc, 0, v45", "v_mov_b32 v45, s74", "v_mov_b32 v46, s75", "v_cndmask_b32 v45, v45, v46, vcc",
        "v_mov_b32 v46, s76", "v_mov_b32 v37, s77", "v_cndmask_b32 v46, v46, v37, vcc", "v_and_b32 v37, 8, v0", "v_cmp_ne_u32 vcc, 0, v37", "v_and_b32 v37, 3, v0", "v_lshlrev_b32 v37, 2, v37",
        "v_cndmask_b32 v45, v45, v46, vcc", f"v_add_u32 v{vPCA}, v45, v37")
    a.e("v_and_b32 v40, 31, v0", "v_lshrrev_b32 v41, 1, v40", "v_and_b32 v41, 7, v41", "v_xor_b32 v41, v41, v42",
        "v_lshlrev_b32 v41, 4, v41", "v_lshlrev_b32 v45, 7, v40", "v_add_u32 v41, v45, v41")
    a.e(f"s_lshl_b32 s{sT0}, s{sTP}, 13", f"s_add_u32 s{sT0}, s{sT0}, {L_X}", f"v_add_u32 v{vXB}, s{sT0}, v41")
    for k4 in range(1, 4): a.e(f"v_xor_b32 v{vXB+k4}, {k4<<5}, v{vXB}")
    a.e("v_and_b32 v41, 3, v0", "v_cmp_eq_u32 vcc, 3, v41", "v_subrev_u32 v43, 3, v0", "s_nop 0", "v_cndmask_b32 v43, v0, v43, vcc", "v_lshlrev_b32 v43, 2, v43",
        f"s_lshl_b32 s{sT0}, s{sKQ}, 8", f"s_and_b32 s{sT1}, s2, 31", f"s_lshl_b32 s{sT1}, s{sT1}, 10", f"s_add_u32 s{sT0}, s{sT0}, s{sT1}", f"v_add_u32 v{vPK+1}, s{sT0}, v43")
    a.e(f"s_lshl_b32 s{sT0}, s{sTB}, 11", f"s_lshl_b32 s{sT1}, s{sJ}, 7", f"s_add_u32 s{sT0}, s{sT0}, s{sT1}", f"s_lshl_b32 s{sT1}, s{sTP}, 3", f"s_add_u32 s{sT0}, s{sT0}, s{sT1}",
        "v_and_b32 v41, 1, v0", "v_lshlrev_b32 v41, 2, v41", f"v_add_u32 v{vPS+1}, s{sT0}, v41")
    a.e("v_and_b32 v41, 7, v0", "v_lshlrev_b32 v41, 3, v41", "v_lshlrev_b32 v43, 1, v42", "v_add_u32 v41, v41, v43", "v_lshrrev_b32 v43, 4, v0", "v_and_b32 v43, 1, v43", "v_add_u32 v41, v41, v43",
        "v_lshlrev_b32 v41, 2, v41", f"s_lshl_b32 s{sT0}, s{sW}, 8", f"s_add_u32 s{sT0}, s{sT0}, {L_CP}", f"v_add_u32 v63, s{sT0}, v41")
    if kv:
        a.e("v_and_b32 v41, 15, v0", f"s_lshl_b32 s{sT0}, s{sW}, 3", f"v_add_u32 v43, s{sT0}, v42", "v_xor_b32 v43, v43, v41",
            "v_lshlrev_b32 v43, 4, v43", "v_lshlrev_b32 v44, 10, v40", "v_add_u32 v43, v43, v44", f"v_add_u32 v{vKX}, {L_XT}, v43")
        for st in range(1, 4): a.e(f"v_xor_b32 v{vKX+st}, {st<<5}, v{vKX}")
        a.e(f"s_lshl_b32 s{sT2}, s{sW}, 11", f"s_add_u32 s{sT0}, s{sT2}, {L_F}", "v_lshlrev_b32 v43, 8, v42", "v_lshlrev_b32 v44, 3, v41", "v_add_u32 v43, v43, v44", f"v_add_u32 v{vKF}, s{sT0}, v43")
        a.e(f"s_lshl_b32 s{sT0}, s{sW}, 8", f"s_add_u32 s{sT0}, s{sT0}, {L_ST}", "v_lshlrev_b32 v43, 2, v0", f"v_add_u32 v{vSW}, s{sT0}, v43", "v_lshlrev_b32 v43, 2, v40", f"v_add_u32 v{vSR}, {L_ST}, v43",
            f"v_add_u32 v37, 128, v{vSR}")
        if kv == "K":
            a.e(f"s_add_u32 s{sT0}, s{sT2}, {L_XT}", f"v_add_u32 v{vPW}, s{sT0}, v{vL16}", f"v_add_u32 v{vPR}, {L_XT}, v{vL16}")
        else:
            a.e("v_lshlrev_b32 v43, 4, v42", "v_add_u32 v43, v43, v41", "v_lshlrev_b32 v43, 4, v43", f"s_add_u32 s{sT0}, s{sT2}, {L_XT}", f"v_add_u32 v{vPW}, s{sT0}, v43",
                f"s_lshl_b32 s{sT0}, s{sW}, 10", f"s_add_u32 s{sT0}, s{sT0}, {L_XT}", f"v_add_u32 v{vPR}, s{sT0}, v43")

def post_lanes(a, nl, vaddr, soff):
    if nl == 1:
        a.e("s_mov_b64 exec, 1", f"buffer_store_dword v{vPK+2}, off, {RS}, s{soff} sc1", "s_mov_b64 exec, -1")
    else:
        a.e(f"s_mov_b32 exec_lo, {(1 << nl) - 1:#x}", "s_mov_b32 exec_hi, 0", f"buffer_store_dword v{vPK+2}, v{vaddr}, {RS}, s{soff} offen sc1", "s_mov_b64 exec, -1")

def p1_main(a, sc, kv):
    pf = f"p1{kv or 'N'}"
    def wdma(st):
        b = st % R1
        V_ = lambda x: ('v', lambda: sc.vmem(x, f"st{st}"))
        return [('s', f"s_add_u32 m0, s{sM0}, {b*WST}"), ('s', f"s_add_u32 s{sT3}, s{sM1}, {b*WST}"),
                V_(f"buffer_load_dwordx4 v{vG0}, {SR(R_GA)}, s{sGK} offen lds"),
                ('s', f"s_mov_b32 m0, s{sT3}"), ('s', f"s_add_u32 s{sT1}, s{sGK}, s{sSTR}"),
                V_(f"buffer_load_dwordx4 v{vG1}, {SR(R_GB)}, s{sGK} offen lds"),
                ('s', f"s_cmp_eq_u32 s{sT1}, s{sEND}"), ('s', f"s_cselect_b32 s{sGK}, 0, s{sT1}")]
    def xdma(u, e, tag):
        if u > 7: return []
        it = [('s', f"s_add_u32 m0, s{sMX}, {(u%3)*16384 + e*1024}"), ('s', "s_nop 0"),
              ('v', lambda: sc.vmem(f"buffer_load_dwordx4 v{vX1 if e else vX0}, {SR(R_X)}, s{sGX} offen lds", tag))]
        if e: it += [('s', f"s_add_u32 s{sGX}, s{sGX}, 128"), ('s', f"s_and_b32 s{sGX}, s{sGX}, 1023")]
        return it
    def dma(st, w=True):
        if st >= 16: return []
        it = wdma(st) if w else []
        if st == 0: it += xdma(0, 0, "st0") + xdma(0, 1, "st0")
        else: it += xdma((st + 1) // 2, (st + 1) & 1, f"st{st}")
        return it
    if kv:
        a.e(f"s_and_b32 s{sT0}, s{sJ}, 3", f"s_lshl_b32 s{sT0}, s{sT0}, 15", f"s_lshl_b32 s{sT1}, s{sTB}, 17", f"s_add_u32 s{sT0}, s{sT0}, s{sT1}",
            f"s_lshl_b32 s{sT1}, s{sW}, 12", f"s_add_u32 s{sT0}, s{sT0}, s{sT1}", f"s_add_u32 m0, s{sT1}, {L_XT}", f"s_lshl_b32 s{sT2}, s{sW}, 11")
    emit0 = dma(0)
    if kv:
        pass
    if kv:
        for r in range(4):
            sc.vmem(f"buffer_load_dwordx4 v{28+r}, {SR(R_X)}, s{sT0} offen offset:{r*1024} lds", "xt")
        a.e(f"s_add_u32 m0, s{sT2}, {L_F}", "s_nop 0")
        sc.vmem(f"buffer_load_dwordx4 v{vL16}, {SR(R_F)}, s{sT2} offen lds", "xt")
        sc.vmem(f"buffer_load_dwordx4 v{vL16}, {SR(R_F)}, s{sT2} offen offset:1024 lds", "xt")
    emit_items(a, emit0)
    a.e("s_barrier")
    sc.vmem(f"buffer_load_dwordx4 {v(CL0,4)}, v27, {SR(R_C)}, 0 offen", "cs")
    sc.vmem(f"buffer_load_dwordx4 {v(CL1,4)}, v27, {SR(R_C)}, s75 offen", "cs")
    emit_items(a, dma(1)); emit_items(a, dma(2))
    if kv: emit_items(a, dma(3, w=False))
    else: emit_items(a, dma(3))
    tsn(a, "dma")
    p1_addr(a, kv)
    def reads(k):
        if k >= 32: return []
        st, ks, bs = k // 2, k & 1, k & 1
        b = st % R1
        u, k4 = k // 4, k & 3
        it = []
        L_ = lambda x: it.append(('v', lambda: sc.lds(x, f"k{k}")))
        for t in range(2):
            L_(f"ds_read_b128 {v(BF+8*bs+4*t,4)}, v{vXB+k4} offset:{(u%3)*16384 + t*4096}")
        for q in range(2):
            r = AF + 8 * bs + 4 * q
            L_(f"ds_read_b64_tr_b16 {v(r,2)}, v{vWA+4*q+2*ks} offset:{b*WST}")
            L_(f"ds_read_b64_tr_b16 {v(r+2,2)}, v{vWA+4*q+2*ks+1} offset:{b*WST}")
        return it
    a.e("s_waitcnt lgkmcnt(0)")
    a.e(f"s_mul_i32 s{sNON}, s{sNON}, 1664525", f"s_add_u32 s{sNON}, s{sNON}, 1013904223")
    sc.wait_vm("st0")
    a.e(f"v_mov_b32 v{vPK+2}, s{sNON}", "s_barrier")
    emit_items(a, reads(0))
    tsn(a, "loop0")
    xva = {k: [] for k in range(32)}; xld = {k: [] for k in range(32)}; xmf = {k: [] for k in range(32)}
    prebar = {k: [] for k in range(32)}; postbar = {k: [] for k in range(32)}; blk = {k: [] for k in range(32)}; top = {k: [] for k in range(32)}
    marks = {}
    def spread(ops, ks):
        n = len(ops); per = (n + len(ks) - 1) // len(ks)
        for i, k in enumerate(ks): xva[k] += ops[i * per:(i + 1) * per]
    top[1].append(lambda: sc.wait_vm("cs"))
    ops = []
    for d in range(4): ops += [f"v_lshlrev_b32 v{CA+2*d}, 16, v{CL0+d}", f"v_and_b32 v{CA+2*d+1}, s{sMASK}, v{CL0+d}"]
    for d in range(4):
        ops += [f"v_lshlrev_b32 v46, 16, v{CL1+d}", f"v_and_b32 v47, s{sMASK}, v{CL1+d}", f"v_add_f32 v{CA+2*d}, v{CA+2*d}, v46", f"v_add_f32 v{CA+2*d+1}, v{CA+2*d+1}, v47"]
    ops2 = ["s_nop 1"] + [f"v_permlane16_swap_b32 v{CA+2*d}, v{CA+2*d+1}" for d in range(4)] + [f"v_add_f32 v{CA+2*d}, v{CA+2*d}, v{CA+2*d+1}" for d in (2, 3, 0, 1)]
    ops2 += ["s_nop 0", f"v_permlane32_swap_b32 v{CA+4}, v{CA+6}", f"v_permlane32_swap_b32 v{CA}, v{CA+2}", "s_nop 0", f"v_add_f32 v{CA+4}, v{CA+4}, v{CA+6}", f"v_add_f32 v{CA}, v{CA}, v{CA+2}", "s_nop 1",
             f"v_add_f32_dpp v{CA+4}, v{CA+4}, v{CA+4} row_ror:8 row_mask:0xf bank_mask:0xf", f"v_add_f32_dpp v{CA}, v{CA}, v{CA} row_ror:8 row_mask:0xf bank_mask:0xf"]
    xva[1] += ops; xva[2] += ops2
    def cpw():
        sc.lds(f"ds_write_b32 v63, v{CA}", "cpw"); sc.lds(f"ds_write_b32 v63, v{CA+4} offset:16", "cpw")
    blk[2].append(cpw)
    prebar[3].append(lambda: sc.wait_lg("cpw"))
    def csfin():
        a.e(f"s_cmp_lg_u32 s{sW}, 3", f"s_cbranch_scc1 {pf}_ncf")
        a.e("v_lshlrev_b32 v63, 2, v0", f"v_add_u32 v46, {L_CP}, v63")
        for wp in range(0, 8, 2): a.e(f"ds_read2st64_b32 {v(CA+wp,2)}, v46 offset0:{wp} offset1:{wp+1}")
        a.e(f"s_lshl_b32 s{sT0}, s{sRB}, 14", f"s_lshl_b32 s{sT1}, s{sCG}, 8", f"s_add_u32 s{sT0}, s{sT0}, s{sT1}", f"s_add_u32 s{sT0}, s{sT0}, {WS_CS}")
        a.e("s_waitcnt lgkmcnt(0)")
        for st in (4, 2, 1):
            for wp in range(st): a.e(f"v_add_f32 v{CA+wp}, v{CA+wp}, v{CA+wp+st}")
        a.e(f"buffer_store_dword v{CA}, v63, {RS}, s{sT0} offen sc1")
        a.label(f"{pf}_ncf")
        marks["cs"] = sc.count
    blk[4].append(csfin)
    def csflag():
        ny = sc.count - marks["cs"]
        a.e(f"s_cmp_lg_u32 s{sW}, 3", f"s_cbranch_scc1 {pf}_ncg")
        a.e(f"s_lshl_b32 s{sT0}, s{sCG}, 7", f"s_lshl_b32 s{sT1}, s{sRB}, 2", f"s_add_u32 s{sT0}, s{sT0}, s{sT1}", f"s_add_u32 s{sT0}, s{sT0}, {FL_CS}", f"s_waitcnt vmcnt({ny})")
        post_lanes(a, 1, None, sT0)
        a.label(f"{pf}_ncg")
    blk[8].append(csflag)
    if kv:
        for st in range(4): xld[0].append(('v', lambda st=st: sc.lds(f"ds_read_b128 {v(XFR+4*st,4)}, v{vKX+st}", "kx")))
        for st in range(4):
            xld[0].append(('v', lambda st=st: sc.lds(f"ds_read_b64_tr_b16 {v(FFR+4*st,2)}, v{vKF} offset:{st*512}", "kf")))
            xld[0].append(('v', lambda st=st: sc.lds(f"ds_read_b64_tr_b16 {v(FFR+4*st+2,2)}, v{vKF} offset:{st*512+128}", "kf")))
        prebar[1].append(lambda: sc.wait_lg("kf"))
        ops = [f"v_mov_b32 v{SA+i}, 0" for i in range(4)]
        for i in range(16):
            lo, hi = XU + 2 * i, XU + 2 * i + 1
            ops += [f"v_lshlrev_b32 v{lo}, 16, v{XFR+i}", f"v_and_b32 v{hi}, s{sMASK}, v{XFR+i}", f"v_add_f32 v{SA}, v{SA}, v{lo}", f"v_add_f32 v{SA+1}, v{SA+1}, v{hi}",
                    f"v_fma_f32 v{SA+2}, v{lo}, v{lo}, v{SA+2}", f"v_fma_f32 v{SA+3}, v{hi}, v{hi}, v{SA+3}"]
        ops += [f"v_add_f32 v{SA}, v{SA}, v{SA+1}", f"v_add_f32 v{SA+2}, v{SA+2}, v{SA+3}", "s_nop 1", f"v_permlane32_swap_b32 v{SA}, v{SA+2}", "s_nop 0", f"v_add_f32 v{SA}, v{SA}, v{SA+2}"]
        spread(ops, (3, 4, 5, 6))
        blk[6].append(lambda: sc.lds(f"ds_write_b32 v{vSW}, v{SA}", "stw"))
        prebar[7].append(lambda: sc.wait_lg("stw"))
        SR_, SQ_ = 38, DK
        for wp in range(0, 8, 2):
            postbar[7].append(('v', lambda wp=wp: sc.lds(f"ds_read2st64_b32 {v(SR_+wp,2)}, v{vSR} offset0:{wp} offset1:{wp+1}", "str")))
            postbar[7].append(('v', lambda wp=wp: sc.lds(f"ds_read2st64_b32 {v(SQ_+wp,2)}, v37 offset0:{wp} offset1:{wp+1}", "str")))
        top[8].append(lambda: sc.wait_lg("str"))
        ops = []
        for st in (4, 2, 1):
            for wp in range(st): ops += [f"v_add_f32 v{SR_+wp}, v{SR_+wp}, v{SR_+wp+st}", f"v_add_f32 v{SQ_+wp}, v{SQ_+wp}, v{SQ_+wp+st}"]
        m, q2, nm, rs, nb = SR_, SR_ + 1, SR_ + 2, SR_ + 3, SR_ + 4
        ops += [f"v_mul_f32 v{m}, {f2u(1/512):#x}, v{m}", f"v_mul_f32 v{q2}, {f2u(1/512):#x}, v{SQ_}", f"v_fma_f32 v{q2}, -v{m}, v{m}, v{q2}", f"v_max_f32 v{q2}, 0, v{q2}",
                f"v_add_f32 v{q2}, {f2u(1e-5):#x}, v{q2}", f"v_rsq_f32 v{rs}, v{q2}", f"v_sub_f32 v{nm}, 0, v{m}", "s_nop 0", f"v_mul_f32 v{nb}, v{nm}, v{rs}"]
        n1 = len(ops)
        for i in range(16):
            lo, hi = XU + 2 * i, XU + 2 * i + 1
            ops += [f"v_fma_f32 v{lo}, v{lo}, v{rs}, v{nb}", f"v_fma_f32 v{hi}, v{hi}, v{rs}, v{nb}", f"v_cvt_pk_bf16_f32 v{XFR+i}, v{lo}, v{hi}"]
        spread(ops, (8, 9, 10))
        assert n1 <= (len(ops) + 2) // 3
        for st in range(4):
            A_, B_ = (FFR, XFR) if kv == "K" else (XFR, FFR)
            xmf[11].append(f"{MF} {v(DK,16)}, {v(A_+4*st,4)}, {v(B_+4*st,4)}, {'0' if st == 0 else v(DK,16)}")
        def pw():
            if kv == "K":
                sc.lds(f"ds_write_b128 v{vPW}, {v(DK,4)}", "pw"); sc.lds(f"ds_write_b128 v{vPW}, {v(DK+4,4)} offset:1024", "pw")
            else:
                for qd in range(4): sc.lds(f"ds_write_b128 v{vPW}, {v(DK+4*qd,4)} offset:{qd*512}", "pw")
        blk[12].append(pw)
        prebar[13].append(lambda: sc.wait_lg("pw"))
        if kv == "K":
            def stpub():
                a.e(f"s_cmp_lg_u32 s{sW}, 2", f"s_cbranch_scc1 {pf}_nost")
                a.e(f"s_and_b32 s{sT0}, s{sJ}, 3", f"s_lshl_b32 s{sT1}, s{sTB}, 2", f"s_add_u32 s{sT1}, s{sT1}, s{sT0}",
                    f"s_lshl_b32 s{sT0}, s{sT1}, 8", f"s_add_u32 s{sT0}, s{sT0}, {WS_ST}", "v_and_b32 v46, 31, v0", "v_lshlrev_b32 v46, 3, v46")
                a.e(f"buffer_store_dwordx2 {v(nm,2)}, v46, {RS}, s{sT0} offen sc1")
                a.label(f"{pf}_nost")
                marks["st"] = sc.count
            blk[8].append(stpub)
            def stflag():
                ny = sc.count - marks["st"]
                a.e(f"s_cmp_lg_u32 s{sW}, 2", f"s_cbranch_scc1 {pf}_nsf")
                a.e(f"s_lshl_b32 s{sT0}, s{sTB}, 11", f"s_and_b32 s{sT1}, s{sJ}, 3", f"s_lshl_b32 s{sT1}, s{sT1}, 2", f"s_add_u32 s{sT0}, s{sT0}, s{sT1}", f"s_add_u32 s{sT0}, s{sT0}, {FL_ST}",
                    f"v_lshlrev_b32 v46, 3, v{vL16}", f"s_waitcnt vmcnt({ny})")
                post_lanes(a, 16, 46, sT0)
                a.label(f"{pf}_nsf")
            blk[12].append(stflag)
        nred = 1 if kv == "K" else 2
        def red1():
            a.e(f"s_cmp_ge_u32 s{sW}, {nred}", f"s_cbranch_scc1 {pf}_nr1")
            for wp in range(8):
                a.e(f"ds_read_b128 {v(RED+8*wp,4)}, v{vPR} offset:{wp*2048}", f"ds_read_b128 {v(RED+8*wp+4,4)}, v{vPR} offset:{wp*2048 + (1024 if kv == 'K' else 512)}")
                if wp == 3: a.e("s_waitcnt lgkmcnt(4)")
            a.label(f"{pf}_nr1")
        blk[14].append(red1)
        def red2():
            a.e(f"s_cmp_ge_u32 s{sW}, {nred}", f"s_cbranch_scc1 {pf}_nr2")
            for st in (4, 2, 1):
                for wp in range(st):
                    for r in range(8): a.e(f"v_add_f32 v{RED+8*wp+r}, v{RED+8*wp+r}, v{RED+8*(wp+st)+r}")
            for j in range(4): a.e(f"v_cvt_pk_bf16_f32 v{RED+8+j}, v{RED+2*j}, v{RED+2*j+1}")
            a.e(f"s_and_b32 s{sT0}, s{sJ}, 3", f"s_lshl_b32 s{sT1}, s{sTB}, 2", f"s_add_u32 s{sT1}, s{sT1}, s{sT0}")
            if kv == "K":
                a.e(f"s_lshl_b32 s{sT0}, s{sT1}, 10", f"s_add_u32 s{sT0}, s{sT0}, {WS_KF}")
                a.e(f"buffer_store_dwordx4 {v(RED+8,4)}, v{vL16}, {RS}, s{sT0} offen sc1")
            else:
                a.e("v_and_b32 v46, 31, v0", "v_and_b32 v47, 27, v0", "v_cmp_eq_u32 vcc, 16, v47", f"v_mov_b32 v{RED+16}, 0", f"v_mov_b32 v{RED+17}, s{sONES}",
                    f"v_cndmask_b32 v{RED+16}, v{RED+16}, v{RED+17}, vcc", "v_cmp_gt_u32 vcc, 16, v46", "s_nop 1")
                for j in range(4): a.e(f"v_cndmask_b32 v{RED+8+j}, v{RED+16}, v{RED+8+j}, vcc")
                a.e(f"s_lshl_b32 s{sT0}, s{sT1}, 11", f"s_lshl_b32 s{sT2}, s{sW}, 10", f"s_add_u32 s{sT0}, s{sT0}, s{sT2}", f"s_add_u32 s{sT0}, s{sT0}, {WS_VF}")
                a.e(f"buffer_store_dwordx4 {v(RED+8,4)}, v{vL16}, {RS}, s{sT0} offen sc1")
            a.label(f"{pf}_nr2")
            marks["kv"] = sc.count
        blk[15].append(red2)
        def kvflag():
            ny = sc.count - marks["kv"]
            a.e(f"s_cmp_ge_u32 s{sW}, {nred}", f"s_cbranch_scc1 {pf}_nkf")
            a.e(f"s_and_b32 s{sT0}, s{sJ}, 3", f"s_lshl_b32 s{sT1}, s{sTB}, 2", f"s_add_u32 s{sT1}, s{sT1}, s{sT0}", f"s_lshl_b32 s{sT0}, s{sT1}, 4")
            if kv == "V": a.e(f"s_lshl_b32 s{sT2}, s{sW}, 2", f"s_add_u32 s{sT0}, s{sT0}, s{sT2}", f"s_add_u32 s{sT0}, s{sT0}, 4")
            if FL_KV: a.e(f"s_add_u32 s{sT0}, s{sT0}, {FL_KV}")
            a.e(f"v_lshlrev_b32 v46, 6, v{vL16}", f"s_waitcnt vmcnt({ny})")
            post_lanes(a, 32, 46, sT0)
            a.label(f"{pf}_nkf")
        blk[19].append(kvflag)
    xld[22].append(('s', f"s_mov_b32 s{sT2}, {FL_ST}"))
    xld[22].append(('v', lambda: sc.vmem(f"buffer_load_dword v{vPS}, v{vPS+1}, {RS}, s{sT2} offen sc1", "pst")))
    xld[22].append(('s', f"s_mov_b32 s{sT2}, {FL_CS}"))
    xld[22].append(('v', lambda: sc.vmem(f"buffer_load_dword v{vPC}, v{vPCA}, {RS}, s{sT2} offen sc1", "pcs")))
    def chk():
        sc.wait_vm(["pst", "pcs"])
        a.e(f"s_mov_b32 s{sT2}, {FL_ST}")
        poll_check(a, f"pst{pf}", vPS, vPS + 1, f"s{sT2}")
        a.e(f"s_mov_b32 s{sT2}, {FL_CS}")
        poll_check(a, f"pcs{pf}", vPC, vPCA, f"s{sT2}")
        a.e(f"s_lshl_b32 s{sT0}, s{sTB}, 2", f"s_lshl_b32 s{sT1}, s{sTP}, 1", f"s_add_u32 s{sT0}, s{sT0}, s{sT1}", f"s_lshl_b32 s{sT0}, s{sT0}, 8", f"s_add_u32 s{sT0}, s{sT0}, {WS_ST}",
            "v_and_b32 v21, 31, v0", "v_lshlrev_b32 v21, 3, v21", f"s_mov_b32 s{sT1}, {WS_CS}", f"s_mov_b32 s{sT2}, {WS_CS + 16384}")
        sc.vmem(f"buffer_load_dwordx2 {v(ST_,2)}, v21, {RS}, s{sT0} offen sc1", "stl")
        sc.vmem(f"buffer_load_dwordx2 {v(ST_+2,2)}, v21, {RS}, s{sT0} offen offset:256 sc1", "stl")
        for q, ad in ((0, vCA), (1, 62)):
            sc.vmem(f"buffer_load_dword v{CSL+2*q}, v{ad}, {RS}, s{sT1} offen sc1", "csl")
            sc.vmem(f"buffer_load_dword v{CSL+2*q+1}, v{ad}, {RS}, s{sT2} offen sc1", "csl")
    top[25].append(chk)
    xld[26].append(('v', lambda: sc.vmem(f"buffer_load_dword v{vPK}, v{vPK+1}, {RS}, 0 offen offset:{FL_KV} sc1", "pkv")))
    top[28].append(lambda: sc.wait_vm("csl"))
    xva[28] += [f"v_add_f32 v{CSL}, v{CSL}, v{CSL+1}", f"v_add_f32 v{CSL+2}, v{CSL+2}, v{CSL+3}", f"v_mov_b32 v{CSL+1}, v{CSL}", f"v_mov_b32 v{CSL+3}, v{CSL+2}",
                f"s_lshl_b32 s{sT0}, s{sW}, 8", f"s_add_u32 s{sT0}, s{sT0}, {L_CS}", "v_and_b32 v42, 31, v0", "v_lshlrev_b32 v42, 2, v42",
                f"v_permlane32_swap_b32 v{CSL}, v{CSL+1}", f"v_permlane32_swap_b32 v{CSL+2}, v{CSL+3}", f"v_add_u32 v42, s{sT0}, v42", "v_lshrrev_b32 v43, 5, v0", "v_lshlrev_b32 v43, 4, v43",
                f"v_add_f32 v{CSL}, v{CSL}, v{CSL+1}", f"v_add_f32 v{CSL+2}, v{CSL+2}, v{CSL+3}", f"v_add_u32 v43, s{sT0}, v43"]
    s_qs = f2u(QSCALE)
    for t in range(2):
        xva[28] += [f"v_mov_b32 v{NM+2*t}, v{ST_+2*t}", f"v_mov_b32 v{NM+2*t+1}, v{ST_+2*t}", f"v_mul_f32 v{RR+2*t}, v{ST_+2*t+1}, v{ST_+2*t+1}", f"v_mul_f32 v{RQ+2*t}, {s_qs:#x}, v{ST_+2*t+1}",
                    f"v_mov_b32 v{RR+2*t+1}, v{RR+2*t}", f"v_mov_b32 v{RQ+2*t+1}, v{RQ+2*t}"]
    def csr():
        sc.lds(f"ds_write_b32 v42, v{CSL}", "csw"); sc.lds(f"ds_write_b32 v42, v{CSL+2} offset:128", "csw")
        for q in range(2):
            for g in range(4): sc.lds(f"ds_read_b128 {v(CS+16*q+4*g,4)}, v43 offset:{q*128+g*32}", "csr")
    blk[28].append(csr)
    def kvld():
        sc.wait_vm("pkv")
        poll_check(a, f"pkv{pf}", vPK, vPK + 1, "0", FL_KV)
        a.e(f"s_lshl_b32 s{sK}, s{sKQ}, 14", f"s_add_u32 s{sK}, s{sK}, {WS_KF}", f"s_lshl_b32 s{sV}, s{sKQ}, 15", f"s_add_u32 s{sV}, s{sV}, {WS_VF}")
        sc.vmem(f"buffer_load_dwordx4 {v(KF,4)}, v{vL16}, {RS}, s{sK} offen sc1", "K0")
        sc.vmem(f"buffer_load_dwordx4 {v(VF,4)}, v{vL16}, {RS}, s{sV} offen sc1", "V0")
        sc.vmem(f"buffer_load_dwordx4 {v(VF+4,4)}, v{vL16}, {RS}, s{sV} offen offset:1024 sc1", "V0")
        sc.vmem(f"buffer_load_dwordx4 {v(KF+4,4)}, v{vL16}, {RS}, s{sK} offen offset:1024 sc1", "K1")
    blk[30].append(kvld)
    a.raw(".p2align 3")
    pending = []
    for k in range(32):
        bs = k & 1
        tsn(a, f"k{k}")
        sc.wait_lg(f"k{k}")
        for f in top[k]: f()
        newstage = (k & 1) and k + 1 < 32
        mf = []
        for q in range(2):
            for t in range(2):
                ac = ACC + (q * 2 + t) * 16
                mf.append(f"{MF} {v(ac,16)}, {v(AF+8*bs+4*q,4)}, {v(BF+8*bs+4*t,4)}, {'0' if k == 0 else v(ac,16)}")
        va = list(xva[k])
        if newstage:
            i = (k + 1) // 2
            q1 = []; q2 = reads(k + 1) + postbar[k]
            nd = dma(i + R1 - 1)
            if kv and i == 1: nd = wdma(3) + nd
        else:
            q1 = reads(k + 1) + pending + xld[k]; pending = []; q2 = []
            assert not postbar[k] and not prebar[k]
        if newstage: assert not xld[k]
        n = 4
        if newstage: per = [0, 0] + [(len(q2) + 1) // 2, len(q2) // 2]
        else: per = [(len(q1) + n - 1 - i) // n for i in range(n)]
        perv = [(len(va) + n - 1 - i) // n for i in range(n)]
        for i in range(n):
            if i == 2 and newstage:
                for f in prebar[k]: f()
                sc.wait_vm(f"st{(k+1)//2}")
                a.e("s_barrier")
            a.e(mf[i])
            qq_ = q2 if newstage else q1
            for _ in range(per[i]): emit_items(a, [qq_.pop(0)])
            for _ in range(perv[i]): a.e(va.pop(0))
        for m_ in xmf[k]: a.e(m_)
        for f in blk[k]: f()
        if newstage: pending = nd
    tsn(a, "loop1")

def phase1(a):
    p1_prologue(a)
    a.e(f"s_cmp_lt_u32 s{sJ}, 4", "s_cbranch_scc1 p1_K", f"s_cmp_lt_u32 s{sJ}, 8", "s_cbranch_scc1 p1_V")
    states = []
    for kv in (None, "K", "V"):
        if kv: a.label(f"p1_{kv}")
        sc = Sched2(a)
        p1_main(a, sc, kv)
        states.append((list(sc.vm), list(sc.lg)))
        if kv != "V": a.e("s_branch p1_done")
    a.label("p1_done")
    vms = [s_[0] for s_ in states]
    tail = min(vms, key=len)
    for x in vms: assert x[len(x) - len(tail):] == tail, vms
    sc = Sched2(a); sc.vm = list(tail); sc.lg = []
    return sc

def boundary(a, sc):
    a.e(f"s_lshl_b32 s{sT0}, s{sTB}, 2", f"s_lshl_b32 s{sT1}, s{sTP}, 1", f"s_add_u32 s{sT0}, s{sT0}, s{sT1}", f"s_mul_i32 s{sT0}, s{sT0}, {112*1024}",
        f"s_mul_i32 s{sT1}, s{sJ}, {7*1024}", f"s_add_u32 s{sT0}, s{sT0}, s{sT1}", f"s_add_u32 s74, s{sT0}, {WS_H}", f"s_add_u32 s75, s74, {112*1024}")
    a.e("s_waitcnt lgkmcnt(0)")
    PKR = AF
    for q in range(2):
        lq, ld = f"pb_q{q}", f"pb_d{q}"
        a.e(f"s_xor_b32 s{sT0}, s{sTP}, {q}", f"s_lshl_b32 s{sT1}, s{sAP}, 1", f"s_add_u32 s{sT0}, s{sT0}, s{sT1}", f"s_lshl_b32 s{sT2}, s{sT0}, 10")
        if q == 0: a.nop(4)
        for t in range(2):
            ac = ACC + (q * 2 + t) * 16; cs = CS + 16 * q
            for r in range(0, 16, 2): a.e(f"v_pk_fma_f32 {v(ac+r,2)}, {v(cs+r,2)}, {v(NM+2*t,2)}, {v(ac+r,2)}")
        a.e(f"s_cmp_eq_u32 s{sT0}, 7", f"s_cbranch_scc1 {lq}")
        for t in range(2):
            ac = ACC + (q * 2 + t) * 16
            for r in range(8): a.e(f"v_max_f32 v{ac+r}, 0, v{ac+r}")
            for r in range(0, 8, 2): a.e(f"v_pk_mul_f32 {v(ac+r,2)}, {v(ac+r,2)}, {v(ac+8+r,2)}")
            for r in range(0, 8, 2): a.e(f"v_pk_mul_f32 {v(ac+r,2)}, {v(ac+r,2)}, {v(RR+2*t,2)}")
            pk = PKR + 8 * q + 4 * t
            for jj in range(4): a.e(f"v_cvt_pk_bf16_f32 v{pk+jj}, v{ac+2*jj}, v{ac+2*jj+1}")
            a.e(f"s_add_u32 s{sT1}, s{74+t}, s{sT2}")
            a.e(f"buffer_store_dwordx4 {v(pk,4)}, v{vL16}, {RS}, s{sT1} offen sc1")
        a.e(f"s_branch {ld}")
        a.label(lq)
        a.e(f"s_lshl_b32 s{sT0}, s{sTP}, 11", f"s_add_u32 s{sT0}, s{sT0}, {L_Q}", f"v_add_u32 v23, s{sT0}, v{vL16}")
        for t in range(2):
            ac = ACC + (q * 2 + t) * 16
            for r in range(0, 16, 2): a.e(f"v_pk_mul_f32 {v(ac+r,2)}, {v(ac+r,2)}, {v(RQ+2*t,2)}")
            for jj in range(8): a.e(f"v_cvt_pk_bf16_f32 v{ac+jj}, v{ac+2*jj}, v{ac+2*jj+1}")
            for hh in range(2):
                a.e(f"ds_write_b128 v23, {v(ac+4*hh,4)} offset:{hh*4096+t*1024}")
        a.e(f"s_mul_i32 s{sT0}, s2, {112*64}", f"s_lshl_b32 s{sT1}, s2, 11", f"s_mul_i32 s{sT2}, s{sTP}, {48*64}", f"s_add_u32 s{sT0}, s{sT0}, s{sT2}", "v_lshlrev_b32 v23, 6, v0")
        a.e(f"buffer_load_dword v250, v23, {SR(R_D)}, s{sT0} offen", "v_and_b32 v23, 2047, v23", f"buffer_load_dword v251, v23, {SR(R_O)}, s{sT1} offen")
        a.label(ld)
    sc.vm += ["hst"] * 4

class Ffn2:
    R = RING
    NK = 28
    vWo, vWo2, vWA0, vWA1, vBB, vB2 = 2, 3, 4, 5, 6, 7
    T0 = 12
    TPOLL = 4
    def tj(self, j): return self.T0 + 2 * j
    def setup(self, a):
        L = "v0"
        a.e(f"v_lshrrev_b32 v4, 3, {L}", "v_lshlrev_b32 v4, 10, v4", f"v_lshrrev_b32 v5, 4, {L}", "v_and_b32 v5, 1, v5", "v_lshlrev_b32 v5, 2, v5",
            f"v_and_b32 v6, 7, {L}", "v_xor_b32 v6, v6, v5", "v_lshlrev_b32 v6, 4, v6", f"v_add_u32 v{self.vWo}, v4, v6")
        a.e(f"s_lshl_b32 s{sT0}, s{sNB}, 7", f"v_add_u32 v{self.vWo}, s{sT0}, v{self.vWo}", f"v_add_u32 v{self.vWo2}, {8192-1024}, v{self.vWo}")
        a.e(f"v_add_u32 v{self.vB2}, {112*1024-1024}, v{vL16}")
        a.e(f"s_mul_i32 s{sLB}, s{sW}, {self.R*4096}")
        a.e(f"s_mul_i32 s{sGW}, s{sW}, {28*16*1024}")
        a.e(f"s_mul_i32 s{sGB}, s{sTB2}, {2*112*1024}", f"s_mul_i32 s{sT0}, s{sW}, {28*1024}", f"s_add_u32 s{sGB}, s{sGB}, s{sT0}",
            f"s_add_u32 s{sGB}, s{sGB}, {WS_H - 2048}")
        a.e(f"v_and_b32 v4, 15, {L}", "v_lshrrev_b32 v5, 2, v4", f"v_lshrrev_b32 v6, 5, {L}", "v_lshlrev_b32 v6, 2, v6", "v_add_u32 v5, v5, v6",
            "v_lshlrev_b32 v5, 7, v5", "v_lshrrev_b32 v6, 3, v4", "v_lshlrev_b32 v6, 6, v6", "v_add_u32 v5, v5, v6",
            f"v_lshrrev_b32 v6, 4, {L}", "v_and_b32 v6, 1, v6", "v_lshlrev_b32 v6, 5, v6", "v_add_u32 v5, v5, v6",
            f"v_and_b32 v6, 3, {L}", "v_lshlrev_b32 v6, 3, v6", "v_add_u32 v5, v5, v6")
        a.e(f"v_add_u32 v{self.vWA0}, s{sLB}, v5", f"v_xor_b32 v{self.vWA1}, 64, v{self.vWA0}", f"v_add_u32 v{self.vBB}, s{sLB}, v{vL16}")
        a.e(f"v_lshrrev_b32 v{GA}, 2, v{vL16}", f"s_lshl_b32 s{sKT}, s{sTB2}, 8", f"s_add_u32 s{sKT}, s{sKT}, {FL_H}")
    def w_items(self, st, sc, j, tile):
        slot = j % self.R
        st.add('s', f"s_add_u32 m0, s{sLB}, {slot*4096}", tile)
        st.add('s', "s_nop 0", tile)
        st.add('v', lambda: sc.vmem(f"buffer_load_dwordx4 v{self.vWo}, {SR(R_D)}, s{sGW} offen lds", f"d{j}"), tile)
        st.add('v', lambda: sc.vmem(f"buffer_load_dwordx4 v{self.vWo2}, {SR(R_D)}, s{sGW} offen offset:1024 lds", f"d{j}"), tile)
        st.add('s', f"s_add_u32 s{sGW}, s{sGW}, 16384", tile)
    def h_items(self, st, sc, j, tile, setm0):
        slot = j % self.R
        if setm0:
            st.add('s', f"s_add_u32 m0, s{sLB}, {slot*4096}", tile)
            st.add('s', "s_nop 0", tile)
        st.add('v', lambda: sc.vmem(f"buffer_load_dwordx4 v{vL16}, {RS}, s{sGB} offen offset:2048 lds", f"d{j}"), tile)
        st.add('v', lambda: sc.vmem(f"buffer_load_dwordx4 v{self.vB2}, {RS}, s{sGB} offen offset:3072 lds", f"d{j}"), tile)
        st.add('s', f"s_add_u32 s{sGB}, s{sGB}, 1024", tile)
    def read_items(self, st, sc, j, tile):
        slot, bs = j % self.R, j & 1
        dl = self.tj(j)
        st.add('w', lambda: sc.wait_vm(f"d{j}"), tile)
        for t in range(2):
            st.add('v', (lambda t=t: sc.lds(f"ds_read_b128 {v(GB+8*bs+4*t,4)}, v{self.vBB} offset:{slot*4096+2048+t*1024}", f"k{j}")), tile, dl)
        for q, ad in enumerate((self.vWA0, self.vWA1)):
            r = GA + 8 * bs + 4 * q
            st.add('v', (lambda r=r, ad=ad: sc.lds(f"ds_read_b64_tr_b16 {v(r,2)}, v{ad} offset:{slot*4096}", f"k{j}")), tile, dl)
            st.add('v', (lambda r=r, ad=ad: sc.lds(f"ds_read_b64_tr_b16 {v(r+2,2)}, v{ad} offset:{slot*4096+1024}", f"k{j}")), tile, dl)
    def build(self, a, sc, NTOT):
        nonm = {t: [] for t in range(NTOT)}; gm = {t: [] for t in range(NTOT)}; pre = {t: [] for t in range(NTOT)}
        st = Stream()
        for j in range(self.R): self.w_items(st, sc, j, min(j, self.TPOLL - 1))
        st.add('v', lambda: sc.vmem(f"buffer_load_dword v{GA+1}, v{GA}, {RS}, s{sKT} offen sc1", "ph"), self.TPOLL)
        def chk():
            sc.wait_vm("ph"); poll_check(a, "ph", GA + 1, GA, f"s{sKT}")
        pre[self.TPOLL + 2].append(chk)
        for j in range(self.R): self.h_items(st, sc, j, self.TPOLL + 2 + j // 2, True)
        for j in range(self.NK):
            t = self.tj(j)
            self.read_items(st, sc, j, t - 2)
            if j + self.R < self.NK:
                self.w_items_loop(st, sc, j + self.R, t)
            bs = j & 1
            pre[t].append(lambda j=j: sc.wait_lg(f"k{j}"))
            for nt in range(2):
                for tt in range(2):
                    ac = GACC + (nt * 2 + tt) * 16
                    c = "0" if j == 0 else v(ac, 16)
                    gm[t + nt].append(f"{MF} {v(ac,16)}, {v(GA+8*bs+4*nt,4)}, {v(GB+8*bs+4*tt,4)}, {c}")
        items = sorted(enumerate(st.items), key=lambda x: (x[1][2], 0 if x[1][3] is not None or x[1][0] == 'w' else 1, x[0]))
        items = [x[1] for x in items]
        cap = 5
        cur = 0; cnt = 0
        for kind, x, tile, dl in items:
            if tile > cur: cur = tile; cnt = 0
            if kind == 'v':
                if cnt >= cap: cur += 1; cnt = 0
                cnt += 1
            assert dl is None or cur < dl, (cur, dl)
            nonm[cur].append((kind, x))
        return nonm, gm, pre
    def w_items_loop(self, st, sc, j, tile):
        slot = j % self.R
        st.add('s', f"s_add_u32 m0, s{sLB}, {slot*4096}", tile)
        st.add('s', "s_nop 0", tile)
        st.add('v', lambda: sc.vmem(f"buffer_load_dwordx4 v{self.vWo}, {SR(R_D)}, s{sGW} offen lds", f"d{j}"), tile)
        st.add('v', lambda: sc.vmem(f"buffer_load_dwordx4 v{self.vWo2}, {SR(R_D)}, s{sGW} offen offset:1024 lds", f"d{j}"), tile)
        st.add('v', lambda: sc.vmem(f"buffer_load_dwordx4 v{vL16}, {RS}, s{sGB} offen offset:2048 lds", f"d{j}"), tile)
        st.add('v', lambda: sc.vmem(f"buffer_load_dwordx4 v{self.vB2}, {RS}, s{sGB} offen offset:3072 lds", f"d{j}"), tile)
        st.add('s', f"s_add_u32 s{sGW}, s{sGW}, 16384", tile)
        st.add('s', f"s_add_u32 s{sGB}, s{sGB}, 1024", tile)

class NoG:
    def build(self, a, sc, NTOT): return {t: [] for t in range(NTOT)}, {t: [] for t in range(NTOT)}, {t: [] for t in range(NTOT)}

HFLAG_TILE = 2
def attn_main(a, sc, g, bar_tiles=()):
    def loadK(kt):
        if kt >= NKT: return
        sc.vmem(f"buffer_load_dwordx4 {v(KF+4*(kt&1),4)}, v{vL16}, {RS}, s{sK} offen offset:{(kt&3)*1024} sc1", f"K{kt}")
    def loadV(kt, h):
        if kt >= NKT: return
        sc.vmem(f"buffer_load_dwordx4 {v(VF+8*(kt&1)+4*h,4)}, v{vL16}, {RS}, s{sV} offen offset:{(kt&1)*2048+h*1024} sc1", f"V{kt}")
    NTOT = NT + 12
    nonm, gm, pre = g.build(a, sc, NTOT)
    def hflag():
        sc.wait_vm("hst")
        post_flag(a, sc, 0, sT3)
    sc.wait_vm(["K0"])
    a.e(f"{MF} {v(S,16)}, {v(KF,4)}, {v(Q,4)}, 0")
    a.nop(12)
    tsn(a, "att0")
    a.raw(".p2align 3")
    for t in range(NT):
        kt, c = t // 4, t & 3
        Sin, Sout = S + 16 * (t & 1), S + 16 * ((t + 1) & 1)
        Pcur, Pprev = P + 8 * (t & 1), P + 8 * ((t + 1) & 1)
        q = list(nonm[t])
        if c == 3 and kt + 2 < NKT:
            if ((kt + 2) & 3) == 0: q.append(('s', f"s_add_u32 s{sK}, s{sK}, 4096"))
            q.append(('v', lambda kt=kt: loadK(kt + 2)))
        if c == 1 and kt + 1 < NKT:
            if ((kt + 1) & 1) == 0: q.append(('s', f"s_add_u32 s{sV}, s{sV}, 4096"))
            q.append(('v', lambda kt=kt: loadV(kt + 1, 0))); q.append(('v', lambda kt=kt: loadV(kt + 1, 1)))
        if t in bar_tiles: a.e("s_barrier")
        if t == HFLAG_TILE: hflag()
        for f in pre[t]: f()
        nt = t + 1; pt = t - 1
        if pt >= 0 and (pt & 3) == 0: sc.wait_vm(f"V{pt//4}")
        if nt < NT and (nt & 3) == 0: sc.wait_vm(f"K{nt//4}")
        Sm = f"{MF} {v(Sout,16)}, {v(KF+4*((nt//4)&1),4)}, {v(Q+4*(nt&3),4)}, 0" if nt < NT else None
        PV1 = PV2 = None
        if pt >= 0:
            Op = O + 16 * (pt & 3); vb = VF + 8 * ((pt // 4) & 1)
            c0 = "0" if pt < 4 else v(Op, 16)
            PV1 = f"{MF} {v(Op,16)}, {v(vb,4)}, {v(Pprev,4)}, {c0}"
            PV2 = f"{MF} {v(Op,16)}, {v(vb+4,4)}, {v(Pprev+4,4)}, {v(Op,16)}"
        G = list(gm[t])
        e = lambda i: a.e(f"v_exp_f32 v{Sin+i}, v{Sin+i}")
        cv = lambda j: a.e(f"v_cvt_pk_bf16_f32 v{Pcur+j}, v{Sin+2*j}, v{Sin+2*j+1}")
        ms = [PV1, Sm] + ([G[0]] if G else []) + [PV2] + ([G[1]] if len(G) > 1 else [])
        nslots = len(ms)
        per = [(len(q) + nslots - 1 - i) // nslots for i in range(nslots)]
        it_m = iter(range(nslots))
        def M():
            i = next(it_m)
            if ms[i]: a.e(ms[i])
            for _ in range(per[i]):
                kind, it = q.pop(0)
                if kind == 's': a.e(it)
                else: it()
        if nslots == 3:
            M(); e(0); e(1); e(2); e(3); cv(0); e(4); e(5); cv(1)
            M(); e(6); e(7); cv(2); e(8); e(9); cv(3)
            M(); e(10); e(11); cv(4); e(12); e(13); cv(5); e(14); e(15); cv(6); cv(7)
        elif nslots == 4:
            M(); e(0); e(1); e(2); e(3); cv(0)
            M(); e(4); e(5); cv(1); e(6); e(7); cv(2)
            M(); e(8); e(9); cv(3); e(10); e(11); cv(4)
            M(); e(12); e(13); cv(5); e(14); e(15); cv(6); cv(7)
        else:
            M(); e(0); e(1); e(2); e(3)
            M(); cv(0); e(4); e(5); cv(1); e(6); e(7)
            M(); cv(2); e(8); e(9); cv(3)
            M(); e(10); e(11); cv(4); e(12); e(13)
            M(); cv(5); e(14); e(15); cv(6); cv(7)
        assert not q
    tsn(a, "att1")
    pt = NT - 1
    Op = O + 16 * 3; vb = VF + 8 * 1; Pp = P + 8 * (pt & 1)
    a.nop(2)
    a.e(f"{MF} {v(Op,16)}, {v(vb,4)}, {v(Pp,4)}, {v(Op,16)}", f"{MF} {v(Op,16)}, {v(vb+4,4)}, {v(Pp+4,4)}, {v(Op,16)}")
    for t in range(NT, NTOT):
        for f in pre[t]: f()
        for m in gm[t]: a.e(m)
        for kind, it in nonm[t]:
            if kind == 's': a.e(it)
            else: it()

def attn_write(a):
    a.e(f"s_mul_i32 s{sT0}, s{sW}, {4*2304}", f"s_add_u32 s{sT0}, s{sT0}, {L_AP}")
    a.e(f"v_add_u32 v2, s{sT0}, v{vL16}", f"v_lshrrev_b32 v3, 2, v{vL16}", f"v_add_u32 v3, s{sT0}, v3")
    for c in range(4):
        a.e(f"ds_write_b128 v2, {v(O+16*c,4)} offset:{c*2304}", f"ds_write_b128 v2, {v(O+16*c+4,4)} offset:{c*2304+1024}",
            f"ds_write_b32 v3, v{O+16*c+8} offset:{c*2304+2048}")

def slow_path(a, pfx, RB):
    QS, KS, VS, SS, PS, OS, CS, MX = 160 + 8, 172, 176, 184, 200, 208, 224, 240
    for c in range(4):
        lab = f"{pfx}_q{c}"
        a.e(f"s_cmp_lg_u32 s{sKQ}, {c}", f"s_cbranch_scc1 {lab}")
        for r in range(4): a.e(f"v_mov_b32 v{QS+r}, v{Q+4*c+r}")
        a.label(lab)
    a.e(f"v_mov_b32 v{MX}, 0xff800000", f"s_mov_b32 s{sT0}, {WS_KF}", f"s_mov_b32 s{sT1}, 64")
    a.label(f"{pfx}_l1")
    a.e(f"buffer_load_dwordx4 {v(KS,4)}, v{vL16}, {RS}, s{sT0} offen sc1", "s_waitcnt vmcnt(0)")
    a.e(f"{MF} {v(SS,16)}, {v(KS,4)}, {v(QS,4)}, 0")
    a.nop(14)
    for r in range(0, 16, 2): a.e(f"v_max3_f32 v{MX}, v{SS+r}, v{SS+r+1}, v{MX}")
    a.e(f"s_add_u32 s{sT0}, s{sT0}, 1024", f"s_sub_u32 s{sT1}, s{sT1}, 1", f"s_cmp_lg_u32 s{sT1}, 0", f"s_cbranch_scc1 {pfx}_l1")
    a.e(f"v_mov_b32 v{MX+1}, v{MX}")
    a.nop(2)
    a.e(f"v_permlane32_swap_b32 v{MX}, v{MX+1}")
    a.nop(2)
    a.e(f"v_max_f32 v{MX}, v{MX}, v{MX+1}")
    for r in range(16): a.e(f"v_sub_f32 v{CS+r}, 0, v{MX}", f"v_mov_b32 v{OS+r}, 0")
    a.e(f"s_mov_b32 s{sT0}, {WS_KF}", f"s_mov_b32 s{sT2}, {WS_VF}", f"s_mov_b32 s{sT1}, 64")
    a.label(f"{pfx}_l2")
    a.e(f"buffer_load_dwordx4 {v(KS,4)}, v{vL16}, {RS}, s{sT0} offen sc1", f"buffer_load_dwordx4 {v(VS,4)}, v{vL16}, {RS}, s{sT2} offen sc1",
        f"buffer_load_dwordx4 {v(VS+4,4)}, v{vL16}, {RS}, s{sT2} offen offset:1024 sc1", "s_waitcnt vmcnt(0)")
    a.e(f"{MF} {v(SS,16)}, {v(KS,4)}, {v(QS,4)}, {v(CS,16)}")
    a.nop(14)
    for r in range(16): a.e(f"v_exp_f32 v{SS+r}, v{SS+r}")
    a.e("s_nop 0")
    for j in range(8): a.e(f"v_cvt_pk_bf16_f32 v{PS+j}, v{SS+2*j}, v{SS+2*j+1}")
    a.nop(2)
    a.e(f"{MF} {v(OS,16)}, {v(VS,4)}, {v(PS,4)}, {v(OS,16)}", f"{MF} {v(OS,16)}, {v(VS+4,4)}, {v(PS+4,4)}, {v(OS,16)}")
    a.e(f"s_add_u32 s{sT0}, s{sT0}, 1024", f"s_add_u32 s{sT2}, s{sT2}, 2048", f"s_sub_u32 s{sT1}, s{sT1}, 1", f"s_cmp_lg_u32 s{sT1}, 0")
    a.nop(10)
    a.e(f"s_cbranch_scc1 {pfx}_l2")
    a.nop(14)
    for r in range(9): a.e(f"v_mov_b32 v{RB+r}, v{OS+r}")

slows = []
def attn_red(a, sc, pfx):
    a.e(f"s_mul_i32 s{sT0}, s{sCH}, {16*2304}", f"s_mul_i32 s{sT1}, s{sKQ}, 2304", f"s_add_u32 s{sT0}, s{sT0}, s{sT1}", f"s_add_u32 s{sT0}, s{sT0}, {L_AP}")
    a.e(f"v_add_u32 v2, s{sT0}, v{vL16}", f"v_lshrrev_b32 v3, 2, v{vL16}", f"v_add_u32 v3, s{sT0}, v3")
    RB = S
    for kq in range(4):
        a.e(f"ds_read_b128 {v(RB+12*kq,4)}, v2 offset:{kq*4*2304}", f"ds_read_b128 {v(RB+12*kq+4,4)}, v2 offset:{kq*4*2304+1024}",
            f"ds_read_b32 v{RB+12*kq+8}, v3 offset:{kq*4*2304+2048}")
    a.e(f"s_mov_b32 s{sT2}, {f2u(2.0**40):#x}", f"s_mov_b32 s{sT3}, {f2u(2.0**120):#x}")
    a.e("s_waitcnt lgkmcnt(0)")
    for r in range(9): a.e(f"v_add_f32 v{RB+r}, v{RB+r}, v{RB+12+r}", f"v_add_f32 v{RB+24+r}, v{RB+24+r}, v{RB+36+r}")
    for r in range(9): a.e(f"v_add_f32 v{RB+r}, v{RB+r}, v{RB+24+r}")
    T = RB + 12
    a.e(f"v_add_f32 v{T}, |v{RB}|, |v{RB+1}|", f"v_add_f32 v{T+1}, |v{RB+2}|, |v{RB+3}|", f"v_add_f32 v{T+2}, |v{RB+4}|, |v{RB+5}|", f"v_add_f32 v{T+3}, |v{RB+6}|, |v{RB+7}|",
        f"v_add_f32 v{T}, v{T}, v{T+1}", f"v_add_f32 v{T+2}, v{T+2}, v{T+3}", f"v_add_f32 v{T}, v{T}, v{T+2}")
    a.e(f"v_cmp_le_f32 vcc, {f2u(2.0**-30):#x}, v{RB+8}", f"v_cmp_ge_f32_e64 s[{sC0}:{sC0+1}], s{sT2}, v{RB+8}", f"v_cmp_gt_f32_e64 s[{sC1}:{sC1+1}], s{sT3}, v{T}")
    a.e("s_nop 1", f"s_and_b64 vcc, vcc, s[{sC0}:{sC0+1}]", f"s_and_b64 vcc, vcc, s[{sC1}:{sC1+1}]", "s_cmp_lg_u64 vcc, -1", f"s_cbranch_scc1 {pfx}_slow")
    a.label(f"{pfx}_norm")
    slows.append((pfx, RB))
    a.e(f"v_rcp_f32 v{RB+9}, v{RB+8}")
    a.e(f"s_lshl_b32 s{sT0}, s{sKQ}, 15", f"s_lshl_b32 s{sT1}, s{sCH}, 10", f"s_add_u32 s{sT0}, s{sT0}, s{sT1}",
        f"s_lshl_b32 s{sT1}, s{sTB}, 17", f"s_add_u32 s{sT0}, s{sT0}, s{sT1}", f"s_lshl_b32 s{sT1}, s{sJ}, 11", f"s_add_u32 s{sT0}, s{sT0}, s{sT1}",
        f"s_add_u32 s{sT0}, s{sT0}, {WS_O}")
    for r in range(8): a.e(f"v_mul_f32 v{RB+r}, v{RB+r}, v{RB+9}")
    for q in range(4): a.e(f"v_cvt_pk_bf16_f32 v{RB+12+q}, v{RB+2*q}, v{RB+2*q+1}")
    sc.vmem(f"buffer_store_dwordx4 {v(RB+12,4)}, v{vL16}, {RS}, s{sT0} offen sc1", "ost")
    a.e(f"s_lshl_b32 s{sT3}, s{sTB}, 9", f"s_lshr_b32 s{sT1}, s{sKQ}, 1", f"s_lshl_b32 s{sT1}, s{sT1}, 8", f"s_add_u32 s{sT3}, s{sT3}, s{sT1}",
        f"s_lshl_b32 s{sT1}, s{sCH}, 7", f"s_add_u32 s{sT3}, s{sT3}, s{sT1}", f"s_lshl_b32 s{sT1}, s{sJ}, 3", f"s_add_u32 s{sT3}, s{sT3}, s{sT1}",
        f"s_and_b32 s{sT1}, s{sKQ}, 1", f"s_lshl_b32 s{sT1}, s{sT1}, 2", f"s_add_u32 s{sT3}, s{sT3}, s{sT1}", f"s_add_u32 s{sT3}, s{sT3}, {FL_O}")
def emit_slows(a):
    for pfx, RB in slows:
        a.label(f"{pfx}_slow")
        slow_path(a, pfx, RB)
        a.e(f"s_branch {pfx}_norm")
    slows.clear()

def gen_main(a):
    name = NAME + "_kernel"
    kernel_header(a, name)
    a.e("s_cmp_ge_u32 s2, 256", "s_cbranch_scc1 kend")
    ts(a, 0, True); ts(a, 1)
    sc = phase1(a)
    boundary(a, sc)
    a.e(f"s_lshl_b32 s{sT3}, s{sTB}, 9", f"s_lshl_b32 s{sT1}, s{sTP}, 8", f"s_add_u32 s{sT3}, s{sT3}, s{sT1}", f"s_lshl_b32 s{sT1}, s{sJ}, 4",
        f"s_add_u32 s{sT3}, s{sT3}, s{sT1}", f"s_lshl_b32 s{sT1}, s{sAP}, 2", f"s_add_u32 s{sT3}, s{sT3}, s{sT1}", f"s_add_u32 s{sT3}, s{sT3}, {FL_H}")
    a.e(f"s_lshl_b32 s{sT0}, s{sCH}, 12", f"s_add_u32 s{sT0}, s{sT0}, {L_Q}", f"v_add_u32 v21, s{sT0}, v{vL16}")
    vm0 = list(sc.vm)
    a.e(f"s_cmp_lg_u32 s{sCH}, 0", "s_cbranch_scc1 p2_young")
    g = Ffn2()
    g.setup(a)
    a.e(f"v_mov_b32 v0, s{sNON}")
    a.e("s_waitcnt lgkmcnt(0)", "s_barrier")
    for c in range(4): a.e(f"ds_read_b128 {v(Q+4*c,4)}, v21 offset:{c*1024}")
    a.e("s_waitcnt lgkmcnt(0)")
    sc.lg = []
    attn_main(a, sc, g)
    a.nop(12)
    attn_write(a)
    a.e(f"v_add_u32 v2, s{sLB}, v{vL16}")
    for t in range(4):
        for q in range(4):
            a.e(f"ds_write_b128 v2, {v(GACC+16*t+4*q,4)} offset:{t*4096+q*1024}")
    XR = GA
    a.e(f"v_lshrrev_b32 v250, 4, v{vL16}", "v_and_b32 v4, 31, v250", "v_lshlrev_b32 v4, 10, v4", "v_lshrrev_b32 v5, 5, v250", "v_lshlrev_b32 v5, 3, v5", "v_add_u32 v4, v4, v5")
    a.e(f"s_lshl_b32 s{sT0}, s{sTB2}, 16", f"s_and_b32 s{sT1}, s{sW}, 1", f"s_lshl_b32 s{sT1}, s{sT1}, 15", f"s_add_u32 s{sT0}, s{sT0}, s{sT1}",
        f"s_lshl_b32 s{sT1}, s{sNB}, 7", f"s_add_u32 s{sT0}, s{sT0}, s{sT1}", f"s_lshr_b32 s{sT1}, s{sW}, 1", f"s_lshl_b32 s{sT1}, s{sT1}, 6",
        f"s_add_u32 s{sGW}, s{sT0}, s{sT1}")
    for q in range(4):
        a.e(f"buffer_load_dwordx2 {v(XR+2*q,2)}, v4, {SR(R_X)}, s{sGW} offen offset:{q*16}")
    a.e("s_waitcnt lgkmcnt(0)")
    a.e("s_barrier")
    sc.vm = []
    attn_red(a, sc, "ro")
    a.e(f"s_lshl_b32 s{sT1}, s{sW}, 12", f"v_add_u32 v2, s{sT1}, v{vL16}")
    RB = O
    for wp in range(4):
        for q in range(4):
            a.e(f"ds_read_b128 {v(RB+16*wp+4*q,4)}, v2 offset:{wp*RING*4096+q*1024}")
        if wp in (2,): a.e("s_waitcnt lgkmcnt(4)")
    a.e("s_waitcnt lgkmcnt(0)")
    for r in range(16): a.e(f"v_add_f32 v{RB+r}, v{RB+r}, v{RB+16+r}", f"v_add_f32 v{RB+32+r}, v{RB+32+r}, v{RB+48+r}")
    for r in range(16): a.e(f"v_add_f32 v{RB+r}, v{RB+r}, v{RB+32+r}")
    a.e("s_waitcnt vmcnt(1)")
    for q in range(4):
        for d in range(2):
            r = XR + 2 * q + d
            a.e(f"v_lshlrev_b32 v5, 16, v{r}", f"v_and_b32 v6, s{sMASK}, v{r}",
                f"v_add_f32 v{RB+4*q+2*d}, v{RB+4*q+2*d}, v5", f"v_add_f32 v{RB+4*q+2*d+1}, v{RB+4*q+2*d+1}, v6")
    tsn(a, "m7")
    a.e("s_barrier")
    a.e("s_waitcnt vmcnt(0)")
    post_flag(a, sc, 0, sT3)
    vWo, vWo2, vWA = 2, 3, 6
    L = "v250"
    a.e(f"v_lshrrev_b32 v4, 3, {L}", "v_lshlrev_b32 v4, 10, v4", f"v_lshrrev_b32 v5, 4, {L}", "v_and_b32 v5, 1, v5", "v_lshlrev_b32 v5, 2, v5",
        f"v_and_b32 v6, 7, {L}", "v_xor_b32 v6, v6, v5", "v_lshlrev_b32 v6, 4, v6", f"v_add_u32 v{vWo}, v4, v6")
    a.e(f"s_lshl_b32 s{sT0}, s{sNB}, 7", f"v_add_u32 v{vWo}, s{sT0}, v{vWo}", f"v_add_u32 v{vWo2}, {8192-1024}, v{vWo}")
    a.e(f"s_lshl_b32 s{sT1}, s{sW}, 17", f"s_lshl_b32 s{sT2}, s{sW}, 14")
    for jj in range(8):
        a.e(f"s_add_u32 m0, s{sT2}, {jj*2048}", f"s_add_u32 s{sT0}, s{sT1}, {jj*16384}")
        a.e(f"buffer_load_dwordx4 v{vWo}, {SR(R_O)}, s{sT0} offen lds", f"buffer_load_dwordx4 v{vWo2}, {SR(R_O)}, s{sT0} offen offset:1024 lds")
    a.e(f"s_or_b32 s{sT0}, s2, s{sW}", f"s_cmp_lg_u32 s{sT0}, 0", "s_cbranch_scc1 t_nonloc")
    a.e(f"v_lshrrev_b32 v7, 4, {L}", "v_lshlrev_b32 v7, 9, v7", f"v_and_b32 v8, 15, {L}", "v_lshlrev_b32 v8, 4, v8", "v_add_u32 v7, v7, v8")
    for i in range(4):
        a.e(f"s_mov_b32 s{sT0}, {FL_H + i*2048}", f"buffer_load_dword v8, v7, {RS}, s{sT0} offen sc1", "s_waitcnt vmcnt(0)")
        poll_check(a, f"pn{i}", 8, 7, f"s{sT0}")
    a.e(f"s_mov_b32 s{sT0}, {NLOC}")
    post_flag(a, sc, 0, sT0)
    a.label("t_nonloc")
    a.e(f"v_and_b32 v7, 31, {L}", "v_lshlrev_b32 v7, 2, v7")
    a.e(f"s_lshl_b32 s{sKT}, s{sTB2}, 8", f"s_add_u32 s{sKT}, s{sKT}, {FL_O}")
    a.e(f"buffer_load_dword v8, v7, {RS}, s{sKT} offen sc1")
    a.e(f"v_and_b32 v4, 15, {L}", "v_lshrrev_b32 v5, 2, v4", f"v_lshrrev_b32 v6, 5, {L}", "v_lshlrev_b32 v6, 2, v6", "v_add_u32 v5, v5, v6",
        "v_lshlrev_b32 v5, 7, v5", "v_lshrrev_b32 v6, 3, v4", "v_lshlrev_b32 v6, 6, v6", "v_add_u32 v5, v5, v6",
        f"v_lshrrev_b32 v6, 4, {L}", "v_and_b32 v6, 1, v6", "v_lshlrev_b32 v6, 5, v6", "v_add_u32 v5, v5, v6",
        f"v_and_b32 v6, 3, {L}", "v_lshlrev_b32 v6, 3, v6", "v_add_u32 v5, v5, v6")
    a.e(f"s_lshr_b32 s{sT1}, s{sW}, 1", f"s_lshl_b32 s{sT1}, s{sT1}, 6", f"v_xor_b32 v{vWA}, s{sT1}, v5")
    a.e("s_waitcnt vmcnt(0)")
    poll_check(a, "po0", 8, 7, f"s{sKT}")
    a.e(f"s_lshl_b32 s{sGB}, s{sTB2}, 16", f"s_and_b32 s{sT1}, s{sW}, 1", f"s_lshl_b32 s{sT1}, s{sT1}, 15", f"s_add_u32 s{sGB}, s{sGB}, s{sT1}", f"s_add_u32 s{sGB}, s{sGB}, {WS_O}")
    B0, B1r, AFt = 160, 8, 112
    heads0 = [2 * j for j in range(16)]
    heads1 = [2 * j + 1 for j in range(16)]
    def oloads(heads, base):
        for i, h in enumerate(heads):
            if i % 2 == 0: a.e(f"s_add_u32 s{sT0}, s{sGB}, {(h//4)*4096}")
            a.e(f"buffer_load_dwordx4 {v(base+4*i,4)}, v{vL16}, {RS}, s{sT0} offen offset:{(h%4)*1024}")
    oloads(heads0, B0)
    tsn(a, "m8")
    a.e("s_barrier")
    a.e(f"buffer_load_dword v145, v7, {RS}, s{sKT} offen offset:128 sc1")
    def gemm(heads, base, waitfn):
        def rd(j):
            b = AFt + 4 * (j % 8)
            a.e(f"ds_read_b64_tr_b16 {v(b,2)}, v{vWA} offset:{heads[j]*2048}", f"ds_read_b64_tr_b16 {v(b+2,2)}, v{vWA} offset:{heads[j]*2048+1024}")
        for j in range(6): rd(j)
        for j in range(16):
            if j + 6 < 16:
                rd(j + 6); a.e("s_waitcnt lgkmcnt(12)")
            else:
                a.e(f"s_waitcnt lgkmcnt({2*(15-j)})")
            waitfn(j)
            a.e(f"{MF} {v(RB,16)}, {v(AFt+4*(j%8),4)}, {v(base+4*j,4)}, {v(RB,16)}")
    gemm(heads0, B0, lambda j: a.e(f"s_waitcnt vmcnt({13 - j})") if j % 4 == 0 else None)
    a.e("s_waitcnt vmcnt(0)")
    poll_check(a, "po1", 145, 7, f"s{sKT}", 128)
    oloads(heads1, B1r)
    gemm(heads1, B1r, lambda j: a.e(f"s_waitcnt vmcnt({15 - j})"))
    a.nop(14)
    PK = 144
    for q in range(4):
        for d in range(2):
            a.e(f"v_cvt_pk_bf16_f32 v{PK+2*q+d}, v{RB+4*q+2*d}, v{RB+4*q+2*d+1}")
    a.e(f"v_and_b32 v4, 31, {L}", "v_lshlrev_b32 v4, 10, v4", f"v_lshrrev_b32 v5, 5, {L}", "v_lshlrev_b32 v5, 4, v5", "v_add_u32 v4, v4, v5")
    a.nop(1)
    for p in range(2):
        for d in range(2):
            a.e(f"v_permlane32_swap_b32 v{PK+4*p+d}, v{PK+4*p+2+d}")
    a.nop(2)
    for p in range(2):
        a.e(f"buffer_store_dwordx4 {v(PK+4*p,4)}, v4, {SR(R_OUT)}, s{sGW} offen offset:{p*32}")
    ts_dump(a)
    a.e("s_endpgm")
    a.label("p2_young")
    sc = Sched(a); sc.vm = list(vm0)
    a.e(f"v_mov_b32 v0, s{sNON}")
    a.e("s_waitcnt lgkmcnt(0)", "s_barrier")
    for c in range(4): a.e(f"ds_read_b128 {v(Q+4*c,4)}, v21 offset:{c*1024}")
    a.e("s_waitcnt lgkmcnt(0)")
    attn_main(a, sc, NoG(), bar_tiles=(32, 44))
    a.nop(12)
    attn_write(a)
    a.e("s_waitcnt lgkmcnt(0)")
    tsn(a, "m7")
    a.e("s_barrier")
    sc.vm = []
    attn_red(a, sc, "ry")
    a.e("s_waitcnt vmcnt(0)")
    post_flag(a, sc, 0, sT3)
    tsn(a, "m8")
    ts_dump(a)
    a.e("s_endpgm")
    emit_spins(a)
    emit_slows(a)
    a.label("kend")
    a.e("s_endpgm")
    return name

def build(outpath):
    a = Asm()
    name = gen_main(a)
    body = a.text()
    import re
    if "nosc1kv" in KNOB:
        body = re.sub(r"(buffer_load_dwordx4 v\[(?:24|28|32|36|40|44):\d+\], v1, s\[28:31\], s4[45] offen[^\n]*?) sc1", r"\1", body)
    if "nosc1h" in KNOB:
        body = body.replace(" lds", " lds")
    probs = check_text(body)
    for p in probs: print("HAZARD:", p, file=sys.stderr)
    out = HEADER + f"; @launch grid=(256,1,1) block=(512,1,1) lds={LDS}\n" + '.amdgcn_target "amdgcn-amd-amdhsa--gfx950"\n.text\n' + body + kernel_desc(name, 256)
    open(outpath, "w").write(out)

if __name__ == "__main__":
    if len(sys.argv) > 1 and sys.argv[1] == "instr":
        gen.INSTR = True
        for k in sys.argv[3:]: KNOB.add(k)
        build(sys.argv[2] if len(sys.argv) > 2 else "v13i.s")
    else:
        for k in sys.argv[2:]: KNOB.add(k)
        build(sys.argv[1] if len(sys.argv) > 1 else "v13.s")
```

```python
import sys
import gen
from gen import Asm, v, s, srd, kernel_header, kernel_desc, f2u, check_text, HEADER, QSCALE, NAME
from gen import WS_O, WS_KF, WS_VF, WS_H, WS_SIZE
from gen2 import Sched, MF, KNOB
from gen3 import Stream

FL_KV = 0
FL_H = 0x10000
FL_O = 0x12000
NLOC = 0x14000
WS_ST = 0x18000
WS_CS = 0x20000
WS_TS = 24 << 20
SPIN = 200000

R_GA, R_GB, R_X, R_WS, R_F, R_D, R_O, R_OUT, R_C, R_G = 16, 20, 24, 28, 56, 60, 64, 68, 8, 48
RS = f"s[{R_WS}:{R_WS+3}]"
def SR(r): return f"s[{r}:{r+3}]"
sW, sTB, sJ, sTB2, sNB, sT0, sT1, sT2, sT3 = 32, 33, 34, 35, 36, 37, 38, 39, 40
sGK, sSTR, sMW, sK, sV, sKQ, sCH, sNON, sCNT = 41, 42, 43, 44, 45, 46, 47, 72, 73
sLB, sGW, sGB, sKT, sMASK, sONES = 48, 49, 50, 51, 52, 53
sC0, sC1 = 74, 76
sAP, sTP, sGX, sM0, sM1, sMX, sEND, sCG, sRB = 54, 55, 4, 5, 6, 7, 12, 13, 14

R1 = 4
WST = 16640
UPO, QO = 7296, 14464
L_W = 0
L_X = R1 * WST
L_FS = L_X + 3 * 16384
L_XN = L_FS + 32768
L_CS = L_XN + 8192
L_CP = L_CS + 2048
L_Q = L_FS
RING = 5
L_AP = 4 * RING * 4096
L_FL = L_AP + 8 * 4 * 2304
LDS = L_CP + 2048
assert L_FL + 256 <= LDS <= 163840

vL16 = 1
vG0, vG1, vX0, vX1 = 2, 3, 4, 5
vXB = 6
vWA = 10
vPK = 18
vPS = 21
vPC = 23
vPCA, vCA = 48, 49
NM, RR, RQ = 50, 54, 58
ST_ = 40
CS = 64
CSL = 104
AF, BF, ACC = 96, 112, 128
XRW, XFR, KFR, VFR, D1, D2, RED = 64, 64, 80, 240, 192, 208, 192
vKX, vKF, vPW, vPR, vXW = 24, 25, 26, 27, 28
SA = 68
Q, KF, VF, S, P, O = 8, 24, 32, 48, 80, 96
GA, GB, GACC = 160, 176, 192
NT, NKT = 64, 16

NTS = 11
TSMAP = None
def tsn(a, name):
    if not gen.INSTR: return
    if "tsq" in KNOB:
        if name == "karg": ts(a, 2)
        return
    for kn in KNOB:
        if kn.startswith("tsk"):
            b0, st = [int(x) for x in kn[3:].split("_")]
            m = {f"k{b0 + st*i}": 2 + i for i in range(7)}
            if name in m: ts(a, m[name])
            return
    m = TSP if "tsp" in KNOB else (TSL if "tsl" in KNOB else (TSA if "tsa" in KNOB else (TST if "tst" in KNOB else TSD)))
    if name in m: ts(a, m[name])
TSD = {"xt": 2, "loop0": 3, "loop1": 4, "att0": 5, "att1": 6, "m7": 7, "m8": 8}
TSP = {"karg": 2, "i0": 3, "dma": 4, "addr": 5, "i2": 6, "loop0": 7, "k2": 8}
TSA = {"att0": 2, "t6": 3, "t8": 4, "t16": 5, "t32": 6, "t48": 7, "att1": 8}
TST = {"att1": 2, "b1": 3, "m7": 4, "m8": 5, "b2": 6, "po1": 7, "g1": 8}
TSL = {"loop0": 2, "k6": 3, "k12": 4, "k18": 5, "k24": 6, "k27": 7, "loop1": 8}
def ts(a, i, real=False):
    if not gen.INSTR: return
    a.e(f"s_memrealtime s[{80+2*i}:{81+2*i}]" if real else f"s_memtime s[{80+2*i}:{81+2*i}]")
def ts_dump(a):
    if not gen.INSTR: return
    ts(a, 9); ts(a, 10, True)
    a.e("s_waitcnt lgkmcnt(0)")
    a.e(f"s_lshl_b32 s78, s2, 3", f"s_add_u32 s78, s78, s{sW}", "s_lshl_b32 s78, s78, 6", f"s_add_u32 s78, s78, {WS_TS}")
    a.e("s_mov_b64 exec, 1", "v_mov_b32 v2, 0")
    for i in range(NTS):
        a.e(f"v_mov_b32 v3, s{80+2*i}", f"buffer_store_dword v3, v2, {RS}, s78 offen offset:{4*i}", "s_nop 1")
    a.e("s_mov_b64 exec, -1")

class Sched2(Sched):
    def __init__(self, a):
        super().__init__(a); self.count = 0
    def vmem(self, ins, tag):
        self.count += 1
        super().vmem(ins, tag)
    def peek_vm(self, tag):
        idx = max([i for i, t in enumerate(self.vm) if t == tag], default=-1)
        return 63 if idx < 0 else len(self.vm) - 1 - idx

spins = []
def poll_check(a, name, vP, vAddr, sOff, imm=0):
    back = f"{name}_ok"
    if "nospin" in KNOB: return
    a.e(f"v_cmp_ne_u32 vcc, s{sNON}, v{vP}", f"s_cbranch_vccnz {name}_spin")
    a.label(back)
    spins.append((name, vP, vAddr, sOff, imm))
def emit_spins(a):
    for name, vP, vAddr, sOff, imm in spins:
        a.label(f"{name}_spin")
        a.e(f"s_mov_b32 s{sCNT}, {SPIN}")
        a.label(f"{name}_loop")
        a.e("s_sleep 8" if "slp" in KNOB else "s_sleep 4", f"buffer_load_dword v{vP}, v{vAddr}, {RS}, {sOff} offen offset:{imm} sc1", "s_waitcnt vmcnt(0)",
            f"v_cmp_ne_u32 vcc, s{sNON}, v{vP}", f"s_cbranch_vccz {name}_ok",
            f"s_sub_u32 s{sCNT}, s{sCNT}, 1", f"s_cmp_lg_u32 s{sCNT}, 0", f"s_cbranch_scc1 {name}_loop", f"s_branch {name}_ok")
    spins.clear()

def post_flag(a, sc, vN, sOff, imm=0):
    a.e("s_mov_b64 exec, 1")
    sc.vmem(f"buffer_store_dword v{vN}, off, {RS}, s{sOff} offset:{imm} sc1", "flag")
    a.e("s_mov_b64 exec, -1")

sCG, sRB = 78, 79
CL0, CL1, CA = 224, 228, 232
CSL = 32
def srd_fix(a, d, nbytes):
    a.e(f"s_and_b32 s{d+1}, s{d+1}, 0xffff", f"s_mov_b32 s{d+2}, {nbytes}", f"s_mov_b32 s{d+3}, 0x20000")

def p1_prologue(a):
    if "notouch" not in KNOB and "touch2" not in KNOB and "touch3" not in KNOB:
        a.e("v_lshrrev_b32 v20, 6, v0", "s_nop 0", f"v_readfirstlane_b32 s{sW}, v20", "s_nop 0", f"s_lshl_b32 s{sT0}, s{sW}, 3", f"s_load_dwordx2 s[44:45], s[0:1], s{sT0}",
            f"s_and_b32 s{sT1}, s{sT0}, 24", f"s_add_u32 s{sT1}, s{sT1}, 64", f"s_load_dwordx2 s[46:47], s[0:1], s{sT1}")
    a.e(f"s_load_dwordx2 s[{R_X}:{R_X+1}], s[0:1], 0", "s_load_dwordx4 s[48:51], s[0:1], 48", "s_load_dwordx2 s[14:15], s[0:1], 8",
        f"s_load_dwordx2 s[{R_WS}:{R_WS+1}], s[0:1], 88", "s_load_dwordx4 s[8:11], s[0:1], 16", f"s_load_dwordx2 s[{R_O}:{R_O+1}], s[0:1], 32",
        f"s_load_dwordx2 s[{R_D}:{R_D+1}], s[0:1], 64", f"s_load_dwordx2 s[{R_OUT}:{R_OUT+1}], s[0:1], 72")
    a.e("v_lshrrev_b32 v20, 6, v0", "v_and_b32 v0, 63, v0")
    a.e(f"s_and_b32 s{sT0}, s2, 7", f"s_lshr_b32 s{sT1}, s2, 3", f"v_readfirstlane_b32 s{sW}, v20", f"s_lshr_b32 s{sTB}, s{sT0}, 2", f"v_lshlrev_b32 v{vL16}, 4, v0", f"s_lshl_b32 s{sTB}, s{sTB}, 3", f"s_and_b32 s{sT2}, s{sT1}, 7",
        f"s_add_u32 s{sTB}, s{sTB}, s{sT2}", f"s_and_b32 s{sJ}, s{sT0}, 3", f"s_lshl_b32 s{sJ}, s{sJ}, 2", f"s_lshr_b32 s{sT2}, s{sT1}, 3", f"s_add_u32 s{sJ}, s{sJ}, s{sT2}")
    a.e(f"s_mov_b32 s74, 4682", f"s_mov_b32 s75, 14", f"s_mov_b32 s76, 3584", f"s_mul_i32 s77, s{sJ}, 224", f"s_lshl_b32 s{sT3}, s{sJ}, 6", f"s_cmp_eq_u32 s{sW}, 7",
        f"s_cselect_b32 s74, 16384, s74", f"s_cselect_b32 s75, 4, s75", f"s_cselect_b32 s76, 1024, s76", f"s_cselect_b32 s77, s{sT3}, s77")
    for idx, vg, sm in ((0, vG0, sM0), (1, vG1, sM1)):
        a.e(f"s_lshl_b32 s{sT0}, s{sW}, 1")
        if idx: a.e(f"s_add_u32 s{sT0}, s{sT0}, 1")
        a.e(f"s_sub_u32 s{sT1}, s{sT0}, 7", f"s_cmp_lt_u32 s{sT0}, 7", f"s_cselect_b32 s{sT1}, s{sT0}, s{sT1}", f"s_cselect_b32 s{sT2}, 0, {UPO}",
            f"s_cmp_eq_u32 s{sW}, 7", f"s_cselect_b32 s{sT1}, {idx}, s{sT1}", f"s_cselect_b32 s{sT2}, {QO}, s{sT2}",
            f"s_lshl_b32 s{sT3}, s{sT1}, 10", f"s_add_u32 s{sm}, s{sT2}, s{sT3}", f"s_lshl_b32 s{sT1}, s{sT1}, 6")
        a.e(f"v_add_u32 v20, s{sT1}, v0", "v_mul_u32_u24 v21, s74, v20", "v_lshrrev_b32 v21, 16, v21", "v_mul_u32_u24 v22, s75, v21", "v_sub_u32 v22, v20, v22",
            "v_mul_u32_u24 v21, s76, v21", "v_lshl_add_u32 v21, v22, 4, v21", f"v_add_u32 v{vg}, s77, v21")
    a.e("v_lshrrev_b32 v24, 3, v0", f"s_lshl_b32 s{sT0}, s{sTB}, 7", f"s_lshl_b32 s{sT1}, s{sW}, 4", f"s_add_u32 s{sT0}, s{sT0}, s{sT1}", f"v_add_u32 v24, s{sT0}, v24",
        "v_lshrrev_b32 v25, 4, v0", "v_and_b32 v26, 7, v0", "v_xor_b32 v25, v25, v26", "v_lshlrev_b32 v25, 4, v25", f"v_lshl_add_u32 v{vX0}, v24, 10, v25",
        f"v_xor_b32 v{vX1}, 64, v{vX0}", f"v_add_u32 v{vX1}, 8192, v{vX1}")
    a.e(f"s_lshl_b32 s{sSTR}, s76, 5", f"s_lshl_b32 s{sEND}, s76, 9")
    if "norot" in KNOB:
        a.e(f"s_mov_b32 s{sGK}, 0", f"s_mov_b32 s{sGX}, 0")
    else:
        a.e(f"s_and_b32 s{sT0}, s{sTB}, 7", f"s_lshl_b32 s{sT0}, s{sT0}, 1", f"s_and_b32 s{sT1}, s{sJ}, 3", f"s_lshl_b32 s{sT1}, s{sT1}, 2", f"s_add_u32 s{sT0}, s{sT0}, s{sT1}",
            f"s_and_b32 s{sT0}, s{sT0}, 15", f"s_mul_i32 s{sGK}, s{sT0}, s{sSTR}", f"s_lshl_b32 s{sGX}, s{sT0}, 6")
    a.e(f"s_lshl_b32 s{sMX}, s{sW}, 11", f"s_add_u32 s{sMX}, s{sMX}, {L_X}")
    a.e("v_mov_b32 v21, 0")
    a.e("s_waitcnt lgkmcnt(0)")
    tsn(a, "karg")
    if "touch3" in KNOB:
        a.e("s_mov_b64 exec, 1", "global_load_dword v250, v21, s[48:49]", f"global_load_dword v250, v21, s[{R_X}:{R_X+1}]", "global_load_dword v250, v21, s[50:51]", "global_load_dword v250, v21, s[14:15]",
            "s_mov_b64 exec, -1")
    elif "touch2" in KNOB:
        a.e("global_load_dword v250, v21, s[48:49]", f"global_load_dword v251, v21, s[{R_X}:{R_X+1}]", "global_load_dword v252, v21, s[50:51]", "global_load_dword v253, v21, s[14:15]")
    elif "notouch" not in KNOB:
        a.e("global_load_dword v250, v21, s[44:45]", "global_load_dword v251, v21, s[46:47]")
    srd_fix(a, R_X, 2048 * 1024)
    for r, lim in ((R_GA, 4), (R_GB, 3)):
        a.e(f"s_cmp_lt_u32 s{sW}, {lim}", f"s_cselect_b32 s{r}, s48, s50", f"s_cselect_b32 s{r+1}, s49, s51", f"s_mov_b32 s{r+2}, {512*3584}",
            f"s_cmp_eq_u32 s{sW}, 7", f"s_cselect_b32 s{r}, s14, s{r}", f"s_cselect_b32 s{r+1}, s15, s{r+1}", f"s_cselect_b32 s{r+2}, {512*1024}, s{r+2}",
            f"s_and_b32 s{r+1}, s{r+1}, 0xffff", f"s_mov_b32 s{r+3}, 0x20000")

def p1_rest(a):
    srd_fix(a, R_WS, WS_SIZE)
    a.e(f"s_load_dword s{sNON}, s[{R_WS}:{R_WS+1}], {NLOC:#x}")
    a.e(f"s_mov_b32 s{R_F}, s8", f"s_and_b32 s{R_F+1}, s9, 0xffff", f"s_mov_b32 s{R_F+2}, 16384", f"s_mov_b32 s{R_F+3}, 0x20000",
        f"s_mov_b32 s44, s10", f"s_mov_b32 s45, s11")
    srd_fix(a, R_D, 1792 * 1024); srd_fix(a, R_O, 512 * 1024); srd_fix(a, R_OUT, 2048 * 1024)
    a.e(f"s_and_b32 s{sT0}, s2, 7", f"s_lshr_b32 s{sT1}, s2, 3", f"s_lshl_b32 s{sTB2}, s{sT0}, 2", f"s_and_b32 s{sT2}, s{sT1}, 3", f"s_add_u32 s{sTB2}, s{sTB2}, s{sT2}", f"s_lshr_b32 s{sNB}, s2, 5")
    a.e(f"s_lshr_b32 s{sAP}, s{sW}, 1", f"s_and_b32 s{sTP}, s{sW}, 1", f"s_and_b32 s{sKQ}, s{sW}, 3", f"s_lshr_b32 s{sCH}, s{sW}, 2")
    a.e(f"s_mov_b32 s{sMASK}, 0xffff0000", f"s_mov_b32 s{sONES}, 0x3f803f80")
    a.e(f"s_lshr_b32 s{sT0}, s{sTB}, 3", f"s_lshl_b32 s{sT0}, s{sT0}, 5", f"s_lshr_b32 s{sT1}, s2, 3", f"s_add_u32 s{sT0}, s{sT0}, s{sT1}", f"s_and_b32 s{sRB}, s{sT0}, 3", f"s_lshr_b32 s{sT0}, s{sT0}, 2",
        f"s_lshr_b32 s{sT1}, s{sJ}, 2")
    a.e(f"s_mul_i32 s{sT2}, s{sT1}, 7", f"s_add_u32 s{sT2}, s{sT2}, s{sT0}", f"s_mov_b32 s{sCG}, s{sT2}", f"s_mov_b32 s{sT3}, 3584",
        f"s_sub_u32 s75, s{sT2}, 7", f"s_cmp_ge_u32 s{sT0}, 7", f"s_cselect_b32 s74, 1, 0", f"s_cselect_b32 s{sT2}, s75, s{sT2}",
        f"s_add_u32 s75, s{sT2}, 28", f"s_cmp_ge_u32 s{sT0}, 7", f"s_cselect_b32 s{sCG}, s75, s{sCG}",
        f"s_lshl_b32 s75, s{sT1}, 1", f"s_add_u32 s75, s75, s{sT0}", f"s_sub_u32 s75, s75, 14", f"s_add_u32 s76, s75, 56", f"s_cmp_ge_u32 s{sT0}, 14",
        f"s_cselect_b32 s{sT2}, s75, s{sT2}", f"s_cselect_b32 s74, 2, s74", f"s_cselect_b32 s{sT3}, 1024, s{sT3}", f"s_cselect_b32 s{sCG}, s76, s{sCG}")
    a.e("v_lshrrev_b32 v24, 3, v0", f"s_lshl_b32 s{sT0}, s{sRB}, 7", f"s_lshl_b32 s{sT1}, s{sW}, 4", f"s_add_u32 s{sT0}, s{sT0}, s{sT1}", f"v_add_u32 v24, s{sT0}, v24", f"v_mul_lo_u32 v24, v24, s{sT3}",
        f"s_lshl_b32 s{sT2}, s{sT2}, 7", "v_and_b32 v25, 7, v0", "v_lshl_add_u32 v24, v25, 4, v24", f"v_add_u32 v204, s{sT2}, v24", f"s_lshl_b32 s{sCNT}, s{sT3}, 3")
    r = R_C
    a.e(f"s_cmp_eq_u32 s74, 0", f"s_cselect_b32 s{r}, s48, s50", f"s_cselect_b32 s{r+1}, s49, s51", f"s_mov_b32 s{r+2}, {512*3584}",
        f"s_cmp_eq_u32 s74, 2", f"s_cselect_b32 s{r}, s14, s{r}", f"s_cselect_b32 s{r+1}, s15, s{r+1}", f"s_cselect_b32 s{r+2}, {512*1024}, s{r+2}",
        f"s_and_b32 s{r+1}, s{r+1}, 0xffff", f"s_mov_b32 s{r+3}, 0x20000")
    a.e(f"s_mov_b32 s{R_G}, s44", f"s_and_b32 s{R_G+1}, s45, 0xffff", f"s_mov_b32 s{R_G+2}, 16384", f"s_mov_b32 s{R_G+3}, 0x20000")

def emit_items(a, items):
    for it in items:
        if it[0] == 'v': it[1]()
        else: a.e(it[1])

vCPW = 26
def p1_addr(a):
    a.e("v_and_b32 v40, 15, v0", "v_lshrrev_b32 v41, 2, v40", "v_lshrrev_b32 v42, 5, v0", "v_lshlrev_b32 v43, 3, v42", "v_add_u32 v41, v41, v43",
        "v_lshrrev_b32 v43, 4, v0", "v_and_b32 v43, 1, v43", "v_and_b32 v44, 3, v0", "v_lshlrev_b32 v44, 3, v44")
    a.e("v_and_b32 v47, 31, v0", "v_lshlrev_b32 v36, 4, v42")
    for q in range(2):
        a.e(f"s_xor_b32 s{sT0}, s{sTP}, {q}", f"s_lshl_b32 s{sT1}, s{sAP}, 1", f"s_add_u32 s{sT0}, s{sT0}, s{sT1}")
        a.e(f"s_lshl_b32 s{sT1}, s{sT0}, 5", f"s_mov_b32 s{sT2}, 224", f"s_mov_b32 s{sT3}, {UPO}", f"s_cmp_eq_u32 s{sT0}, 7",
            f"s_cselect_b32 s{sT1}, {QO}, s{sT1}", f"s_cselect_b32 s{sT2}, 64, s{sT2}", f"s_cselect_b32 s{sT3}, 32, s{sT3}")
        b = vWA + 4 * q
        a.e(f"v_mul_lo_u32 v45, v41, s{sT2}", f"v_mul_lo_u32 v46, v43, s{sT3}", "v_add_u32 v45, v45, v46", "v_add_u32 v45, v45, v44", f"v_add_u32 v{b}, s{sT1}, v45",
            f"s_lshl_b32 s{sT1}, s{sT2}, 2", f"v_add_u32 v{b+1}, s{sT1}, v{b}", f"s_lshl_b32 s{sT1}, s{sT2}, 4", f"v_add_u32 v{b+2}, s{sT1}, v{b}", f"v_add_u32 v{b+3}, s{sT1}, v{b+1}")
        a.e(f"s_mul_i32 s{sT1}, s{sJ}, 112", f"s_lshl_b32 s{sT2}, s{sT0}, 4", f"s_add_u32 s{sT1}, s{sT1}, s{sT2}", f"s_mov_b32 s{sT2}, 1776",
            f"s_lshl_b32 s{sT3}, s{sJ}, 5", f"s_add_u32 s{sT3}, s{sT3}, 3584", f"s_cmp_eq_u32 s{sT0}, 7", f"s_cselect_b32 s{sT1}, s{sT3}, s{sT1}", f"s_cselect_b32 s{sT2}, 0, s{sT2}")
        d = vCA if q == 0 else 62
        a.e(f"v_mul_lo_u32 v45, v43, s{sT2}", f"v_add_u32 v45, v45, v47", f"v_add_u32 v45, s{sT1}, v45", "v_lshlrev_b32 v45, 5, v45", f"v_add_u32 v{d}, v45, v36")
    a.e("v_and_b32 v40, 31, v0", "v_lshrrev_b32 v41, 1, v40", "v_and_b32 v41, 7, v41", "v_xor_b32 v41, v41, v42",
        "v_lshlrev_b32 v41, 4, v41", "v_lshlrev_b32 v45, 7, v40", "v_add_u32 v41, v45, v41")
    a.e(f"s_lshl_b32 s{sT0}, s{sTP}, 13", f"s_add_u32 s{sT0}, s{sT0}, {L_X}", f"v_add_u32 v{vXB}, s{sT0}, v41")
    for k4 in range(1, 4): a.e(f"v_xor_b32 v{vXB+k4}, {k4<<5}, v{vXB}")
    a.e(f"s_lshl_b32 s{sT0}, s{sKQ}, 9", f"s_and_b32 s{sT1}, s2, 31", f"s_lshl_b32 s{sT1}, s{sT1}, 11", f"s_add_u32 s{sT0}, s{sT0}, s{sT1}", "v_lshlrev_b32 v43, 3, v0", f"v_add_u32 v{vPK+3}, s{sT0}, v43")
    a.e(f"s_lshl_b32 s{sT0}, s{sTB}, 11", f"s_lshl_b32 s{sT1}, s{sTP}, 10", f"s_add_u32 s{sT0}, s{sT0}, s{sT1}", f"s_add_u32 s{sT0}, s{sT0}, {WS_ST}",
        f"v_add_u32 v{vPS+1}, s{sT0}, v{vL16}")
    a.e("v_and_b32 v41, 7, v0", "v_lshlrev_b32 v41, 3, v41", "v_lshlrev_b32 v43, 1, v42", "v_add_u32 v41, v41, v43", "v_lshrrev_b32 v43, 4, v0", "v_and_b32 v43, 1, v43", "v_add_u32 v41, v41, v43",
        "v_lshlrev_b32 v41, 2, v41", f"s_lshl_b32 s{sT0}, s{sW}, 8", f"s_add_u32 s{sT0}, s{sT0}, {L_CP}", f"v_add_u32 v63, s{sT0}, v41")
    a.e("v_lshrrev_b32 v41, 1, v0", "v_lshlrev_b32 v41, 8, v41", "v_and_b32 v43, 1, v0", "v_lshl_add_u32 v41, v43, 7, v41", f"s_lshl_b32 s{sT0}, s{sW}, 4", f"s_add_u32 s{sT0}, s{sT0}, {L_XN}", f"v_add_u32 v{vXW}, s{sT0}, v41")
    a.e("v_and_b32 v41, 3, v0", "v_lshrrev_b32 v43, 3, v0", "v_and_b32 v43, 1, v43", "v_lshl_add_u32 v41, v43, 2, v41", "v_lshlrev_b32 v41, 4, v41", "v_lshl_add_u32 v41, v42, 7, v41",
        f"s_lshl_b32 s{sT0}, s{sW}, 10", f"s_add_u32 s{sT0}, s{sT0}, {L_XN}", f"v_add_u32 v{vKX}, s{sT0}, v41")
    a.e("v_and_b32 v41, 15, v0", f"s_lshl_b32 s{sT2}, s{sW}, 12", f"s_add_u32 s{sT0}, s{sT2}, {L_FS}", "v_lshlrev_b32 v43, 8, v42", "v_lshl_add_u32 v43, v41, 3, v43", "v_and_b32 v44, 16, v0", "v_lshl_add_u32 v43, v44, 7, v43", f"v_add_u32 v{vKF}, s{sT0}, v43",
        f"v_add_u32 v{vPW}, s{sT0}, v{vL16}", f"s_lshl_b32 s{sT0}, s{sW}, 11", f"s_add_u32 s{sT0}, s{sT0}, {L_FS}", f"v_add_u32 v{vPR}, s{sT0}, v{vL16}")

def pf_addr(a):
    a.e("v_mul_u32_u24 v41, 5462, v0", "v_lshrrev_b32 v41, 16, v41", "v_mul_u32_u24 v43, 12, v41", "v_sub_u32 v43, v0, v43",
        "v_mul_u32_u24 v44, 21846, v43", "v_lshrrev_b32 v44, 16, v44", "v_mul_u32_u24 v45, 3, v44", "v_sub_u32 v45, v43, v45",
        "v_lshl_add_u32 v44, v41, 5, v44", f"s_and_b32 s{sT0}, s{sTB}, 7", f"s_lshl_b32 s{sT0}, s{sT0}, 2", f"v_add_u32 v44, s{sT0}, v44", "v_mul_u32_u24 v44, 3584, v44", "v_lshl_add_u32 v44, v45, 7, v44",
        f"s_mul_i32 s{sT1}, s{sJ}, 224", f"s_and_b32 s{sT1}, s{sT1}, {0xffffff80:#x}", f"v_add_u32 v29, s{sT1}, v44")
    a.e("v_lshrrev_b32 v41, 2, v0", "v_and_b32 v43, 3, v0", "v_lshl_add_u32 v41, v41, 5, v43", f"v_add_u32 v41, s{sT0}, v41", "v_lshlrev_b32 v41, 10, v41",
        f"s_lshl_b32 s{sT1}, s{sJ}, 6", f"s_and_b32 s{sT1}, s{sT1}, {0xffffff80:#x}", f"v_add_u32 v41, s{sT1}, v41", f"s_cmp_eq_u32 s{sW}, 7", "s_cselect_b64 vcc, -1, 0", "s_nop 1", "v_cndmask_b32 v29, v29, v41, vcc")
    a.e("v_and_b32 v41, 31, v0", f"s_lshl_b32 s{sT0}, s{sTB}, 7", f"s_and_b32 s{sT1}, s{sJ}, 3", f"s_lshl_b32 s{sT1}, s{sT1}, 5", f"s_add_u32 s{sT0}, s{sT0}, s{sT1}", f"v_add_u32 v41, s{sT0}, v41",
        "v_lshlrev_b32 v41, 10, v41", "v_lshrrev_b32 v43, 5, v0", "v_lshl_add_u32 v30, v43, 7, v41")

def post_lanes(a, nl, vaddr, soff):
    if nl == 1:
        a.e("s_mov_b64 exec, 1", f"buffer_store_dword v{vPK+2}, off, {RS}, s{soff} sc1", "s_mov_b64 exec, -1")
    else:
        a.e(f"s_mov_b32 exec_lo, {(1 << nl) - 1:#x}", "s_mov_b32 exec_hi, 0", f"buffer_store_dword v{vPK+2}, v{vaddr}, {RS}, s{soff} offen sc1", "s_mov_b64 exec, -1")

def make_dma(sc):
    def wdma(st):
        b = st % R1
        V_ = lambda x: ('v', lambda: sc.vmem(x, f"st{st}"))
        return [('s', f"s_add_u32 m0, s{sM0}, {b*WST}"), ('s', f"s_add_u32 s{sT3}, s{sM1}, {b*WST}"),
                V_(f"buffer_load_dwordx4 v{vG0}, {SR(R_GA)}, s{sGK} offen lds"),
                ('s', f"s_mov_b32 m0, s{sT3}"), ('s', f"s_add_u32 s{sT1}, s{sGK}, s{sSTR}"),
                V_(f"buffer_load_dwordx4 v{vG1}, {SR(R_GB)}, s{sGK} offen lds"),
                ('s', f"s_cmp_eq_u32 s{sT1}, s{sEND}"), ('s', f"s_cselect_b32 s{sGK}, 0, s{sT1}")]
    def xdma(u, e, tag):
        if u > 7: return []
        it = [('s', f"s_add_u32 m0, s{sMX}, {(u%3)*16384 + e*1024}"), ('s', "s_nop 0"),
              ('v', lambda: sc.vmem(f"buffer_load_dwordx4 v{vX1 if e else vX0}, {SR(R_X)}, s{sGX} offen lds", tag))]
        if e: it += [('s', f"s_add_u32 s{sGX}, s{sGX}, 128"), ('s', f"s_and_b32 s{sGX}, s{sGX}, 1023")]
        return it
    def dma(st, w=True):
        if st >= 16: return []
        it = wdma(st) if w else []
        if st == 0: it += xdma(0, 0, "st0") + xdma(0, 1, "st0")
        else: it += xdma((st + 1) // 2, (st + 1) & 1, f"st{st}")
        return it
    return dma

def tag_spin(a, name, loads, tagregs):
    t = tagregs
    if "nospin" in KNOB: return
    a.e(f"v_xor_b32 v23, s{sNON}, v{t[0]}")
    for r in t[1:]:
        a.e(f"v_xor_b32 v{r}, s{sNON}, v{r}", f"v_or_b32 v23, v23, v{r}")
    a.e("v_cmp_ne_u32 vcc, 0, v23", f"s_cbranch_vccnz {name}_spin")
    a.label(f"{name}_ok")
    tspins.append((name, loads, t))
tspins = []
def emit_tspins(a):
    for name, loads, t in tspins:
        a.label(f"{name}_spin")
        a.e(f"s_mov_b32 s{sCNT}, {SPIN}")
        a.label(f"{name}_loop")
        a.e("s_sleep 4")
        for x in loads: a.e(x)
        a.e("s_waitcnt vmcnt(0)", f"v_xor_b32 v23, s{sNON}, v{t[0]}")
        for r in t[1:]:
            a.e(f"v_xor_b32 v{r}, s{sNON}, v{r}", f"v_or_b32 v23, v23, v{r}")
        a.e("v_cmp_ne_u32 vcc, 0, v23", f"s_cbranch_vccz {name}_ok", f"s_sub_u32 s{sCNT}, s{sCNT}, 1", f"s_cmp_lg_u32 s{sCNT}, 0", f"s_cbranch_scc1 {name}_loop", f"s_branch {name}_ok")
    tspins.clear()

def p1_main(a, sc):
    pf = "p1"
    dma = make_dma(sc)
    p1_addr(a)
    if "pf3" in KNOB: pf_addr(a)
    tsn(a, "addr")
    a.e(f"s_lshl_b32 s{sT0}, s{sTB}, 7", f"s_lshr_b32 s{sT1}, s{sJ}, 1", f"s_lshl_b32 s{sT1}, s{sT1}, 4", f"s_add_u32 s{sT0}, s{sT0}, s{sT1}", f"s_and_b32 s{sT1}, s{sJ}, 1", f"s_lshl_b32 s{sT1}, s{sT1}, 2",
        f"s_add_u32 s{sT0}, s{sT0}, s{sT1}", f"s_add_u32 s{sT0}, s{sT0}, s{sKQ}", f"s_lshl_b32 s{sT1}, s{sCH}, 3", f"s_add_u32 s{sKT}_, s{sT0}, s{sT1}".replace(f"s{sKT}_", "s77"),
        "s_lshl_b32 s76, s77, 10")
    if "late2" not in KNOB: emit_items(a, dma(2))
    tsn(a, "i2")
    def reads(k):
        if k >= 32: return []
        st, ks, bs = k // 2, k & 1, k & 1
        b = st % R1
        u, k4 = k // 4, k & 3
        it = []
        L_ = lambda x: it.append(('v', lambda: sc.lds(x, f"k{k}")))
        for t in range(2):
            L_(f"ds_read_b128 {v(BF+8*bs+4*t,4)}, v{vXB+k4} offset:{(u%3)*16384 + t*4096}")
        for q in range(2):
            r = AF + 8 * bs + 4 * q
            L_(f"ds_read_b64_tr_b16 {v(r,2)}, v{vWA+4*q+2*ks} offset:{b*WST}")
            L_(f"ds_read_b64_tr_b16 {v(r+2,2)}, v{vWA+4*q+2*ks+1} offset:{b*WST}")
        return it
    a.e("s_waitcnt lgkmcnt(0)")
    a.e(f"s_mul_i32 s{sNON}, s{sNON}, 1664525", f"s_add_u32 s{sNON}, s{sNON}, 1013904223")
    sc.wait_vm("st0")
    a.e(f"v_mov_b32 v{vPK+2}, s{sNON}", "s_barrier")
    emit_items(a, reads(0))
    tsn(a, "loop0")
    xva = {k: [] for k in range(32)}; xld = {k: [] for k in range(32)}; xmf = {k: [] for k in range(32)}
    prebar = {k: [] for k in range(32)}; postbar = {k: [] for k in range(32)}; blk = {k: [] for k in range(32)}; top = {k: [] for k in range(32)}
    marks = {}
    DS = 2 if "late2" in KNOB else 0
    def spread(ops, ks):
        n = len(ops); per = (n + len(ks) - 1) // len(ks)
        for i, k in enumerate(ks): xva[k] += ops[i * per:(i + 1) * per]
    xld[0].append(('v', lambda: sc.vmem(f"buffer_load_dwordx4 {v(XRW,4)}, v{vL16}, {SR(R_X)}, s76 offen", "xr")))
    for x in (f"s_lshl_b32 s{sT2}, s{sW}, 11", f"s_lshl_b32 s{sT0}, s{sW}, 12", f"s_add_u32 m0, s{sT0}, {L_FS}", f"s_add_u32 s{sT0}, s{sT0}, {L_FS + 2048}"): xld[0].append(('s', x))
    xld[0].append(('v', lambda: sc.vmem(f"buffer_load_dwordx4 v{vL16}, {SR(R_F)}, s{sT2} offen lds", "f")))
    xld[0].append(('v', lambda: sc.vmem(f"buffer_load_dwordx4 v{vL16}, {SR(R_F)}, s{sT2} offen offset:1024 lds", "f")))
    xld[0].append(('s', f"s_mov_b32 m0, s{sT0}")); xld[0].append(('s', "s_nop 0"))
    xld[0].append(('v', lambda: sc.vmem(f"buffer_load_dwordx4 v{vL16}, {SR(R_G)}, s{sT2} offen lds", "f")))
    xld[0].append(('v', lambda: sc.vmem(f"buffer_load_dwordx4 v{vL16}, {SR(R_G)}, s{sT2} offen offset:1024 lds", "f")))
    if "pf3" in KNOB:
        pid = [0]
        def pfet(k, stW, uX):
            def f():
                pid[0] += 1
                l1, l2, l3 = f"{pf_}_a{pid[0]}", f"{pf_}_b{pid[0]}", f"{pf_}_c{pid[0]}"
                if stW is not None:
                    a.e(f"s_and_b32 s{sT0}, s{sW}, 3", f"s_cmp_lg_u32 s{sT0}, 0", f"s_cbranch_scc1 {l1}", f"s_mov_b32 s{sT0}, {stW*32*3584}",
                        f"buffer_load_dword v31, v29, {SR(R_GA)}, s{sT0} offen")
                    a.label(l1)
                if k == 0:
                    a.e(f"s_cmp_lg_u32 s{sW}, 7", f"s_cbranch_scc1 {l3}", f"buffer_load_dword v31, v29, {SR(R_GA)}, 0 offen")
                    a.label(l3)
                if uX is not None:
                    a.e(f"s_cmp_lg_u32 s{sW}, 3", f"s_cbranch_scc1 {l2}", f"s_mov_b32 s{sT0}, {uX*128}", f"buffer_load_dword v31, v30, {SR(R_X)}, s{sT0} offen")
                    a.label(l2)
            blk[k].append(f)
        pf_ = "pf"
        pfet(0, 4, 2); pfet(2, None, 4); pfet(4, 9, 6); pfet(10, 14, None)
    gid = [0]
    def gblk(k, ch, fn):
        def f():
            gid[0] += 1
            lab = f"{pf}_g{gid[0]}"
            a.e(f"s_cmp_lg_u32 s{sCH}, {ch}", f"s_cbranch_scc1 {lab}")
            fn()
            a.label(lab)
        blk[k].append(f)
    s0, s1, qa, qb, tm, nb = SA, SA + 1, SA + 2, SA + 3, SA + 4, SA + 5
    def A1():
        a.e(f"s_waitcnt vmcnt({sc.peek_vm('xr')})")
        a.e(f"v_mov_b32 v{s0}, 0", f"v_mov_b32 v{s1}, 0", f"v_mov_b32 v{qa}, 0", f"v_mov_b32 v{qb}, 0")
        for i in range(4):
            a.e(f"v_dot2_f32_bf16 v{SA+(i&1)}, v{XRW+i}, s{sONES}, v{SA+(i&1)}", f"v_dot2_f32_bf16 v{SA+2+(i&1)}, v{XRW+i}, v{XRW+i}, v{SA+2+(i&1)}")
        a.e("s_nop 2", f"v_add_f32 v{s0}, v{s0}, v{s1}", f"v_add_f32 v{qa}, v{qa}, v{qb}", "s_nop 1", f"v_permlane32_swap_b32 v{s0}, v{qa}", "s_nop 0", f"v_add_f32 v{s0}, v{s0}, v{qa}",
            f"v_mov_b32 v{tm}, v{s0}", "s_nop 1", f"v_permlane16_swap_b32 v{s0}, v{tm}", "s_nop 0", f"v_add_f32 v{s0}, v{s0}, v{tm}", "s_nop 1")
        for sh in (8, 4, 2, 1): a.e(f"v_add_f32_dpp v{s0}, v{s0}, v{s0} row_ror:{sh} row_mask:0xf bank_mask:0xf", "s_nop 1")
        a.e(f"v_mov_b32 v{qa}, v{s0}", "s_nop 1", f"v_permlane32_swap_b32 v{s0}, v{qa}", "s_nop 0",
            f"v_mul_f32 v{s0}, {f2u(1/512):#x}, v{s0}", f"v_mul_f32 v{qa}, {f2u(1/512):#x}, v{qa}", f"v_fma_f32 v{qa}, -v{s0}, v{s0}, v{qa}", f"v_max_f32 v{qa}, 0, v{qa}",
            f"v_add_f32 v{qa}, {f2u(1e-5):#x}, v{qa}", f"v_rsq_f32 v{RS_}, v{qa}", f"v_sub_f32 v{NM_}, 0, v{s0}", f"v_mov_b32 v{NM_+1}, s{sNON}", f"v_mul_f32 v{nb}, v{NM_}, v{RS_}", f"v_mov_b32 v{NM_+3}, s{sNON}")
        a.e("s_lshl_b32 s76, s77, 4", f"s_add_u32 s76, s76, {WS_ST}", "s_mov_b64 exec, 1", f"buffer_store_dwordx4 {v(NM_,4)}, off, {RS}, s76 sc1", "s_mov_b64 exec, -1")
    def A2():
        for i in range(4):
            lo, hi = SA + 2 * (i & 1), SA + 2 * (i & 1) + 1
            a.e(f"v_lshlrev_b32 v{lo}, 16, v{XRW+i}", f"v_and_b32 v{hi}, s{sMASK}, v{XRW+i}",
                f"v_fma_f32 v{lo}, v{lo}, v{RS_}, v{nb}", f"v_fma_f32 v{hi}, v{hi}, v{RS_}, v{nb}", f"v_cvt_pk_bf16_f32 v{XRW+i}, v{lo}, v{hi}")
        a.e(f"ds_write_b128 v{vXW}, {v(XRW,4)}")
    if "noA" not in KNOB:
        gblk(3 + DS, 0, A1); gblk(4 + DS, 0, A2); gblk(5 + DS, 1, A1); gblk(6 + DS, 1, A2)
    kb = 7 + DS
    prebar[kb].append(lambda: (a.e("s_waitcnt lgkmcnt(0)"), sc.lg.clear(), sc.wait_vm("f")))
    for st in range(4): postbar[kb].append(('v', lambda st=st: sc.lds(f"ds_read_b128 {v(XFR+4*st,4)}, v{vKX} offset:{st*256}", "kx")))
    for st in range(4):
        postbar[kb].append(('v', lambda st=st: sc.lds(f"ds_read_b64_tr_b16 {v(KFR+4*st,2)}, v{vKF} offset:{st*512}", "kx")))
        postbar[kb].append(('v', lambda st=st: sc.lds(f"ds_read_b64_tr_b16 {v(KFR+4*st+2,2)}, v{vKF} offset:{st*512+128}", "kx")))
    top[kb + 1].append(lambda: sc.wait_lg("kx"))
    for st in range(4): xmf[kb + 1].append(f"{MF} {v(D1,16)}, {v(KFR+4*st,4)}, {v(XFR+4*st,4)}, {'0' if st == 0 else v(D1,16)}")
    def pw():
        for qd in range(4): sc.lds(f"ds_write_b128 v{vPW}, {v(D1+4*qd,4)} offset:{qd*1024}", "pw")
    blk[kb + 2].append(pw)
    kb2 = kb + 4
    prebar[kb2].append(lambda: sc.wait_lg("pw"))
    def red1():
        a.e(f"s_cmp_ge_u32 s{sW}, 2", f"s_cbranch_scc1 {pf}_nr1")
        for wp in range(8):
            a.e(f"ds_read_b128 {v(RED+8*wp,4)}, v{vPR} offset:{wp*4096}", f"ds_read_b128 {v(RED+8*wp+4,4)}, v{vPR} offset:{wp*4096+1024}")
            if wp == 3: a.e("s_waitcnt lgkmcnt(4)")
        a.label(f"{pf}_nr1")
    blk[kb2 + 1].append(red1)
    def red2():
        a.e(f"s_cmp_ge_u32 s{sW}, 2", f"s_cbranch_scc1 {pf}_nr2", "s_waitcnt lgkmcnt(0)")
        for st in (4, 2, 1):
            for wp in range(st):
                for r in range(8): a.e(f"v_add_f32 v{RED+8*wp+r}, v{RED+8*wp+r}, v{RED+8*(wp+st)+r}")
        a.e(f"s_lshl_b32 s{sT0}, s{sTB}, 2", f"s_lshr_b32 s{sT1}, s{sJ}, 2", f"s_add_u32 s{sT0}, s{sT0}, s{sT1}", f"s_cmp_eq_u32 s{sW}, 1", f"s_cbranch_scc1 {pf}_rv")
        for j in range(4): a.e(f"v_cvt_pk_bf16_f32 v{RED+8+j}, v{RED+2*j}, v{RED+2*j+1}")
        a.e(f"s_lshl_b32 s{sT0}, s{sT0}, 10", f"s_and_b32 s{sT1}, s{sJ}, 2", f"s_lshl_b32 s{sT1}, s{sT1}, 7", f"s_add_u32 s{sT0}, s{sT0}, s{sT1}", f"s_and_b32 s{sT1}, s{sJ}, 1", f"s_lshl_b32 s{sT1}, s{sT1}, 6",
            f"s_add_u32 s{sT0}, s{sT0}, s{sT1}", f"s_add_u32 s{sT0}, s{sT0}, {WS_KF}", "s_mov_b32 exec_lo, 0xf0f", "s_mov_b32 exec_hi, 0xf0f")
        a.e(f"buffer_store_dwordx4 {v(RED+8,4)}, v{vL16}, {RS}, s{sT0} offen sc1", "s_mov_b64 exec, -1", f"s_branch {pf}_nr2")
        a.label(f"{pf}_rv")
        a.e("v_and_b32 v46, 3, v0", "v_lshrrev_b32 v47, 3, v0", "v_and_b32 v47, 1, v47", "v_lshl_add_u32 v46, v47, 2, v46", "v_lshlrev_b32 v46, 2, v46", "v_lshrrev_b32 v47, 5, v0",
            "v_lshl_add_u32 v46, v47, 7, v46", f"v_add_u32 v46, {L_XN}, v46", "v_and_b32 v47, 15, v0", "v_lshlrev_b32 v47, 5, v47", f"v_add_u32 v47, {L_XN}, v47")
        for r in range(8): a.e(f"ds_write_b32 v46, v{RED+r} offset:{(8*(r//4) + r%4)*32}")
        a.e(f"ds_read_b128 {v(RED+8,4)}, v47", f"ds_read_b128 {v(RED+12,4)}, v47 offset:16")
        a.e("v_and_b32 v46, 27, v0", "v_cmp_eq_u32 vcc, 16, v46", f"v_mov_b32 v{RED+16}, 0", f"v_mov_b32 v{RED+17}, s{sONES}",
            f"v_cndmask_b32 v{RED+16}, v{RED+16}, v{RED+17}, vcc", "v_cmp_gt_u32 vcc, 16, v0")
        a.e(f"s_lshl_b32 s{sT0}, s{sT0}, 11", f"s_and_b32 s{sT1}, s{sJ}, 2", f"s_lshl_b32 s{sT1}, s{sT1}, 9", f"s_add_u32 s{sT0}, s{sT0}, s{sT1}", f"s_and_b32 s{sT1}, s{sJ}, 1", f"s_lshl_b32 s{sT1}, s{sT1}, 9",
            f"s_add_u32 s{sT0}, s{sT0}, s{sT1}", f"s_add_u32 s{sT0}, s{sT0}, {WS_VF}", "s_waitcnt lgkmcnt(0)")
        for j in range(4): a.e(f"v_cvt_pk_bf16_f32 v{RED+j}, v{RED+8+2*j}, v{RED+8+2*j+1}")
        for j in range(4): a.e(f"v_cndmask_b32 v{RED+j}, v{RED+16}, v{RED+j}, vcc")
        a.e("s_mov_b32 exec_lo, -1", "s_mov_b32 exec_hi, 0", f"buffer_store_dwordx4 {v(RED,4)}, v{vL16}, {RS}, s{sT0} offen sc1", "s_mov_b64 exec, -1")
        a.label(f"{pf}_nr2")
        marks["kv"] = sc.count
    blk[kb2 + 2].append(red2)
    def kvflag():
        ny = sc.count - marks["kv"]
        a.e(f"s_cmp_ge_u32 s{sW}, 2", f"s_cbranch_scc1 {pf}_nkf")
        a.e(f"s_lshl_b32 s{sT0}, s{sTB}, 7", f"s_lshl_b32 s{sT1}, s{sJ}, 3", f"s_add_u32 s{sT0}, s{sT0}, s{sT1}", f"s_lshl_b32 s{sT1}, s{sW}, 2", f"s_add_u32 s{sT0}, s{sT0}, s{sT1}",
            f"v_lshlrev_b32 v46, 7, v{vL16}", f"s_waitcnt vmcnt({ny})")
        post_lanes(a, 32, 46, sT0)
        a.label(f"{pf}_nkf")
    blk[kb2 + 6].append(kvflag)
    xld[2].append(('v', lambda: sc.vmem(f"buffer_load_dwordx4 {v(CL0,4)}, v204, {SR(R_C)}, 0 offen", "cs")))
    xld[2].append(('v', lambda: sc.vmem(f"buffer_load_dwordx4 {v(CL1,4)}, v204, {SR(R_C)}, s{sCNT} offen", "cs")))
    def CSP():
        a.e(f"s_waitcnt vmcnt({sc.peek_vm('cs')})")
        for d in range(4): a.e(f"v_lshlrev_b32 v{CA+2*d}, 16, v{CL0+d}", f"v_and_b32 v{CA+2*d+1}, s{sMASK}, v{CL0+d}")
        for d in range(4):
            a.e(f"v_lshlrev_b32 v46, 16, v{CL1+d}", f"v_and_b32 v47, s{sMASK}, v{CL1+d}", f"v_add_f32 v{CA+2*d}, v{CA+2*d}, v46", f"v_add_f32 v{CA+2*d+1}, v{CA+2*d+1}, v47")
        a.e("s_nop 1")
        for d in range(4): a.e(f"v_permlane16_swap_b32 v{CA+2*d}, v{CA+2*d+1}")
        for d in (2, 3, 0, 1): a.e(f"v_add_f32 v{CA+2*d}, v{CA+2*d}, v{CA+2*d+1}")
        a.e("s_nop 0", f"v_permlane32_swap_b32 v{CA+4}, v{CA+6}", f"v_permlane32_swap_b32 v{CA}, v{CA+2}", "s_nop 0", f"v_add_f32 v{CA+4}, v{CA+4}, v{CA+6}", f"v_add_f32 v{CA}, v{CA}, v{CA+2}", "s_nop 1",
            f"v_add_f32_dpp v{CA+4}, v{CA+4}, v{CA+4} row_ror:8 row_mask:0xf bank_mask:0xf", f"v_add_f32_dpp v{CA}, v{CA}, v{CA} row_ror:8 row_mask:0xf bank_mask:0xf", "s_nop 0")
        a.e(f"ds_write_b32 v63, v{CA}", f"ds_write_b32 v63, v{CA+4} offset:16")
    if "noC" not in KNOB:
        gblk(6 + DS, 0, CSP); gblk(10 + DS, 1, CSP)
    prebar[11 + DS].append(lambda: (a.e("s_waitcnt lgkmcnt(0)"), sc.lg.clear()))
    def csfin():
        a.e(f"s_cmp_lg_u32 s{sW}, 3", f"s_cbranch_scc1 {pf}_ncf")
        a.e("v_lshlrev_b32 v63, 2, v0", f"v_add_u32 v46, {L_CP}, v63")
        for wp in range(0, 8, 2): a.e(f"ds_read2st64_b32 {v(CA+wp,2)}, v46 offset0:{wp} offset1:{wp+1}")
        a.e(f"s_lshl_b32 s{sT0}, s{sRB}, 3", f"s_lshl_b32 s{sT1}, s{sCG}, 11", f"s_add_u32 s{sT0}, s{sT0}, s{sT1}", f"s_add_u32 s{sT0}, s{sT0}, {WS_CS}", "v_lshlrev_b32 v63, 5, v0")
        a.e("s_waitcnt lgkmcnt(0)")
        for st in (4, 2, 1):
            for wp in range(st): a.e(f"v_add_f32 v{CA+wp}, v{CA+wp}, v{CA+wp+st}")
        a.e(f"v_mov_b32 v{CA+1}, s{sNON}", "s_nop 0")
        a.e(f"buffer_store_dwordx2 {v(CA,2)}, v63, {RS}, s{sT0} offen sc1")
        a.label(f"{pf}_ncf")
    blk[12 + DS].append(csfin)
    stl = [f"buffer_load_dwordx4 {v(ST_,4)}, v{vPS+1}, {RS}, 0 offen sc1"]
    csl = [f"buffer_load_dwordx4 {v(CSL+4*q,4)}, v{ad}, {RS}, s74 offen sc1" for q, ad in ((0, vCA), (1, 62))]
    xld[14].append(('s', f"s_mov_b32 s74, {WS_CS}"))
    xld[14].append(('v', lambda: sc.vmem(stl[0], "tl2")))
    xld[18 + DS].append(('v', lambda: sc.vmem(csl[0], "tl2")))
    xld[20 + DS].append(('v', lambda: sc.vmem(csl[1], "tl2")))
    s_qs = f2u(QSCALE)
    cid = [0]
    def CK():
        cid[0] += 1
        a.e(f"s_waitcnt vmcnt({sc.peek_vm('tl2')})")
        tag_spin(a, f"tg{cid[0]}", stl + csl, [ST_ + 1, ST_ + 3, CSL + 1, CSL + 3, CSL + 5, CSL + 7])
        a.e(f"v_mov_b32 v{ST_+4}, v{ST_}", f"v_mov_b32 v{ST_+6}, v{ST_+2}", f"v_add_f32 v{CSL}, v{CSL}, v{CSL+2}", f"v_add_f32 v{CSL+4}, v{CSL+4}, v{CSL+6}",
            f"v_permlane32_swap_b32 v{ST_}, v{ST_+4}", f"v_permlane32_swap_b32 v{ST_+2}, v{ST_+6}", f"v_mov_b32 v{CSL+1}, v{CSL}", f"v_mov_b32 v{CSL+5}, v{CSL+4}",
            f"s_lshl_b32 s{sT0}, s{sW}, 8", f"s_add_u32 s{sT0}, s{sT0}, {L_CS}", "v_and_b32 v22, 31, v0", "v_lshlrev_b32 v22, 2, v22",
            f"v_permlane32_swap_b32 v{CSL}, v{CSL+1}", f"v_permlane32_swap_b32 v{CSL+4}, v{CSL+5}", f"v_add_u32 v22, s{sT0}, v22", "v_lshrrev_b32 v23, 5, v0", "v_lshlrev_b32 v23, 4, v23",
            f"v_add_f32 v{CSL}, v{CSL}, v{CSL+1}", f"v_add_f32 v{CSL+4}, v{CSL+4}, v{CSL+5}", f"v_add_u32 v23, s{sT0}, v23")
        a.e(f"ds_write_b32 v22, v{CSL}", f"ds_write_b32 v22, v{CSL+4} offset:128")
        for q in range(2):
            for g in range(4): a.e(f"ds_read_b128 {v(CS+16*q+4*g,4)}, v23 offset:{q*128+g*32}")
        for t in range(2):
            n_, r_ = ST_ + 4 * t, ST_ + 4 * t + 2
            a.e(f"v_mov_b32 v{NM+2*t}, v{n_}", f"v_mov_b32 v{NM+2*t+1}, v{n_}", f"v_mul_f32 v{RR+2*t}, v{r_}, v{r_}", f"v_mul_f32 v{RQ+2*t}, {s_qs:#x}, v{r_}",
                f"v_mov_b32 v{RR+2*t+1}, v{RR+2*t}", f"v_mov_b32 v{RQ+2*t+1}, v{RQ+2*t}")
    gblk(25 + DS // 2, 0, CK); gblk(27 + DS // 2, 1, CK)
    kvp = f"buffer_load_dwordx2 {v(vPK,2)}, v{vPK+3}, {RS}, 0 offen sc1"
    xld[24].append(('v', lambda: sc.vmem(kvp, "pkv")))
    def kvld():
        sc.wait_vm("pkv")
        tag_spin(a, "pkv", [kvp], [vPK, vPK + 1])
        a.e(f"s_lshl_b32 s{sK}, s{sKQ}, 14", f"s_add_u32 s{sK}, s{sK}, {WS_KF}", f"s_lshl_b32 s{sV}, s{sKQ}, 15", f"s_add_u32 s{sV}, s{sV}, {WS_VF}")
        sc.vmem(f"buffer_load_dwordx4 {v(KF,4)}, v{vL16}, {RS}, s{sK} offen sc1", "K0")
        sc.vmem(f"buffer_load_dwordx4 {v(VF,4)}, v{vL16}, {RS}, s{sV} offen sc1", "V0")
        sc.vmem(f"buffer_load_dwordx4 {v(VF+4,4)}, v{vL16}, {RS}, s{sV} offen offset:1024 sc1", "V0")
        sc.vmem(f"buffer_load_dwordx4 {v(KF+4,4)}, v{vL16}, {RS}, s{sK} offen offset:1024 sc1", "K1")
    blk[30].append(kvld)
    a.raw(".p2align 3")
    pending = (dma(2) if "late2" in KNOB else []) + dma(3)
    if "late2" in KNOB:
        xld[4] = xld[2] + xld[4]; xld[2] = xld[0]; xld[0] = []
    if "noB" in KNOB:
        postbar[7].clear(); top[8].clear(); xmf[8].clear(); blk[9].clear(); blk[12] = blk[12][1:]; blk[13].clear(); blk[17].clear(); prebar[11] = prebar[11][1:]
    if "noK" in KNOB:
        blk[25].clear(); blk[27].clear(); xld[14].clear(); xld[18].clear(); xld[20].clear()
    if "noC" in KNOB:
        blk[12] = [f for f in blk[12] if f is not csfin]; xld[2].clear()
    if "noR" in KNOB:
        xld[0].clear()
    if "noF" in KNOB: pass
    for k in range(32):
        bs = k & 1
        tsn(a, f"k{k}")
        sc.wait_lg(f"k{k}")
        for f in top[k]: f()
        newstage = (k & 1) and k + 1 < 32
        mf = []
        for q in range(2):
            for t in range(2):
                ac = ACC + (q * 2 + t) * 16
                mf.append(f"{MF} {v(ac,16)}, {v(AF+8*bs+4*q,4)}, {v(BF+8*bs+4*t,4)}, {'0' if k == 0 else v(ac,16)}")
        va = list(xva[k])
        if newstage:
            i = (k + 1) // 2
            q1 = []; q2 = reads(k + 1) + postbar[k]
            nd = dma(i + R1 - 1)
        else:
            q1 = reads(k + 1) + pending + xld[k]; pending = []; q2 = []
            assert not postbar[k] and not prebar[k]
        if newstage: assert not xld[k], k
        n = 4
        if newstage: per = [0, 0] + [(len(q2) + 1) // 2, len(q2) // 2]
        else: per = [(len(q1) + n - 1 - i) // n for i in range(n)]
        perv = [(len(va) + n - 1 - i) // n for i in range(n)]
        for i in range(n):
            if i == 2 and newstage:
                for f in prebar[k]: f()
                sc.wait_vm(f"st{(k+1)//2}")
                a.e("s_barrier")
            a.e(mf[i])
            qq_ = q2 if newstage else q1
            for _ in range(per[i]): emit_items(a, [qq_.pop(0)])
            for _ in range(perv[i]): a.e(va.pop(0))
        for m_ in xmf[k]: a.e(m_)
        for f in blk[k]: f()
        if newstage: pending = nd
    tsn(a, "loop1")

KV_K0, CS_K0, LD_K, CK_K, KP_K = 1, 3, 18, 26, 24
NM_, RS_ = 74, 76
def phase1(a):
    p1_prologue(a)
    sc = Sched2(a)
    if "touch2" in KNOB or "touch3" in KNOB: sc.vm = ["tl"] * 4
    elif "notouch" not in KNOB: sc.vm = ["tl", "tl"]
    dma = make_dma(sc)
    emit_items(a, dma(0))
    tsn(a, "i0")
    a.e("s_barrier")
    emit_items(a, dma(1))
    tsn(a, "dma")
    if "touch3" in KNOB:
        a.e("v_lshlrev_b32 v21, 21, v0", "s_mov_b64 exec, 0xff")
        sc.vmem(f"global_load_dword v250, v21, s[{R_WS}:{R_WS+1}]", "tl3")
        a.e("s_mov_b64 exec, 1", "v_mov_b32 v21, 0")
        for p in (R_D, R_O, R_OUT, 8, 10): sc.vmem(f"global_load_dword v250, v21, s[{p}:{p+1}]", "tl3")
        a.e("s_mov_b64 exec, -1")
    p1_rest(a)
    p1_main(a, sc)
    return sc

def boundary(a, sc):
    a.e(f"s_lshl_b32 s{sT0}, s{sTB}, 2", f"s_lshl_b32 s{sT1}, s{sTP}, 1", f"s_add_u32 s{sT0}, s{sT0}, s{sT1}", f"s_mul_i32 s{sT0}, s{sT0}, {112*1024}",
        f"s_mul_i32 s{sT1}, s{sJ}, {7*1024}", f"s_add_u32 s{sT0}, s{sT0}, s{sT1}", f"s_add_u32 s74, s{sT0}, {WS_H}", f"s_add_u32 s75, s74, {112*1024}")
    a.e("s_waitcnt lgkmcnt(0)")
    PKR = AF
    for q in range(2):
        lq, ld = f"pb_q{q}", f"pb_d{q}"
        a.e(f"s_xor_b32 s{sT0}, s{sTP}, {q}", f"s_lshl_b32 s{sT1}, s{sAP}, 1", f"s_add_u32 s{sT0}, s{sT0}, s{sT1}", f"s_lshl_b32 s{sT2}, s{sT0}, 10")
        if q == 0: a.nop(4)
        for t in range(2):
            ac = ACC + (q * 2 + t) * 16; cs = CS + 16 * q
            for r in range(0, 16, 2): a.e(f"v_pk_fma_f32 {v(ac+r,2)}, {v(cs+r,2)}, {v(NM+2*t,2)}, {v(ac+r,2)}")
        a.e(f"s_cmp_eq_u32 s{sT0}, 7", f"s_cbranch_scc1 {lq}")
        for t in range(2):
            ac = ACC + (q * 2 + t) * 16
            for r in range(8): a.e(f"v_max_f32 v{ac+r}, 0, v{ac+r}")
            for r in range(0, 8, 2): a.e(f"v_pk_mul_f32 {v(ac+r,2)}, {v(ac+r,2)}, {v(ac+8+r,2)}")
            for r in range(0, 8, 2): a.e(f"v_pk_mul_f32 {v(ac+r,2)}, {v(ac+r,2)}, {v(RR+2*t,2)}")
            pk = PKR + 8 * q + 4 * t
            for jj in range(4): a.e(f"v_cvt_pk_bf16_f32 v{pk+jj}, v{ac+2*jj}, v{ac+2*jj+1}")
            a.e(f"s_add_u32 s{sT1}, s{74+t}, s{sT2}")
            a.e(f"buffer_store_dwordx4 {v(pk,4)}, v{vL16}, {RS}, s{sT1} offen sc1")
        a.e(f"s_branch {ld}")
        a.label(lq)
        a.e(f"s_lshl_b32 s{sT0}, s{sTP}, 11", f"s_add_u32 s{sT0}, s{sT0}, {L_Q}", f"v_add_u32 v23, s{sT0}, v{vL16}")
        for t in range(2):
            ac = ACC + (q * 2 + t) * 16
            for r in range(0, 16, 2): a.e(f"v_pk_mul_f32 {v(ac+r,2)}, {v(ac+r,2)}, {v(RQ+2*t,2)}")
            for jj in range(8): a.e(f"v_cvt_pk_bf16_f32 v{ac+jj}, v{ac+2*jj}, v{ac+2*jj+1}")
            for hh in range(2):
                a.e(f"ds_write_b128 v23, {v(ac+4*hh,4)} offset:{hh*4096+t*1024}")
        a.e(f"s_mul_i32 s{sT0}, s2, {112*64}", f"s_lshl_b32 s{sT1}, s2, 11", f"s_mul_i32 s{sT2}, s{sTP}, {48*64}", f"s_add_u32 s{sT0}, s{sT0}, s{sT2}", "v_lshlrev_b32 v23, 6, v0")
        a.e(f"buffer_load_dword v250, v23, {SR(R_D)}, s{sT0} offen", "v_and_b32 v23, 2047, v23", f"buffer_load_dword v251, v23, {SR(R_O)}, s{sT1} offen")
        a.label(ld)
    sc.vm += ["hst"] * 4

class Ffn2:
    R = RING
    NK = 28
    vWo, vWo2, vWA0, vWA1, vBB, vB2 = 2, 3, 4, 5, 6, 7
    T0 = 24
    TPOLL = 16
    def tj(self, j): return self.T0 + 2 * j
    def setup(self, a):
        L = "v0"
        a.e(f"v_lshrrev_b32 v4, 3, {L}", "v_lshlrev_b32 v4, 10, v4", f"v_lshrrev_b32 v5, 4, {L}", "v_and_b32 v5, 1, v5", "v_lshlrev_b32 v5, 2, v5",
            f"v_and_b32 v6, 7, {L}", "v_xor_b32 v6, v6, v5", "v_lshlrev_b32 v6, 4, v6", f"v_add_u32 v{self.vWo}, v4, v6")
        a.e(f"s_lshl_b32 s{sT0}, s{sNB}, 7", f"v_add_u32 v{self.vWo}, s{sT0}, v{self.vWo}", f"v_add_u32 v{self.vWo2}, {8192-1024}, v{self.vWo}")
        a.e(f"v_add_u32 v{self.vB2}, {112*1024-1024}, v{vL16}")
        a.e(f"s_mul_i32 s{sLB}, s{sW}, {self.R*4096}")
        a.e(f"s_mul_i32 s{sGW}, s{sW}, {28*16*1024}", f"s_sub_u32 s{sGW}, s{sGW}, 16384")
        a.e(f"s_mul_i32 s{sGB}, s{sTB2}, {2*112*1024}", f"s_mul_i32 s{sT0}, s{sW}, {28*1024}", f"s_add_u32 s{sGB}, s{sGB}, s{sT0}",
            f"s_add_u32 s{sGB}, s{sGB}, {WS_H - 2048 - 1024}")
        a.e(f"v_and_b32 v4, 15, {L}", "v_lshrrev_b32 v5, 2, v4", f"v_lshrrev_b32 v6, 5, {L}", "v_lshlrev_b32 v6, 2, v6", "v_add_u32 v5, v5, v6",
            "v_lshlrev_b32 v5, 7, v5", "v_lshrrev_b32 v6, 3, v4", "v_lshlrev_b32 v6, 6, v6", "v_add_u32 v5, v5, v6",
            f"v_lshrrev_b32 v6, 4, {L}", "v_and_b32 v6, 1, v6", "v_lshlrev_b32 v6, 5, v6", "v_add_u32 v5, v5, v6",
            f"v_and_b32 v6, 3, {L}", "v_lshlrev_b32 v6, 3, v6", "v_add_u32 v5, v5, v6")
        a.e(f"v_add_u32 v{self.vWA0}, s{sLB}, v5", f"v_xor_b32 v{self.vWA1}, 64, v{self.vWA0}", f"v_add_u32 v{self.vBB}, s{sLB}, v{vL16}")
        a.e(f"v_lshrrev_b32 v{GA}, 2, v{vL16}", f"s_lshl_b32 s{sKT}, s{sTB2}, 8", f"s_add_u32 s{sKT}, s{sKT}, {FL_H}")
    def w_items(self, st, sc, j, tile):
        slot = j % self.R
        st.add('s', f"s_add_u32 m0, s{sLB}, {slot*4096}", tile)
        st.add('s', f"s_add_u32 s{sGW}, s{sGW}, 16384", tile)
        st.add('v', lambda: sc.vmem(f"buffer_load_dwordx4 v{self.vWo}, {SR(R_D)}, s{sGW} offen lds", f"d{j}"), tile)
        st.add('v', lambda: sc.vmem(f"buffer_load_dwordx4 v{self.vWo2}, {SR(R_D)}, s{sGW} offen offset:1024 lds", f"d{j}"), tile)
    def h_items(self, st, sc, j, tile, setm0):
        slot = j % self.R
        st.add('s', f"s_add_u32 m0, s{sLB}, {slot*4096}", tile)
        st.add('s', f"s_add_u32 s{sGB}, s{sGB}, 1024", tile)
        st.add('v', lambda: sc.vmem(f"buffer_load_dwordx4 v{vL16}, {RS}, s{sGB} offen offset:2048 lds", f"d{j}"), tile)
        st.add('v', lambda: sc.vmem(f"buffer_load_dwordx4 v{self.vB2}, {RS}, s{sGB} offen offset:3072 lds", f"d{j}"), tile)
    def read_items(self, st, sc, j, tile):
        slot, bs = j % self.R, j & 1
        dl = self.tj(j)
        st.add('w', lambda: sc.wait_vm(f"d{j}"), tile)
        for t in range(2):
            st.add('v', (lambda t=t: sc.lds(f"ds_read_b128 {v(GB+8*bs+4*t,4)}, v{self.vBB} offset:{slot*4096+2048+t*1024}", f"k{j}")), tile, dl)
        for q, ad in enumerate((self.vWA0, self.vWA1)):
            r = GA + 8 * bs + 4 * q
            st.add('v', (lambda r=r, ad=ad: sc.lds(f"ds_read_b64_tr_b16 {v(r,2)}, v{ad} offset:{slot*4096}", f"k{j}")), tile, dl)
            st.add('v', (lambda r=r, ad=ad: sc.lds(f"ds_read_b64_tr_b16 {v(r+2,2)}, v{ad} offset:{slot*4096+1024}", f"k{j}")), tile, dl)
    def build(self, a, sc, NTOT):
        nonm = {t: [] for t in range(NTOT)}; gm = {t: [] for t in range(NTOT)}; pre = {t: [] for t in range(NTOT)}
        st = Stream()
        for j in range(self.R): self.w_items(st, sc, j, j)
        st.add('v', lambda: sc.vmem(f"buffer_load_dword v{GA+1}, v{GA}, {RS}, s{sKT} offen sc1", "ph"), self.TPOLL)
        def chk():
            sc.wait_vm("ph"); poll_check(a, "ph", GA + 1, GA, f"s{sKT}")
        pre[self.TPOLL + 2].append(chk)
        for j in range(self.R): self.h_items(st, sc, j, self.TPOLL + 2 + j // 2, True)
        for j in range(self.NK):
            t = self.tj(j)
            self.read_items(st, sc, j, t - 2)
            if j + self.R < self.NK:
                self.w_items_loop(st, sc, j + self.R, t)
            bs = j & 1
            pre[t].append(lambda j=j: sc.wait_lg(f"k{j}"))
            for nt in range(2):
                for tt in range(2):
                    ac = GACC + (nt * 2 + tt) * 16
                    c = "0" if j == 0 else v(ac, 16)
                    gm[t + nt].append(f"{MF} {v(ac,16)}, {v(GA+8*bs+4*nt,4)}, {v(GB+8*bs+4*tt,4)}, {c}")
        items = sorted(enumerate(st.items), key=lambda x: (x[1][2], 0 if x[1][3] is not None or x[1][0] == 'w' else 1, x[0]))
        items = [x[1] for x in items]
        cap = 5
        cur = 0; cnt = 0
        for kind, x, tile, dl in items:
            if tile > cur: cur = tile; cnt = 0
            if kind == 'v':
                if cnt >= cap: cur += 1; cnt = 0
                cnt += 1
            assert dl is None or cur < dl, (cur, dl)
            nonm[cur].append((kind, x))
        return nonm, gm, pre
    def w_items_loop(self, st, sc, j, tile):
        slot = j % self.R
        st.add('s', f"s_add_u32 m0, s{sLB}, {slot*4096}", tile)
        st.add('s', f"s_add_u32 s{sGW}, s{sGW}, 16384", tile)
        st.add('s', f"s_add_u32 s{sGB}, s{sGB}, 1024", tile)
        st.add('v', lambda: sc.vmem(f"buffer_load_dwordx4 v{self.vWo}, {SR(R_D)}, s{sGW} offen lds", f"d{j}"), tile)
        st.add('v', lambda: sc.vmem(f"buffer_load_dwordx4 v{self.vWo2}, {SR(R_D)}, s{sGW} offen offset:1024 lds", f"d{j}"), tile)
        st.add('v', lambda: sc.vmem(f"buffer_load_dwordx4 v{vL16}, {RS}, s{sGB} offen offset:2048 lds", f"d{j}"), tile)
        st.add('v', lambda: sc.vmem(f"buffer_load_dwordx4 v{self.vB2}, {RS}, s{sGB} offen offset:3072 lds", f"d{j}"), tile)

class NoG:
    def build(self, a, sc, NTOT): return {t: [] for t in range(NTOT)}, {t: [] for t in range(NTOT)}, {t: [] for t in range(NTOT)}

HFLAG_TILE = 2
def attn_main(a, sc, g, bar_tiles=(), prio_tiles={}):
    def loadK(kt):
        if kt >= NKT: return
        sc.vmem(f"buffer_load_dwordx4 {v(KF+4*(kt&1),4)}, v{vL16}, {RS}, s{sK} offen offset:{(kt&3)*1024} sc1", f"K{kt}")
    def loadV(kt, h):
        if kt >= NKT: return
        sc.vmem(f"buffer_load_dwordx4 {v(VF+8*(kt&1)+4*h,4)}, v{vL16}, {RS}, s{sV} offen offset:{(kt&1)*2048+h*1024} sc1", f"V{kt}")
    NTOT = NT + 20
    nonm, gm, pre = g.build(a, sc, NTOT)
    def hflag():
        sc.wait_vm("hst")
        post_flag(a, sc, 0, sT3)
    sc.wait_vm(["K0"])
    a.e(f"{MF} {v(S,16)}, {v(KF,4)}, {v(Q,4)}, 0")
    a.nop(12)
    tsn(a, "att0")
    a.raw(".p2align 3")
    for t in range(NT):
        kt, c = t // 4, t & 3
        Sin, Sout = S + 16 * (t & 1), S + 16 * ((t + 1) & 1)
        Pcur, Pprev = P + 8 * (t & 1), P + 8 * ((t + 1) & 1)
        q = list(nonm[t])
        if c == 3 and kt + 2 < NKT:
            if ((kt + 2) & 3) == 0: q.append(('s', f"s_add_u32 s{sK}, s{sK}, 4096"))
            q.append(('v', lambda kt=kt: loadK(kt + 2)))
        if c == 1 and kt + 1 < NKT:
            if ((kt + 1) & 1) == 0: q.append(('s', f"s_add_u32 s{sV}, s{sV}, 4096"))
            q.append(('v', lambda kt=kt: loadV(kt + 1, 0))); q.append(('v', lambda kt=kt: loadV(kt + 1, 1)))
        tsn(a, f"t{t}")
        if t in prio_tiles: a.e(f"s_setprio {prio_tiles[t]}", "s_nop 0")
        if t in bar_tiles: a.e("s_barrier")
        if t == HFLAG_TILE: hflag()
        for f in pre[t]: f()
        nt = t + 1; pt = t - 1
        if pt >= 0 and (pt & 3) == 0: sc.wait_vm(f"V{pt//4}")
        if nt < NT and (nt & 3) == 0: sc.wait_vm(f"K{nt//4}")
        Sm = f"{MF} {v(Sout,16)}, {v(KF+4*((nt//4)&1),4)}, {v(Q+4*(nt&3),4)}, 0" if nt < NT else None
        PV1 = PV2 = None
        if pt >= 0:
            Op = O + 16 * (pt & 3); vb = VF + 8 * ((pt // 4) & 1)
            c0 = "0" if pt < 4 else v(Op, 16)
            PV1 = f"{MF} {v(Op,16)}, {v(vb,4)}, {v(Pprev,4)}, {c0}"
            PV2 = f"{MF} {v(Op,16)}, {v(vb+4,4)}, {v(Pprev+4,4)}, {v(Op,16)}"
        G = list(gm[t])
        e = lambda i: a.e(f"v_exp_f32 v{Sin+i}, v{Sin+i}")
        cv = lambda j: a.e(f"v_cvt_pk_bf16_f32 v{Pcur+j}, v{Sin+2*j}, v{Sin+2*j+1}")
        ms = [PV1, Sm] + ([G[0]] if G else []) + [PV2] + ([G[1]] if len(G) > 1 else [])
        nslots = len(ms)
        per = [(len(q) + nslots - 1 - i) // nslots for i in range(nslots)]
        it_m = iter(range(nslots))
        def M():
            i = next(it_m)
            if ms[i]: a.e(ms[i])
            for _ in range(per[i]):
                kind, it = q.pop(0)
                if kind == 's': a.e(it)
                else: it()
        if nslots == 3:
            M(); e(0); e(1); e(2); e(3); cv(0); e(4); e(5); cv(1)
            M(); e(6); e(7); cv(2); e(8); e(9); cv(3)
            M(); e(10); e(11); cv(4); e(12); e(13); cv(5); e(14); e(15); cv(6); cv(7)
        elif nslots == 4:
            M(); e(0); e(1); e(2); e(3); cv(0)
            M(); e(4); e(5); cv(1); e(6); e(7); cv(2)
            M(); e(8); e(9); cv(3); e(10); e(11); cv(4)
            M(); e(12); e(13); cv(5); e(14); e(15); cv(6); cv(7)
        else:
            M(); e(0); e(1); e(2); e(3)
            M(); cv(0); e(4); e(5); cv(1); e(6); e(7)
            M(); cv(2); e(8); e(9); cv(3)
            M(); e(10); e(11); cv(4); e(12); e(13)
            M(); cv(5); e(14); e(15); cv(6); cv(7)
        assert not q
    tsn(a, "att1")
    pt = NT - 1
    Op = O + 16 * 3; vb = VF + 8 * 1; Pp = P + 8 * (pt & 1)
    a.nop(2)
    a.e(f"{MF} {v(Op,16)}, {v(vb,4)}, {v(Pp,4)}, {v(Op,16)}", f"{MF} {v(Op,16)}, {v(vb+4,4)}, {v(Pp+4,4)}, {v(Op,16)}")
    for t in range(NT, NTOT):
        for f in pre[t]: f()
        for m in gm[t]: a.e(m)
        for kind, it in nonm[t]:
            if kind == 's': a.e(it)
            else: it()

def lsync(a, idx, name, vt):
    a.e(f"s_lshl_b32 s{sT0}, s{sKQ}, 2", f"s_add_u32 s{sT0}, s{sT0}, {L_FL + idx*16}", f"v_mov_b32 v{vt+4}, s{sT0}", f"v_mov_b32 v{vt+5}, 1", f"ds_write_b32 v{vt+4}, v{vt+5}",
        f"v_mov_b32 v{vt+4}, {L_FL + idx*16}", f"s_mov_b32 s{sCNT}, {SPIN*8}")
    a.label(f"{name}_l")
    a.e(f"ds_read_b128 {v(vt,4)}, v{vt+4}", "s_waitcnt lgkmcnt(0)", f"v_and_b32 v{vt}, v{vt}, v{vt+1}", f"v_and_b32 v{vt+2}, v{vt+2}, v{vt+3}", f"v_and_b32 v{vt}, v{vt}, v{vt+2}",
        f"v_cmp_ne_u32 vcc, 1, v{vt}", f"s_cbranch_vccz {name}_d", "s_sleep 3" if "slp" in KNOB else "s_sleep 1", f"s_sub_u32 s{sCNT}, s{sCNT}, 1", f"s_cmp_lg_u32 s{sCNT}, 0", f"s_cbranch_scc1 {name}_l")
    a.label(f"{name}_d")

def attn_write(a):
    a.e(f"s_mul_i32 s{sT0}, s{sW}, {4*2304}", f"s_add_u32 s{sT0}, s{sT0}, {L_AP}")
    a.e(f"v_add_u32 v2, s{sT0}, v{vL16}", f"v_lshrrev_b32 v3, 2, v{vL16}", f"v_add_u32 v3, s{sT0}, v3")
    for c in range(4):
        a.e(f"ds_write_b128 v2, {v(O+16*c,4)} offset:{c*2304}", f"ds_write_b128 v2, {v(O+16*c+4,4)} offset:{c*2304+1024}",
            f"ds_write_b32 v3, v{O+16*c+8} offset:{c*2304+2048}")

def slow_path(a, pfx, RB):
    QS, KS, VS, SS, PS, OS, CS, MX = 160 + 8, 172, 176, 184, 200, 208, 224, 240
    for c in range(4):
        lab = f"{pfx}_q{c}"
        a.e(f"s_cmp_lg_u32 s{sKQ}, {c}", f"s_cbranch_scc1 {lab}")
        for r in range(4): a.e(f"v_mov_b32 v{QS+r}, v{Q+4*c+r}")
        a.label(lab)
    a.e(f"v_mov_b32 v{MX}, 0xff800000", f"s_mov_b32 s{sT0}, {WS_KF}", f"s_mov_b32 s{sT1}, 64")
    a.label(f"{pfx}_l1")
    a.e(f"buffer_load_dwordx4 {v(KS,4)}, v{vL16}, {RS}, s{sT0} offen sc1", "s_waitcnt vmcnt(0)")
    a.e(f"{MF} {v(SS,16)}, {v(KS,4)}, {v(QS,4)}, 0")
    a.nop(14)
    for r in range(0, 16, 2): a.e(f"v_max3_f32 v{MX}, v{SS+r}, v{SS+r+1}, v{MX}")
    a.e(f"s_add_u32 s{sT0}, s{sT0}, 1024", f"s_sub_u32 s{sT1}, s{sT1}, 1", f"s_cmp_lg_u32 s{sT1}, 0", f"s_cbranch_scc1 {pfx}_l1")
    a.e(f"v_mov_b32 v{MX+1}, v{MX}")
    a.nop(2)
    a.e(f"v_permlane32_swap_b32 v{MX}, v{MX+1}")
    a.nop(2)
    a.e(f"v_max_f32 v{MX}, v{MX}, v{MX+1}")
    for r in range(16): a.e(f"v_sub_f32 v{CS+r}, 0, v{MX}", f"v_mov_b32 v{OS+r}, 0")
    a.e(f"s_mov_b32 s{sT0}, {WS_KF}", f"s_mov_b32 s{sT2}, {WS_VF}", f"s_mov_b32 s{sT1}, 64")
    a.label(f"{pfx}_l2")
    a.e(f"buffer_load_dwordx4 {v(KS,4)}, v{vL16}, {RS}, s{sT0} offen sc1", f"buffer_load_dwordx4 {v(VS,4)}, v{vL16}, {RS}, s{sT2} offen sc1",
        f"buffer_load_dwordx4 {v(VS+4,4)}, v{vL16}, {RS}, s{sT2} offen offset:1024 sc1", "s_waitcnt vmcnt(0)")
    a.e(f"{MF} {v(SS,16)}, {v(KS,4)}, {v(QS,4)}, {v(CS,16)}")
    a.nop(14)
    for r in range(16): a.e(f"v_exp_f32 v{SS+r}, v{SS+r}")
    a.e("s_nop 0")
    for j in range(8): a.e(f"v_cvt_pk_bf16_f32 v{PS+j}, v{SS+2*j}, v{SS+2*j+1}")
    a.nop(2)
    a.e(f"{MF} {v(OS,16)}, {v(VS,4)}, {v(PS,4)}, {v(OS,16)}", f"{MF} {v(OS,16)}, {v(VS+4,4)}, {v(PS+4,4)}, {v(OS,16)}")
    a.e(f"s_add_u32 s{sT0}, s{sT0}, 1024", f"s_add_u32 s{sT2}, s{sT2}, 2048", f"s_sub_u32 s{sT1}, s{sT1}, 1", f"s_cmp_lg_u32 s{sT1}, 0")
    a.nop(10)
    a.e(f"s_cbranch_scc1 {pfx}_l2")
    a.nop(14)
    for r in range(9): a.e(f"v_mov_b32 v{RB+r}, v{OS+r}")

slows = []
def attn_red(a, sc, pfx):
    a.e(f"s_mul_i32 s{sT0}, s{sCH}, {16*2304}", f"s_mul_i32 s{sT1}, s{sKQ}, 2304", f"s_add_u32 s{sT0}, s{sT0}, s{sT1}", f"s_add_u32 s{sT0}, s{sT0}, {L_AP}")
    a.e(f"v_add_u32 v2, s{sT0}, v{vL16}", f"v_lshrrev_b32 v3, 2, v{vL16}", f"v_add_u32 v3, s{sT0}, v3")
    RB = S
    for kq in range(4):
        a.e(f"ds_read_b128 {v(RB+12*kq,4)}, v2 offset:{kq*4*2304}", f"ds_read_b128 {v(RB+12*kq+4,4)}, v2 offset:{kq*4*2304+1024}",
            f"ds_read_b32 v{RB+12*kq+8}, v3 offset:{kq*4*2304+2048}")
    a.e(f"s_mov_b32 s{sT2}, {f2u(2.0**40):#x}", f"s_mov_b32 s{sT3}, {f2u(2.0**120):#x}")
    a.e("s_waitcnt lgkmcnt(0)")
    for r in range(9): a.e(f"v_add_f32 v{RB+r}, v{RB+r}, v{RB+12+r}", f"v_add_f32 v{RB+24+r}, v{RB+24+r}, v{RB+36+r}")
    for r in range(9): a.e(f"v_add_f32 v{RB+r}, v{RB+r}, v{RB+24+r}")
    T = RB + 12
    a.e(f"v_add_f32 v{T}, |v{RB}|, |v{RB+1}|", f"v_add_f32 v{T+1}, |v{RB+2}|, |v{RB+3}|", f"v_add_f32 v{T+2}, |v{RB+4}|, |v{RB+5}|", f"v_add_f32 v{T+3}, |v{RB+6}|, |v{RB+7}|",
        f"v_add_f32 v{T}, v{T}, v{T+1}", f"v_add_f32 v{T+2}, v{T+2}, v{T+3}", f"v_add_f32 v{T}, v{T}, v{T+2}")
    a.e(f"v_cmp_le_f32 vcc, {f2u(2.0**-30):#x}, v{RB+8}", f"v_cmp_ge_f32_e64 s[{sC0}:{sC0+1}], s{sT2}, v{RB+8}", f"v_cmp_gt_f32_e64 s[{sC1}:{sC1+1}], s{sT3}, v{T}")
    a.e("s_nop 1", f"s_and_b64 vcc, vcc, s[{sC0}:{sC0+1}]", f"s_and_b64 vcc, vcc, s[{sC1}:{sC1+1}]", "s_cmp_lg_u64 vcc, -1", f"s_cbranch_scc1 {pfx}_slow")
    a.label(f"{pfx}_norm")
    slows.append((pfx, RB))
    a.e(f"v_rcp_f32 v{RB+9}, v{RB+8}")
    a.e(f"s_lshl_b32 s{sT0}, s{sKQ}, 15", f"s_lshl_b32 s{sT1}, s{sCH}, 10", f"s_add_u32 s{sT0}, s{sT0}, s{sT1}",
        f"s_lshl_b32 s{sT1}, s{sTB}, 17", f"s_add_u32 s{sT0}, s{sT0}, s{sT1}", f"s_lshl_b32 s{sT1}, s{sJ}, 11", f"s_add_u32 s{sT0}, s{sT0}, s{sT1}",
        f"s_add_u32 s{sT0}, s{sT0}, {WS_O}")
    for r in range(8): a.e(f"v_mul_f32 v{RB+r}, v{RB+r}, v{RB+9}")
    for q in range(4): a.e(f"v_cvt_pk_bf16_f32 v{RB+12+q}, v{RB+2*q}, v{RB+2*q+1}")
    sc.vmem(f"buffer_store_dwordx4 {v(RB+12,4)}, v{vL16}, {RS}, s{sT0} offen sc1", "ost")
    a.e(f"s_lshl_b32 s{sT3}, s{sTB}, 9", f"s_lshr_b32 s{sT1}, s{sKQ}, 1", f"s_lshl_b32 s{sT1}, s{sT1}, 8", f"s_add_u32 s{sT3}, s{sT3}, s{sT1}",
        f"s_lshl_b32 s{sT1}, s{sCH}, 7", f"s_add_u32 s{sT3}, s{sT3}, s{sT1}", f"s_lshl_b32 s{sT1}, s{sJ}, 3", f"s_add_u32 s{sT3}, s{sT3}, s{sT1}",
        f"s_and_b32 s{sT1}, s{sKQ}, 1", f"s_lshl_b32 s{sT1}, s{sT1}, 2", f"s_add_u32 s{sT3}, s{sT3}, s{sT1}", f"s_add_u32 s{sT3}, s{sT3}, {FL_O}")
def emit_slows(a):
    for pfx, RB in slows:
        a.label(f"{pfx}_slow")
        slow_path(a, pfx, RB)
        a.e(f"s_branch {pfx}_norm")
    slows.clear()

def gen_main(a):
    name = NAME + "_kernel"
    kernel_header(a, name)
    a.e("s_cmp_ge_u32 s2, 256", "s_cbranch_scc1 kend")
    ts(a, 0, True); ts(a, 1)
    sc = phase1(a)
    boundary(a, sc)
    a.e(f"s_lshl_b32 s{sT3}, s{sTB}, 9", f"s_lshl_b32 s{sT1}, s{sTP}, 8", f"s_add_u32 s{sT3}, s{sT3}, s{sT1}", f"s_lshl_b32 s{sT1}, s{sJ}, 4",
        f"s_add_u32 s{sT3}, s{sT3}, s{sT1}", f"s_lshl_b32 s{sT1}, s{sAP}, 2", f"s_add_u32 s{sT3}, s{sT3}, s{sT1}", f"s_add_u32 s{sT3}, s{sT3}, {FL_H}")
    a.e(f"s_lshl_b32 s{sT0}, s{sCH}, 12", f"s_add_u32 s{sT0}, s{sT0}, {L_Q}", f"v_add_u32 v21, s{sT0}, v{vL16}")
    a.e("v_and_b32 v22, 15, v0", "v_lshlrev_b32 v22, 2, v22", f"v_add_u32 v22, {L_FL}, v22", "v_mov_b32 v23, 0", "ds_write_b32 v22, v23")
    vm0 = list(sc.vm)
    a.e(f"s_cmp_lg_u32 s{sCH}, 0", "s_cbranch_scc1 p2_young")
    g = Ffn2()
    g.setup(a)
    a.e(f"v_mov_b32 v0, s{sNON}")
    a.e("s_waitcnt lgkmcnt(0)", "s_barrier")
    for c in range(4): a.e(f"ds_read_b128 {v(Q+4*c,4)}, v21 offset:{c*1024}")
    a.e("s_waitcnt lgkmcnt(0)")
    sc.lg = []
    attn_main(a, sc, g)
    a.nop(12)
    attn_write(a)
    a.e(f"v_add_u32 v2, s{sLB}, v{vL16}")
    for t in range(4):
        for q in range(4):
            a.e(f"ds_write_b128 v2, {v(GACC+16*t+4*q,4)} offset:{t*4096+q*1024}")
    XR = GA
    a.e(f"v_lshrrev_b32 v250, 4, v{vL16}", "v_and_b32 v4, 31, v250", "v_lshlrev_b32 v4, 10, v4", "v_lshrrev_b32 v5, 5, v250", "v_lshlrev_b32 v5, 3, v5", "v_add_u32 v4, v4, v5")
    a.e(f"s_lshl_b32 s{sT0}, s{sTB2}, 16", f"s_and_b32 s{sT1}, s{sW}, 1", f"s_lshl_b32 s{sT1}, s{sT1}, 15", f"s_add_u32 s{sT0}, s{sT0}, s{sT1}",
        f"s_lshl_b32 s{sT1}, s{sNB}, 7", f"s_add_u32 s{sT0}, s{sT0}, s{sT1}", f"s_lshr_b32 s{sT1}, s{sW}, 1", f"s_lshl_b32 s{sT1}, s{sT1}, 6",
        f"s_add_u32 s{sGW}, s{sT0}, s{sT1}")
    for q in range(4):
        a.e(f"buffer_load_dwordx2 {v(XR+2*q,2)}, v4, {SR(R_X)}, s{sGW} offen offset:{q*16}")
    a.e("s_waitcnt lgkmcnt(0)")
    lsync(a, 0, "ls0", 244)
    tsn(a, "b1")
    sc.vm = []
    attn_red(a, sc, "ro")
    a.e(f"s_lshl_b32 s{sT1}, s{sW}, 12", f"v_add_u32 v2, s{sT1}, v{vL16}")
    RB = O
    for wp in range(4):
        for q in range(4):
            a.e(f"ds_read_b128 {v(RB+16*wp+4*q,4)}, v2 offset:{wp*RING*4096+q*1024}")
        if wp in (2,): a.e("s_waitcnt lgkmcnt(4)")
    a.e("s_waitcnt lgkmcnt(0)")
    for r in range(16): a.e(f"v_add_f32 v{RB+r}, v{RB+r}, v{RB+16+r}", f"v_add_f32 v{RB+32+r}, v{RB+32+r}, v{RB+48+r}")
    for r in range(16): a.e(f"v_add_f32 v{RB+r}, v{RB+r}, v{RB+32+r}")
    a.e("s_waitcnt vmcnt(1)")
    for q in range(4):
        for d in range(2):
            r = XR + 2 * q + d
            a.e(f"v_lshlrev_b32 v5, 16, v{r}", f"v_and_b32 v6, s{sMASK}, v{r}",
                f"v_add_f32 v{RB+4*q+2*d}, v{RB+4*q+2*d}, v5", f"v_add_f32 v{RB+4*q+2*d+1}, v{RB+4*q+2*d+1}, v6")
    tsn(a, "m7")
    lsync(a, 1, "ls1", 244)
    a.e("s_waitcnt vmcnt(0)")
    post_flag(a, sc, 0, sT3)
    vWo, vWo2, vWA = 2, 3, 6
    L = "v250"
    a.e(f"v_lshrrev_b32 v4, 3, {L}", "v_lshlrev_b32 v4, 10, v4", f"v_lshrrev_b32 v5, 4, {L}", "v_and_b32 v5, 1, v5", "v_lshlrev_b32 v5, 2, v5",
        f"v_and_b32 v6, 7, {L}", "v_xor_b32 v6, v6, v5", "v_lshlrev_b32 v6, 4, v6", f"v_add_u32 v{vWo}, v4, v6")
    a.e(f"s_lshl_b32 s{sT0}, s{sNB}, 7", f"v_add_u32 v{vWo}, s{sT0}, v{vWo}", f"v_add_u32 v{vWo2}, {8192-1024}, v{vWo}")
    a.e(f"s_lshl_b32 s{sT1}, s{sW}, 17", f"s_lshl_b32 s{sT2}, s{sW}, 14")
    for jj in range(8):
        a.e(f"s_add_u32 m0, s{sT2}, {jj*2048}", f"s_add_u32 s{sT0}, s{sT1}, {jj*16384}")
        a.e(f"buffer_load_dwordx4 v{vWo}, {SR(R_O)}, s{sT0} offen lds", f"buffer_load_dwordx4 v{vWo2}, {SR(R_O)}, s{sT0} offen offset:1024 lds")
    a.e(f"s_or_b32 s{sT0}, s2, s{sW}", f"s_cmp_lg_u32 s{sT0}, 0", "s_cbranch_scc1 t_nonloc")
    a.e(f"v_lshrrev_b32 v7, 4, {L}", "v_lshlrev_b32 v7, 9, v7", f"v_and_b32 v8, 15, {L}", "v_lshlrev_b32 v8, 4, v8", "v_add_u32 v7, v7, v8")
    for i in range(4):
        a.e(f"s_mov_b32 s{sT0}, {FL_H + i*2048}", f"buffer_load_dword v8, v7, {RS}, s{sT0} offen sc1", "s_waitcnt vmcnt(0)")
        poll_check(a, f"pn{i}", 8, 7, f"s{sT0}")
    a.e(f"s_mov_b32 s{sT0}, {NLOC}")
    post_flag(a, sc, 0, sT0)
    a.label("t_nonloc")
    a.e(f"v_and_b32 v7, 31, {L}", "v_lshlrev_b32 v7, 2, v7")
    a.e(f"s_lshl_b32 s{sKT}, s{sTB2}, 8", f"s_add_u32 s{sKT}, s{sKT}, {FL_O}")
    a.e(f"buffer_load_dword v8, v7, {RS}, s{sKT} offen sc1")
    a.e(f"v_and_b32 v4, 15, {L}", "v_lshrrev_b32 v5, 2, v4", f"v_lshrrev_b32 v6, 5, {L}", "v_lshlrev_b32 v6, 2, v6", "v_add_u32 v5, v5, v6",
        "v_lshlrev_b32 v5, 7, v5", "v_lshrrev_b32 v6, 3, v4", "v_lshlrev_b32 v6, 6, v6", "v_add_u32 v5, v5, v6",
        f"v_lshrrev_b32 v6, 4, {L}", "v_and_b32 v6, 1, v6", "v_lshlrev_b32 v6, 5, v6", "v_add_u32 v5, v5, v6",
        f"v_and_b32 v6, 3, {L}", "v_lshlrev_b32 v6, 3, v6", "v_add_u32 v5, v5, v6")
    a.e(f"s_lshr_b32 s{sT1}, s{sW}, 1", f"s_lshl_b32 s{sT1}, s{sT1}, 6", f"v_xor_b32 v{vWA}, s{sT1}, v5")
    a.e("s_waitcnt vmcnt(0)")
    poll_check(a, "po0", 8, 7, f"s{sKT}")
    a.e(f"s_lshl_b32 s{sGB}, s{sTB2}, 16", f"s_and_b32 s{sT1}, s{sW}, 1", f"s_lshl_b32 s{sT1}, s{sT1}, 15", f"s_add_u32 s{sGB}, s{sGB}, s{sT1}", f"s_add_u32 s{sGB}, s{sGB}, {WS_O}")
    B0, B1r, AFt = 160, 8, 112
    heads0 = [2 * j for j in range(16)]
    heads1 = [2 * j + 1 for j in range(16)]
    def oloads(heads, base):
        for i, h in enumerate(heads):
            if i % 2 == 0: a.e(f"s_add_u32 s{sT0}, s{sGB}, {(h//4)*4096}")
            a.e(f"buffer_load_dwordx4 {v(base+4*i,4)}, v{vL16}, {RS}, s{sT0} offen offset:{(h%4)*1024}")
    oloads(heads0, B0)
    tsn(a, "m8")
    lsync(a, 2, "ls2", 244)
    tsn(a, "b2")
    a.e(f"buffer_load_dword v145, v7, {RS}, s{sKT} offen offset:128 sc1")
    def gemm(heads, base, waitfn):
        def rd(j):
            b = AFt + 4 * (j % 8)
            a.e(f"ds_read_b64_tr_b16 {v(b,2)}, v{vWA} offset:{heads[j]*2048}", f"ds_read_b64_tr_b16 {v(b+2,2)}, v{vWA} offset:{heads[j]*2048+1024}")
        for j in range(6): rd(j)
        for j in range(16):
            if j + 6 < 16:
                rd(j + 6); a.e("s_waitcnt lgkmcnt(12)")
            else:
                a.e(f"s_waitcnt lgkmcnt({2*(15-j)})")
            waitfn(j)
            a.e(f"{MF} {v(RB,16)}, {v(AFt+4*(j%8),4)}, {v(base+4*j,4)}, {v(RB,16)}")
    gemm(heads0, B0, lambda j: a.e(f"s_waitcnt vmcnt({13 - j})") if j % 4 == 0 else None)
    a.e("s_waitcnt vmcnt(0)")
    poll_check(a, "po1", 145, 7, f"s{sKT}", 128)
    tsn(a, "po1")
    oloads(heads1, B1r)
    gemm(heads1, B1r, lambda j: a.e(f"s_waitcnt vmcnt({15 - j})"))
    tsn(a, "g1")
    a.nop(14)
    PK = 144
    for q in range(4):
        for d in range(2):
            a.e(f"v_cvt_pk_bf16_f32 v{PK+2*q+d}, v{RB+4*q+2*d}, v{RB+4*q+2*d+1}")
    a.e(f"v_and_b32 v4, 31, {L}", "v_lshlrev_b32 v4, 10, v4", f"v_lshrrev_b32 v5, 5, {L}", "v_lshlrev_b32 v5, 4, v5", "v_add_u32 v4, v4, v5")
    a.nop(1)
    for p in range(2):
        for d in range(2):
            a.e(f"v_permlane32_swap_b32 v{PK+4*p+d}, v{PK+4*p+2+d}")
    a.nop(2)
    for p in range(2):
        a.e(f"buffer_store_dwordx4 {v(PK+4*p,4)}, v4, {SR(R_OUT)}, s{sGW} offen offset:{p*32}")
    ts_dump(a)
    a.e("s_endpgm")
    a.label("p2_young")
    sc = Sched(a); sc.vm = list(vm0)
    a.e(f"v_mov_b32 v0, s{sNON}")
    a.e("s_waitcnt lgkmcnt(0)", "s_barrier")
    for c in range(4): a.e(f"ds_read_b128 {v(Q+4*c,4)}, v21 offset:{c*1024}")
    a.e("s_waitcnt lgkmcnt(0)")
    pt_ = {}
    for kn in KNOB:
        if kn.startswith("prio"): pt_ = {int(kn[4:]): 3}
    attn_main(a, sc, NoG(), prio_tiles=pt_)
    a.nop(12)
    attn_write(a)
    a.e("s_waitcnt lgkmcnt(0)")
    tsn(a, "m7")
    lsync(a, 3, "ls3", 244)
    tsn(a, "b2")
    sc.vm = []
    attn_red(a, sc, "ry")
    a.e("s_waitcnt vmcnt(0)")
    post_flag(a, sc, 0, sT3)
    tsn(a, "m8")
    ts_dump(a)
    a.e("s_endpgm")
    emit_spins(a)
    emit_tspins(a)
    emit_slows(a)
    a.label("kend")
    a.e("s_endpgm")
    return name

def build(outpath):
    a = Asm()
    name = gen_main(a)
    body = a.text()
    import re
    if "ntw" in KNOB:
        body = re.sub(r"(buffer_load_dwordx4 v[23], s\[(?:16:19|20:23)\], s41 offen) lds", r"\1 nt lds", body)
    if "ntx" in KNOB:
        body = re.sub(r"(buffer_load_dwordx4 v[45], s\[24:27\], s4 offen) lds", r"\1 nt lds", body)
    if "nosc1kv" in KNOB:
        body = re.sub(r"(buffer_load_dwordx4 v\[(?:24|28|32|36|40|44):\d+\], v1, s\[28:31\], s4[45] offen[^\n]*?) sc1", r"\1", body)
    if "nosc1h" in KNOB:
        body = body.replace(" lds", " lds")
    probs = check_text(body)
    for p in probs: print("HAZARD:", p, file=sys.stderr)
    out = HEADER + f"; @launch grid=(256,1,1) block=(512,1,1) lds={LDS}\n" + '.amdgcn_target "amdgcn-amd-amdhsa--gfx950"\n.text\n' + body + kernel_desc(name, 256)
    open(outpath, "w").write(out)

if __name__ == "__main__":
    if len(sys.argv) > 1 and sys.argv[1] == "instr":
        gen.INSTR = True
        for k in sys.argv[3:]: KNOB.add(k)
        build(sys.argv[2] if len(sys.argv) > 2 else "v19i.s")
    else:
        for k in sys.argv[2:]: KNOB.add(k)
        build(sys.argv[1] if len(sys.argv) > 1 else "v19.s")
```

```python
import sys
import gen
from gen import Asm, v, s, kernel_header, kernel_desc, f2u, check_text, HEADER, QSCALE, NAME
from gen import WS_O, WS_H, WS_SIZE
WS_KF, WS_VF = 0x40000, 0x50000
from gen2 import Sched, MF, KNOB
MF16 = "v_mfma_f32_16x16x32_bf16"

FL_KV = 0
FL_K2 = 0x2000
FL_H = 0x80000
FL_HB = 0x88000
FL_O = 0x90000
NLOC = 0x14000
FL_FLAT = 0xA0000
WS_ST = 0x18000
WS_CS = 0x20000
WS_TS = 24 << 20
SPIN = 200000

R_X, R_WQ, R_WK, R_WV, R_GA, R_GB, R_WS, R_D, R_O, R_OUT, R_C = 8, 12, 16, 20, 24, 28, 32, 36, 40, 44, 48
RS = f"s[{R_WS}:{R_WS+3}]"
def SR(r): return f"s[{r}:{r+3}]"
sW, sTB, sJ, sTB2, sNB, sT0, sT1, sT2, sT3 = 52, 53, 54, 55, 56, 57, 58, 59, 60
sNON, sCNT, sKQ, sMASK, sONES, sTOK = 61, 62, 63, 64, 65, 4
sKT = 5
sXS, sMX, sWO, sH0, sGW, sGB, sLB, sFO, sMW = 66, 67, 68, 69, 70, 71, 72, 73, 6
sROT, sXC, sWR = 7, 70, 71
sK0, sV0, sVM, sKc, sVc, sCG, sRB = 66, 67, 68, 70, 71, 72, 73
sC0, sC1 = 74, 76

L_W = 0
L_F = 16384
L_WQ = 49152
L_X = 81920
PSZ = 16 * 2304
L_P0 = 65536
L_P1 = L_P0 + PSZ
L_Q = L_P1 + PSZ
L_XN = L_Q + 8192
L_CS = L_XN + 8192
L_CP = L_CS + 1024
L_FL = L_CP + 512
LDS = L_FL + 128
C_G, C_Q, C_KV, C_P0, C_A, C_VS, C_XN, W_NON, C_RDY = 0, 16, 32, 48, 64, 80, 96, 112, 120
assert L_X + 4 * 12288 <= L_Q and LDS <= 163840 and L_P0 + 2 * PSZ == L_Q

vL16, vFL, vONE, vNON = 1, 2, 3, 4
XRW, SA, NM_ = 176, 180, 188
RS_ = NM_ + 2
vX = 5
vXB = 9
vQA = 13
vCNT = 14
XR, ACC, AF = 16, 144, 208
GNM, GRQ = 240, 242
BNM = 240
sLOW = 79
GONE = 244
GST = 248
Q0, Q1, KF, VF, S, P, O = 8, 24, 40, 104, 136, 168, 184
NT = 128

NTS = 11
TS_G = {"b1": 2, "q": 3, "b2": 4, "fB": 5, "f2": 6, "g0": 7, "po1": 8}
TS_A = {"b1": 2, "kv": 3, "pol": 4, "b2": 5, "t64": 6, "att1": 7, "m8": 8}
TS_G2 = {"b2": 2, "fA": 3, "eA": 4, "fB": 5, "hfl": 6, "o0": 7, "hp": 8}
TS_A2 = {"b2": 2, "t8": 3, "t32": 4, "t64": 5, "t96": 6, "t120": 7, "att1": 8}
TS_G3 = {"karg": 2, "iss": 3, "xr": 4, "a2": 5, "b1": 6, "u2": 7, "u6": 8}
TS_A3 = {"karg": 2, "iss": 3, "xr": 4, "a2": 5, "b1": 6, "kvm": 7, "kv": 8}
TS_G4 = {"f2": 2, "r2": 3, "wo": 4, "g0": 5, "po1": 6, "g1": 7}
TS_G5 = {"karg": 2, "pre": 3, "post": 4, "gwq": 5, "gx0": 6, "iss": 7, "b1": 8}
TS_A5 = {"karg": 2, "ax": 3, "ak": 4, "av": 5, "post": 6, "iss": 7, "xr": 8}
TS_A6 = {"a2": 2, "b1": 3, "kvm": 4, "kv": 5, "pw0": 3, "pw1": 4, "pw2": 5, "pol": 6, "b2": 7, "t8": 8}
TS_G6 = {"b1": 2, "u2": 3, "u4": 4, "u6": 5, "u8": 6, "q": 7, "b2": 8}
ROLE = ["G"]
def tsn(a, name):
    if "tsmin" in KNOB: return
    return tsn_(a, name)
def tsn_(a, name):
    if not gen.INSTR: return
    for kn in KNOB:
        if kn.startswith("tsk"):
            b0, st = [int(x) for x in kn[3:].split("_")]
            m = {f"t{b0 + st*i}": 2 + i for i in range(7)} if ROLE[0] == "A" else {"eB": 2, "hp": 3, "f4": 4, "f8": 5, "f16": 6, "o0": 7, "f24": 8}
            if name in m: ts(a, m[name])
            return
    sel = "2" if "ts2" in KNOB else ("3" if "ts3" in KNOB else ("4" if "ts4" in KNOB else ("5" if "ts5" in KNOB else ("6" if "ts6" in KNOB else ""))))
    m = globals().get(f"TS_{ROLE[0]}{sel}", globals()[f"TS_{ROLE[0]}"])
    if name in m: ts(a, m[name])
def ts(a, i, real=False):
    if not gen.INSTR: return
    a.e(f"s_memrealtime s[{80+2*i}:{81+2*i}]" if real else f"s_memtime s[{80+2*i}:{81+2*i}]")
def ts_dump(a):
    if not gen.INSTR: return
    ts(a, 9); ts(a, 10, True)
    a.e("s_waitcnt lgkmcnt(0)")
    a.e(f"s_lshl_b32 s78, s2, 3", f"s_add_u32 s78, s78, s{sW}", "s_lshl_b32 s78, s78, 6", f"s_add_u32 s78, s78, {WS_TS}")
    a.e("s_mov_b64 exec, 1", "v_mov_b32 v2, 0")
    for i in range(NTS):
        a.e(f"v_mov_b32 v3, s{80+2*i}", f"buffer_store_dword v3, v2, {RS}, s78 offen offset:{4*i}", "s_nop 1")
    a.e("s_mov_b64 exec, -1")

OOL = []
def emit_ool(a):
    for f in OOL: f()
    OOL.clear()

def nrep():
    for kn in KNOB:
        if kn.startswith("rep"): return int(kn[3:])
    return 32
KVS = lambda: " sc1" if "kvsc1" in KNOB else ""
def lslp():
    for kn in KNOB:
        if kn.startswith("lsl"): return int(kn[3:])
    return 2
def pgap():
    for kn in KNOB:
        if kn.startswith("gap"): return int(kn[3:])
    return 4
def slp():
    for kn in KNOB:
        if kn.startswith("slp"): return int(kn[3:])
    return 4
def poll_check(a, name, vP, vAddr, sOff, imm=0, n=1):
    ld = "buffer_load_dword" if n == 1 else f"buffer_load_dwordx{n}"
    def cmp():
        if n == 1: a.e(f"v_cmp_ne_u32 vcc, s{sNON}, v{vP}")
        else:
            for r in range(n): a.e(f"v_xor_b32 v{vP+r}, s{sNON}, v{vP+r}")
            for r in range(1, n): a.e(f"v_or_b32 v{vP}, v{vP}, v{vP+r}")
            a.e(f"v_cmp_ne_u32 vcc, 0, v{vP}")
    cmp()
    a.e(f"s_cbranch_vccnz {name}_spin")
    a.label(f"{name}_ok")
    def ool():
        a.label(f"{name}_spin")
        a.e(f"s_mov_b32 s{sCNT}, {SPIN}")
        a.label(f"{name}_loop")
        a.e(f"s_sleep {slp()}", f"{ld} {v(vP,n)}, v{vAddr}, {RS}, {sOff} offen offset:{imm} sc1", "s_waitcnt vmcnt(0)")
        cmp()
        a.e(f"s_cbranch_vccz {name}_ok", f"s_sub_u32 s{sCNT}, s{sCNT}, 1", f"s_cmp_lg_u32 s{sCNT}, 0", f"s_cbranch_scc1 {name}_loop", f"s_branch {name}_ok")
    OOL.append(ool)

def tag_check(a, name, loads, tags, vt):
    def cmp():
        a.e(f"v_xor_b32 v{vt}, s{sNON}, v{tags[0]}")
        for r in tags[1:]: a.e(f"v_xor_b32 v{r}, s{sNON}, v{r}", f"v_or_b32 v{vt}, v{vt}, v{r}")
        a.e(f"v_cmp_ne_u32 vcc, 0, v{vt}")
    cmp()
    a.e(f"s_cbranch_vccnz {name}_spin")
    a.label(f"{name}_ok")
    def ool():
        a.label(f"{name}_spin")
        a.e(f"s_mov_b32 s{sCNT}, {SPIN}")
        a.label(f"{name}_loop")
        a.e("s_sleep 4")
        for x in loads: a.e(x)
        a.e("s_waitcnt vmcnt(0)")
        cmp()
        a.e(f"s_cbranch_vccz {name}_ok", f"s_sub_u32 s{sCNT}, s{sCNT}, 1", f"s_cmp_lg_u32 s{sCNT}, 0", f"s_cbranch_scc1 {name}_loop", f"s_branch {name}_ok")
    OOL.append(ool)

def lpost(a, off):
    a.e("s_mov_b64 exec, 1", f"ds_add_u32 v{vFL}, v{vONE} offset:{off}", "s_mov_b64 exec, -1")
def lread(off, vt): return f"ds_read_b32 v{vt}, v{vFL} offset:{off}"
def lcheck(a, name, off, target, vt, lo=None, hi=2):
    if lo is not None: a.e(f"s_setprio {hi}")
    a.e(f"v_cmp_gt_u32 vcc, {target}, v{vt}")
    if lo is not None: a.e(f"s_setprio {lo}")
    a.e(f"s_cbranch_vccnz {name}_spin")
    a.label(f"{name}_ok")
    def ool():
        a.label(f"{name}_spin")
        a.e(f"s_mov_b32 s{sCNT}, {SPIN*8}")
        a.label(f"{name}_loop")
        a.e(f"s_sleep {lslp()}", lread(off, vt), "s_waitcnt lgkmcnt(0)")
        if lo is not None: a.e(f"s_setprio {hi}")
        a.e(f"v_cmp_gt_u32 vcc, {target}, v{vt}")
        if lo is not None: a.e(f"s_setprio {lo}")
        a.e(f"s_cbranch_vccz {name}_ok", f"s_sub_u32 s{sCNT}, s{sCNT}, 1", f"s_cmp_lg_u32 s{sCNT}, 0", f"s_cbranch_scc1 {name}_loop", f"s_branch {name}_ok")
    OOL.append(ool)
def lwait(a, name, off, target, vt, lo=None):
    a.e(lread(off, vt), "s_waitcnt lgkmcnt(0)")
    lcheck(a, name, off, target, vt, lo)

def post_flag(a, sOff, imm=0):
    a.e("s_mov_b64 exec, 1", f"buffer_store_dword v{vNON}, off, {RS}, s{sOff} offset:{imm} sc1", "s_mov_b64 exec, -1")

def EXL(n):
    m = (1 << n) - 1
    return [f"s_mov_b32 exec_lo, {m & 0xffffffff:#x}", f"s_mov_b32 exec_hi, {m >> 32:#x}"]

def post_flag8(a, sOff, vt):
    a.e(f"v_lshlrev_b32 v{vt}, 7, v0", "s_mov_b64 exec, 0xff", f"buffer_store_dword v{vNON}, v{vt}, {RS}, s{sOff} offen sc1", "s_mov_b64 exec, -1")

class Sched2(Sched):
    def peek(self, tag):
        idx = max([i for i, t in enumerate(self.vm) if t == tag], default=-1)
        return 63 if idx < 0 else len(self.vm) - 1 - idx

def srd_fix(a, d, nbytes):
    a.e(f"s_and_b32 s{d+1}, s{d+1}, 0xffff", f"s_mov_b32 s{d+2}, {nbytes}", f"s_mov_b32 s{d+3}, 0x20000")

def ids(a):
    if "map84" in KNOB:
        a.e(f"s_lshr_b32 s{sTB}, s{sT0}, 2", f"s_lshl_b32 s{sTB}, s{sTB}, 3", f"s_and_b32 s{sT2}, s{sT1}, 7", f"s_add_u32 s{sTB}, s{sTB}, s{sT2}", f"s_and_b32 s{sJ}, s{sT0}, 3", f"s_lshl_b32 s{sJ}, s{sJ}, 2",
            f"s_lshr_b32 s{sT3}, s{sT1}, 3", f"s_add_u32 s{sJ}, s{sJ}, s{sT3}", f"s_lshl_b32 s{sT3}, s{sT3}, 1", f"s_add_u32 s{sROT}, s{sT3}, s{sT2}")
    else:
        a.e(f"s_lshr_b32 s{sTB}, s{sT0}, 1", f"s_lshl_b32 s{sTB}, s{sTB}, 2", f"s_and_b32 s{sT2}, s{sT1}, 3", f"s_add_u32 s{sTB}, s{sTB}, s{sT2}", f"s_and_b32 s{sJ}, s{sT0}, 1", f"s_lshl_b32 s{sJ}, s{sJ}, 3",
            f"s_lshr_b32 s{sT3}, s{sT1}, 2", f"s_add_u32 s{sJ}, s{sJ}, s{sT3}", f"s_lshl_b32 s{sT2}, s{sT2}, 1", f"s_add_u32 s{sROT}, s{sT3}, s{sT2}")
    if "norot" in KNOB: a.e(f"s_mov_b32 s{sROT}, 0")
    else: a.e(f"s_and_b32 s{sROT}, s{sROT}, 7")

def prologue(a):
    if "nopf" not in KNOB:
        a.e("s_getpc_b64 s[78:79]")
        a.label("pc0")
        a.e("v_and_b32 v250, 63, v0", "s_lshr_b32 s3, s2, 3", "s_lshl_b32 s3, s3, 5", "v_add_u32 v251, s3, v250", "v_cmp_gt_u32 vcc, 32, v250", "s_nop 1", "v_cndmask_b32 v251, v251, v250, vcc",
            "v_cmp_gt_u32 vcc, 64, v0", "v_lshlrev_b32 v251, 7, v251", "v_min_u32 v251, kend-pc0-4, v251", "s_mov_b64 exec, vcc", "global_load_dword v250, v251, s[78:79]", "s_mov_b64 exec, -1")
    for r, off in ((R_X, 0), (R_WK, 16), (R_WV, 24), (R_WQ, 8), (R_WS, 88), (R_GA, 48), (R_GB, 56), (R_D, 64), (R_O, 32), (R_OUT, 72)):
        a.e(f"s_load_dwordx2 s[{r}:{r+1}], s[0:1], {off}")
    a.e("v_lshrrev_b32 v20, 6, v0", "v_and_b32 v0, 63, v0")
    a.e(f"s_and_b32 s{sT0}, s2, 7", f"s_lshr_b32 s{sT1}, s2, 3", f"v_readfirstlane_b32 s{sW}, v20", f"v_lshlrev_b32 v{vL16}, 4, v0")
    ids(a)
    a.e(f"s_and_b32 s{sKQ}, s{sW}, 3", f"v_mov_b32 v{vFL}, {L_FL}", f"v_mov_b32 v{vONE}, 1")
    a.e(f"s_cmp_lt_u32 s{sW}, 4", "s_cbranch_scc1 role_g")

def karg_wait(a, pfx, regs):
    if "notouch" in KNOB:
        a.e("s_waitcnt lgkmcnt(0)"); return
    a.e("v_mov_b32 v249, 0", "s_mov_b64 exec, 1")
    for w in range(3): a.e(f"s_cmp_eq_u32 s{sKQ}, {w}", f"s_cbranch_scc1 {pfx}{w}")
    for w in (3, 2, 1, 0):
        a.label(f"{pfx}{w}")
        a.e("s_waitcnt lgkmcnt(0)", f"global_load_dword v248, v249, s[{regs[w]}:{regs[w]+1}]")
        if w > 0: a.e(f"s_branch {pfx}c")
    a.label(f"{pfx}c")
    a.e("s_mov_b64 exec, -1")

SRDSZ = {R_X: 2048 * 1024, R_WQ: 512 * 1024, R_WK: 16384, R_WV: 16384, R_GA: 512 * 3584, R_GB: 512 * 3584, R_WS: WS_SIZE, R_D: 1792 * 1024, R_O: 512 * 1024, R_OUT: 2048 * 1024}
def common_rest(a, done, skip=()):
    for r, n in SRDSZ.items():
        if r not in done and r not in skip: srd_fix(a, r, n)
    if "map48" in KNOB:
        a.e(f"s_and_b32 s{sT0}, s2, 7", f"s_lshr_b32 s{sT1}, s2, 3", f"s_lshl_b32 s{sTB2}, s{sT0}, 2", f"s_and_b32 s{sT2}, s{sT1}, 3", f"s_add_u32 s{sTB2}, s{sTB2}, s{sT2}", f"s_lshr_b32 s{sNB}, s2, 5")
    else:
        a.e(f"s_and_b32 s{sT0}, s2, 7", f"s_lshr_b32 s{sT1}, s2, 3", f"s_lshr_b32 s{sTB2}, s{sT0}, 1", f"s_lshl_b32 s{sTB2}, s{sTB2}, 3", f"s_and_b32 s{sT2}, s{sT1}, 7", f"s_add_u32 s{sTB2}, s{sTB2}, s{sT2}",
            f"s_and_b32 s{sNB}, s{sT0}, 1", f"s_lshl_b32 s{sNB}, s{sNB}, 2", f"s_lshr_b32 s{sT2}, s{sT1}, 3", f"s_add_u32 s{sNB}, s{sNB}, s{sT2}")
    a.e(f"s_mov_b32 s{sMASK}, 0xffff0000", f"s_mov_b32 s{sONES}, 0x3f803f80", f"s_mov_b32 s{sLOW}, 0xffff")
    a.e(f"s_lshl_b32 s{sKT}, s{sTB}, 2", f"s_lshr_b32 s{sT1}, s{sJ}, 2", f"s_add_u32 s{sKT}, s{sKT}, s{sT1}")

def kv_rows(a, sc):
    def chain(XW, SA_, NM, t4):
        s0, s1, qa, qb, tm, nb = SA_, SA_ + 1, SA_ + 2, SA_ + 3, SA_ + 4, SA_ + 5
        R = NM + 2
        L = [f"v_mov_b32 v{s0}, 0", f"v_mov_b32 v{s1}, 0", f"v_mov_b32 v{qa}, 0", f"v_mov_b32 v{qb}, 0"]
        for i in range(4):
            L += [f"v_dot2_f32_bf16 v{SA_+(i&1)}, v{XW+i}, s{sONES}, v{SA_+(i&1)}", f"v_dot2_f32_bf16 v{SA_+2+(i&1)}, v{XW+i}, v{XW+i}, v{SA_+2+(i&1)}"]
        L += ["N2", f"v_add_f32 v{s0}, v{s0}, v{s1}", f"v_add_f32 v{qa}, v{qa}, v{qb}", "N1", f"v_permlane32_swap_b32 v{s0}, v{qa}", "N0", f"v_add_f32 v{s0}, v{s0}, v{qa}",
              f"v_mov_b32 v{tm}, v{s0}", "N1", f"v_permlane16_swap_b32 v{s0}, v{tm}", "N0", f"v_add_f32 v{s0}, v{s0}, v{tm}", "N1"]
        for sh in (8, 4, 2, 1): L += [f"v_add_f32_dpp v{s0}, v{s0}, v{s0} row_ror:{sh} row_mask:0xf bank_mask:0xf", "N1"]
        L += [f"v_mov_b32 v{qa}, v{s0}", "N1", f"v_permlane32_swap_b32 v{s0}, v{qa}", "N0",
              f"v_mul_f32 v{s0}, {f2u(1/512):#x}, v{s0}", f"v_mul_f32 v{qa}, {f2u(1/512):#x}, v{qa}",
              f"v_fma_f32 v{qa}, -v{s0}, v{s0}, v{qa}", f"v_max_f32 v{qa}, 0, v{qa}",
              f"v_add_f32 v{qa}, {f2u(1e-5):#x}, v{qa}", f"v_rsq_f32 v{R}, v{qa}", f"v_sub_f32 v{NM}, 0, v{s0}", "N0", f"v_mul_f32 v{nb}, v{NM}, v{R}", "N0"]
        for i in range(4):
            lo, hi = SA_ + 2 * (i & 1), SA_ + 2 * (i & 1) + 1
            L += [f"v_lshlrev_b32 v{lo}, 16, v{XW+i}", f"v_and_b32 v{hi}, s{sMASK}, v{XW+i}",
                  f"v_fma_f32 v{lo}, v{lo}, v{R}, v{nb}", f"v_fma_f32 v{hi}, v{hi}, v{R}, v{nb}", f"v_cvt_pk_bf16_f32 v{XW+i}, v{lo}, v{hi}"]
        return L
    a.e("v_lshrrev_b32 v22, 1, v0", "v_and_b32 v22, 7, v22", f"v_xor_b32 v22, s{sKQ}, v22", "v_lshlrev_b32 v22, 4, v22", "v_lshl_add_u32 v22, v0, 7, v22", f"v_add_u32 v22, {L_XN}, v22", "v_xor_b32 v23, 64, v22")
    a.e(f"s_lshl_b32 s{sT0}, s{sTOK}, 4", f"s_add_u32 s{sT0}, s{sT0}, {WS_ST}", f"s_add_u32 s{sT1}, s{sT0}, 128")
    sc.wait_vm("xr")
    tsn(a, "xr")
    c0, c1 = chain(XRW, SA, NM_, 0), chain(XRW + 16, SA + 16, NM_ + 16, 1)
    for x0, x1 in zip(c0, c1):
        if x0[0] == "N":
            n = int(x0[1])
            if n >= 1: a.e(f"s_nop {n-1}")
        else: a.e(x0, x1)
    a.e(f"ds_write_b128 v22, {v(XRW,4)}", f"ds_write_b128 v23, {v(XRW+16,4)}")
    a.e("s_waitcnt lgkmcnt(0)", f"s_mul_i32 s{sNON}, s{sNON}, 1664525", f"s_add_u32 s{sNON}, s{sNON}, 1013904223")
    a.e(f"v_mov_b32 v{vNON}, s{sNON}", f"v_mov_b32 v{NM_+1}, s{sNON}", f"v_mov_b32 v{NM_+3}, s{sNON}", f"v_mov_b32 v{NM_+17}, s{sNON}", f"v_mov_b32 v{NM_+19}, s{sNON}")
    a.e(f"ds_write_b32 v{vFL}, v{vNON} offset:{W_NON}")
    sc.wait_vm("f")
    lpost(a, C_XN)
    a.e("s_mov_b64 exec, 1")
    sc.vmem(f"buffer_store_dwordx4 {v(NM_,4)}, off, {RS}, s{sT0} sc1", "st")
    sc.vmem(f"buffer_store_dwordx4 {v(NM_+16,4)}, off, {RS}, s{sT1} sc1", "st")
    a.e("s_mov_b64 exec, -1")
    tsn(a, "a2")

def kperm(a, d, t):
    a.e(f"v_lshrrev_b32 v{t}, 1, v{vL16}", f"v_xor_b32 v{t}, v{t}, v{vL16}", f"v_and_b32 v{t}, 64, v{t}", f"v_lshl_or_b32 v{t}, v{t}, 1, v{t}", f"v_xor_b32 v{d}, v{vL16}, v{t}")

def slow_path(a, pfx, RB, loadq, cq):
    if RB == 128: QS, KS, VS, SS, PS, OS, CS, MX, T0, T1 = 176, 180, 184, 192, 208, 216, RB + 12, 232, 234, 235
    else:
        assert RB == 64
        QS, KS, VS, SS, PS, OS, CS, MX, T0, T1 = 92, 96, 100, 108, 124, 208, RB + 12, 132, 134, 135
    loadq(QS)
    kperm(a, T1, T0)
    a.e(f"v_mov_b32 v{MX}, 0xff800000", f"s_mov_b32 s{sT0}, {WS_KF}", f"s_mov_b32 s{sT1}, 64")
    a.label(f"{pfx}_l1")
    a.e(f"buffer_load_dwordx4 {v(KS,4)}, v{T1}, {RS}, s{sT0} offen sc1", "s_waitcnt vmcnt(0)")
    a.e(f"{MF} {v(SS,16)}, {v(KS,4)}, {v(QS,4)}, 0")
    a.nop(14)
    for r in range(0, 16, 2): a.e(f"v_max3_f32 v{MX}, v{SS+r}, v{SS+r+1}, v{MX}")
    a.e(f"s_add_u32 s{sT0}, s{sT0}, 1024", f"s_sub_u32 s{sT1}, s{sT1}, 1", f"s_cmp_lg_u32 s{sT1}, 0", f"s_cbranch_scc1 {pfx}_l1")
    a.e(f"v_mov_b32 v{MX+1}, v{MX}")
    a.nop(2)
    a.e(f"v_permlane32_swap_b32 v{MX}, v{MX+1}")
    a.nop(2)
    a.e(f"v_max_f32 v{MX}, v{MX}, v{MX+1}")
    for r in range(16): a.e(f"v_sub_f32 v{CS+r}, 0, v{MX}", f"v_mov_b32 v{OS+r}, 0")
    a.e(f"v_and_b32 v{T0}, 27, v0", f"v_cmp_eq_u32 vcc, 16, v{T0}", f"v_mov_b32 v{T0}, s{sONES}", "s_nop 0", f"v_cndmask_b32 v{VS}, 0, v{T0}, vcc")
    for r in range(1, 8): a.e(f"v_mov_b32 v{VS+r}, v{VS}")
    a.e(f"s_mov_b32 s{sT0}, {WS_KF}", f"s_mov_b32 s{sT2}, {WS_VF}", f"s_mov_b32 s{sT1}, 64")
    a.label(f"{pfx}_l2")
    a.e(f"buffer_load_dwordx4 {v(KS,4)}, v{T1}, {RS}, s{sT0} offen sc1", "s_mov_b32 exec_lo, 0xffff", "s_mov_b32 exec_hi, 0xffff",
        f"buffer_load_dwordx4 {v(VS,4)}, v{vL16}, {RS}, s{sT2} offen sc1",
        f"buffer_load_dwordx4 {v(VS+4,4)}, v{vL16}, {RS}, s{sT2} offen offset:1024 sc1", "s_mov_b64 exec, -1", "s_waitcnt vmcnt(0)")
    a.e(f"{MF} {v(SS,16)}, {v(KS,4)}, {v(QS,4)}, {v(CS,16)}")
    a.nop(14)
    for r in range(16): a.e(f"v_exp_f32 v{SS+r}, v{SS+r}")
    a.e("s_nop 0")
    for j in range(8): a.e(f"v_cvt_pk_bf16_f32 v{PS+j}, v{SS+2*j}, v{SS+2*j+1}")
    a.nop(2)
    a.e(f"{MF} {v(OS,16)}, {v(VS,4)}, {v(PS,4)}, {v(OS,16)}", f"{MF} {v(OS,16)}, {v(VS+4,4)}, {v(PS+4,4)}, {v(OS,16)}")
    a.e(f"s_add_u32 s{sT0}, s{sT0}, 1024", f"s_add_u32 s{sT2}, s{sT2}, 2048", f"s_sub_u32 s{sT1}, s{sT1}, 1", f"s_cmp_lg_u32 s{sT1}, 0")
    a.nop(10)
    a.e(f"s_cbranch_scc1 {pfx}_l2")
    a.nop(14)
    for r in range(9): a.e(f"v_mov_b32 v{RB+r}, v{OS+r}")

def attn_red(a, sc, pfx, ch, LP, RB, scale=None):
    ta, tb = RB + 46, RB + 47
    a.e(f"s_mul_i32 s{sT1}, s{sKQ}, 2304", f"s_add_u32 s{sT0}, s{sT1}, {LP}")
    a.e(f"v_add_u32 v{ta}, s{sT0}, v{vL16}", f"v_lshrrev_b32 v{tb}, 2, v{vL16}", f"v_add_u32 v{tb}, s{sT0}, v{tb}")
    for kq in range(4):
        a.e(f"ds_read_b128 {v(RB+12*kq,4)}, v{ta} offset:{kq*4*2304}", f"ds_read_b128 {v(RB+12*kq+4,4)}, v{ta} offset:{kq*4*2304+1024}",
            f"ds_read_b32 v{RB+12*kq+8}, v{tb} offset:{kq*4*2304+2048}")
    a.e(f"s_mov_b32 s{sT2}, {f2u(2.0**40):#x}", f"s_mov_b32 s{sT3}, {f2u(2.0**120):#x}")
    a.e("s_waitcnt lgkmcnt(0)")
    for r in range(9): a.e(f"v_add_f32 v{RB+r}, v{RB+r}, v{RB+12+r}", f"v_add_f32 v{RB+24+r}, v{RB+24+r}, v{RB+36+r}")
    for r in range(9): a.e(f"v_add_f32 v{RB+r}, v{RB+r}, v{RB+24+r}")
    T = RB + 12
    a.e(f"v_add_f32 v{T}, |v{RB}|, |v{RB+1}|", f"v_add_f32 v{T+1}, |v{RB+2}|, |v{RB+3}|", f"v_add_f32 v{T+2}, |v{RB+4}|, |v{RB+5}|", f"v_add_f32 v{T+3}, |v{RB+6}|, |v{RB+7}|",
        f"v_add_f32 v{T}, v{T}, v{T+1}", f"v_add_f32 v{T+2}, v{T+2}, v{T+3}", f"v_add_f32 v{T}, v{T}, v{T+2}")
    a.e(f"v_cmp_le_f32 vcc, {f2u(2.0**-30):#x}, v{RB+8}", f"v_cmp_ge_f32_e64 s[{sC0}:{sC0+1}], s{sT2}, v{RB+8}", f"v_cmp_gt_f32_e64 s[{sC1}:{sC1+1}], s{sT3}, v{T}")
    a.e("s_nop 1", f"s_and_b64 vcc, vcc, s[{sC0}:{sC0+1}]", f"s_and_b64 vcc, vcc, s[{sC1}:{sC1+1}]", "s_cmp_lg_u64 vcc, -1", f"s_cbranch_scc1 {pfx}_slow")
    a.label(f"{pfx}_norm")
    def ool():
        a.label(f"{pfx}_slow")
        def loadq(QS):
            a.e(f"s_lshl_b32 s{sT0}, s{sKQ}, 10", f"s_add_u32 s{sT0}, s{sT0}, {L_Q + ch*4096}", f"v_add_u32 v{QS}, s{sT0}, v{vL16}", f"ds_read_b128 {v(QS,4)}, v{QS}", "s_waitcnt lgkmcnt(0)")
        slow_path(a, pfx, RB, loadq, None)
        a.e(f"s_branch {pfx}_norm")
    OOL.append(ool)
    if scale is not None: a.e(f"v_mul_f32 v{RB+8}, v{RB+8}, v{scale}", "s_nop 0")
    a.e(f"v_rcp_f32 v{RB+9}, v{RB+8}")
    a.e(f"s_lshl_b32 s{sT0}, s{sKQ}, 15", f"s_lshl_b32 s{sT1}, s{sTB}, 17", f"s_add_u32 s{sT0}, s{sT0}, s{sT1}", f"s_lshl_b32 s{sT1}, s{sJ}, 11", f"s_add_u32 s{sT0}, s{sT0}, s{sT1}",
        f"s_add_u32 s{sT0}, s{sT0}, {WS_O + ch*1024}")
    for r in range(8): a.e(f"v_mul_f32 v{RB+r}, v{RB+r}, v{RB+9}")
    for q in range(4): a.e(f"v_cvt_pk_bf16_f32 v{RB+12+q}, v{RB+2*q}, v{RB+2*q+1}")
    sc.vmem(f"buffer_store_dwordx4 {v(RB+12,4)}, v{vL16}, {RS}, s{sT0} offen sc1", "ost")
    a.e(f"s_lshl_b32 s{sT3}, s{sTB}, 11", f"s_lshr_b32 s{sT1}, s{sKQ}, 1", f"s_lshl_b32 s{sT1}, s{sT1}, 10", f"s_add_u32 s{sT3}, s{sT3}, s{sT1}",
        f"s_lshl_b32 s{sT1}, s{sJ}, 3", f"s_add_u32 s{sT3}, s{sT3}, s{sT1}",
        f"s_and_b32 s{sT1}, s{sKQ}, 1", f"s_lshl_b32 s{sT1}, s{sT1}, 2", f"s_add_u32 s{sT3}, s{sT3}, s{sT1}", f"s_add_u32 s{sT3}, s{sT3}, {FL_O + ch*32768}")

def kv_wave(a, sc, isV):
    pf = "kvV" if isV else "kvK"
    WF, XF, D = 8, 72, 136
    a.e("v_and_b32 v140, 15, v0", "v_lshrrev_b32 v141, 4, v0", "v_and_b32 v142, 1, v141", "v_lshrrev_b32 v143, 1, v141", "v_lshl_add_u32 v142, v143, 2, v142", "v_lshlrev_b32 v142, 7, v142",
        "v_lshrrev_b32 v144, 2, v140", "v_lshl_add_u32 v142, v144, 5, v142", "v_and_b32 v144, 3, v0", "v_lshl_add_u32 v142, v144, 3, v142", f"v_add_u32 v142, {L_F + (16384 if isV else 0)}, v142")
    a.e("v_and_b32 v144, 7, v0", "v_xor_b32 v144, v144, v143", "v_lshlrev_b32 v144, 4, v144", "v_lshl_add_u32 v144, v141, 7, v144", f"v_add_u32 v144, {L_XN}, v144")
    for q in range(1, 4): a.e(f"v_xor_b32 v{144+q}, {2*q*16}, v144")
    def rd(st):
        sc.lds(f"ds_read_b64_tr_b16 {v(WF+4*st,2)}, v142 offset:{st*1024}", f"r{st}")
        sc.lds(f"ds_read_b64_tr_b16 {v(WF+4*st+2,2)}, v142 offset:{st*1024+256}", f"r{st}")
        sc.lds(f"ds_read_b128 {v(XF+4*st,4)}, v{144+(st&3)} offset:{st*512}", f"r{st}")
    for st in range(5): rd(st)
    if not isV:
        a.e("v_and_b32 v148, 1, v141", "v_lshlrev_b32 v148, 9, v148", "v_lshl_add_u32 v148, v143, 3, v148", "v_and_b32 v149, 7, v0", "v_lshl_add_u32 v148, v149, 4, v148")
        a.e(f"s_lshl_b32 s{sT0}, s{sKT}, 10", f"s_and_b32 s{sT1}, s{sJ}, 3", f"s_lshl_b32 s{sT1}, s{sT1}, 7", f"s_add_u32 s{sT0}, s{sT0}, s{sT1}", f"s_add_u32 s{sT0}, s{sT0}, {WS_KF}")
    else:
        a.e("v_lshlrev_b32 v148, 4, v140", "v_lshl_add_u32 v148, v141, 3, v148")
        a.e(f"s_lshl_b32 s{sT0}, s{sKT}, 11", f"s_and_b32 s{sT1}, s{sJ}, 2", f"s_lshl_b32 s{sT1}, s{sT1}, 9", f"s_add_u32 s{sT0}, s{sT0}, s{sT1}", f"s_and_b32 s{sT1}, s{sJ}, 1", f"s_lshl_b32 s{sT1}, s{sT1}, 9",
            f"s_add_u32 s{sT0}, s{sT0}, s{sT1}", f"s_add_u32 s{sT0}, s{sT0}, {WS_VF}")
    for st in range(16):
        sc.wait_lg(f"r{st}")
        d = D + 4 * (st & 1) * 0
        c0 = "0" if st == 0 else v(D, 4)
        if isV: a.e(f"{MF16} {v(D,4)}, {v(XF+4*st,4)}, {v(WF+4*st,4)}, {c0}")
        else: a.e(f"{MF16} {v(D,4)}, {v(WF+4*st,4)}, {v(XF+4*st,4)}, {c0}")
        if st + 5 < 16: rd(st + 5)
    lpost(a, C_KV)
    a.nop(8)
    a.e(f"v_cvt_pk_bf16_f32 v{D}, v{D}, v{D+1}", f"v_cvt_pk_bf16_f32 v{D+1}, v{D+2}, v{D+3}")
    if isV: a.e("s_mov_b32 exec_lo, -1", "s_mov_b32 exec_hi, 0")
    else: a.e("s_mov_b32 exec_lo, 0x00ff00ff", "s_mov_b32 exec_hi, 0x00ff00ff")
    sc.vmem(f"buffer_store_dwordx2 {v(D,2)}, v148, {RS}, s{sT0} offen sc1", "kvs")
    a.e("s_mov_b64 exec, -1")
    tsn(a, "kvm")
    if isV:
        sc.wait_vm("kvs")
        lpost(a, C_VS)
    else:
        if "flat" in KNOB:
            a.e(f"s_lshl_b32 s{sT0}, s{sTB}, 6", f"s_lshl_b32 s{sT1}, s{sJ}, 2", f"s_add_u32 s{sT0}, s{sT0}, s{sT1}", f"s_add_u32 s{sT0}, s{sT0}, {FL_FLAT}", "v_lshlrev_b32 v148, 10, v0")
            sc.wait_vm("kvs")
            lwait(a, "kvv", C_VS, 1, 149)
            a.e(*EXL(nrep()), f"buffer_store_dword v{vNON}, v148, {RS}, s{sT0} offen sc1", "s_mov_b64 exec, -1")
        else:
            a.e(f"s_lshl_b32 s{sT0}, s{sTB}, 8", f"s_lshl_b32 s{sT1}, s{sJ}, 2", f"s_add_u32 s{sT0}, s{sT0}, s{sT1}", f"s_add_u32 s{sT0}, s{sT0}, {FL_KV}")
            sc.wait_vm("kvs")
            lwait(a, "kvv", C_VS, 1, 149)
            post_flag(a, sT0)
    sc.vm.append("flag")
    tsn(a, "kv")

def csp_setup(a):
    if "map84" in KNOB:
        G_ = 7
        a.e(f"s_lshr_b32 s{sT0}, s{sTB}, 3", f"s_lshr_b32 s{sT1}, s{sJ}, 2")
    else:
        G_ = 14
        a.e(f"s_lshr_b32 s{sT0}, s{sTB}, 2", f"s_lshr_b32 s{sT1}, s{sJ}, 3")
    a.e(f"s_lshl_b32 s{sT0}, s{sT0}, 5", f"s_lshr_b32 s{sT2}, s2, 3", f"s_add_u32 s{sT0}, s{sT0}, s{sT2}", f"s_and_b32 s{sRB}, s{sT0}, 3", f"s_lshr_b32 s{sT0}, s{sT0}, 2",
        f"s_mul_i32 s{sT2}, s{sT1}, {G_}", f"s_add_u32 s{sT2}, s{sT2}, s{sT0}")
    a.e(f"s_add_u32 s{sCG}, s{sT2}, {28 - G_}", f"s_sub_u32 s{sT3}, s{sT2}, {G_}", f"s_cmp_lt_u32 s{sT0}, {G_}", f"s_cselect_b32 s{sCG}, s{sT2}, s{sCG}", f"s_cselect_b32 s{sT2}, s{sT2}, s{sT3}",
        f"s_cselect_b32 s{R_C}, s{R_GA}, s{R_GB}", f"s_cselect_b32 s{R_C+1}, s{R_GA+1}, s{R_GB+1}", f"s_mov_b32 s{R_C+2}, {512*3584}", f"s_mov_b32 s{R_C+3}, 0x20000")
    a.e(f"s_cmp_ge_u32 s{sT0}, {2*G_}", "s_cbranch_scc1 a_poll")

def csp_loads(a, sc, CL):
    a.e("v_lshrrev_b32 v24, 3, v0", f"s_lshl_b32 s{sT0}, s{sRB}, 7", f"v_add_u32 v24, s{sT0}, v24",
        "v_mul_u32_u24 v24, 3584, v24", f"s_lshl_b32 s{sT2}, s{sT2}, 7", "v_and_b32 v25, 7, v0", "v_lshl_add_u32 v24, v25, 4, v24", f"v_add_u32 v24, s{sT2}, v24")
    for q in range(16):
        a.e(f"s_mov_b32 s{sT0}, {q*8*3584}")
        sc.vmem(f"buffer_load_dwordx4 {v(CL+4*q,4)}, v24, {SR(R_C)}, s{sT0} offen", f"cs{q//4}")

def csp_compute(a, sc, CL, CA):
    a.e(f"s_mov_b32 s{sT0}, 0x3f80", f"s_mov_b32 s{sT1}, 0x3f800000")
    for q in range(16):
        if q % 4 == 0: sc.wait_vm(f"cs{q//4}")
        for d in range(4):
            c_lo = "0" if q == 0 else f"v{CA+2*d}"; c_hi = "0" if q == 0 else f"v{CA+2*d+1}"
            a.e(f"v_dot2_f32_bf16 v{CA+2*d}, v{CL+4*q+d}, s{sT0}, {c_lo}", f"v_dot2_f32_bf16 v{CA+2*d+1}, v{CL+4*q+d}, s{sT1}, {c_hi}")
    a.e("s_nop 2")
    for d in range(4): a.e(f"v_permlane16_swap_b32 v{CA+2*d}, v{CA+2*d+1}")
    a.e("s_nop 0")
    for d in (2, 3, 0, 1): a.e(f"v_add_f32 v{CA+2*d}, v{CA+2*d}, v{CA+2*d+1}")
    a.e("s_nop 0", f"v_permlane32_swap_b32 v{CA+4}, v{CA+6}", f"v_permlane32_swap_b32 v{CA}, v{CA+2}", "s_nop 0", f"v_add_f32 v{CA+4}, v{CA+4}, v{CA+6}", f"v_add_f32 v{CA}, v{CA}, v{CA+2}", "s_nop 1",
        f"v_add_f32_dpp v{CA+4}, v{CA+4}, v{CA+4} row_ror:8 row_mask:0xf bank_mask:0xf", f"v_add_f32_dpp v{CA}, v{CA}, v{CA} row_ror:8 row_mask:0xf bank_mask:0xf")
    a.e("v_and_b32 v24, 7, v0", "v_lshlrev_b32 v24, 3, v24", "v_lshrrev_b32 v25, 5, v0", "v_lshl_add_u32 v24, v25, 1, v24", "v_lshrrev_b32 v25, 4, v0", "v_and_b32 v25, 1, v25", "v_add_u32 v24, v24, v25",
        "v_lshlrev_b32 v24, 5, v24", f"v_mov_b32 v{CA+1}, s{sNON}", f"v_mov_b32 v{CA+5}, s{sNON}")
    a.e(f"s_lshl_b32 s{sT0}, s{sRB}, 3", f"s_lshl_b32 s{sT1}, s{sCG}, 11", f"s_add_u32 s{sT0}, s{sT0}, s{sT1}", f"s_add_u32 s{sT0}, s{sT0}, {WS_CS}")
    a.e("s_mov_b32 exec_lo, 0x00ff00ff", "s_mov_b32 exec_hi, 0x00ff00ff", f"buffer_store_dwordx2 {v(CA,2)}, v24, {RS}, s{sT0} offen sc1", f"buffer_store_dwordx2 {v(CA+4,2)}, v24, {RS}, s{sT0} offen offset:128 sc1",
        "s_mov_b64 exec, -1")

def a_tile_order(place, PV1, Sm, PV2, e, cv, q):
    M = lambda x: (lambda a: a.e(x) if x else None)
    if place == "even":
        return [PV1, q, e(0), e(1), e(2), e(3), cv(0), e(4), e(5), cv(1), Sm, e(6), e(7), cv(2), e(8), e(9), cv(3), PV2, e(10), e(11), cv(4), e(12), e(13), cv(5), e(14), e(15), cv(6), cv(7)]
    if place == "two":
        return [PV1, q, e(0), e(1), e(2), PV2, e(3), cv(0), e(4), e(5), cv(1), e(6), e(7), cv(2), Sm, e(8), e(9), cv(3), e(10), e(11), cv(4), e(12), e(13), cv(5), e(14), e(15), cv(6), cv(7)]
    return [PV1, q, e(0), e(1), e(2), Sm, e(3), cv(0), e(4), e(5), PV2, cv(1), e(6), e(7), cv(2), e(8), e(9), cv(3), e(10), e(11), cv(4), e(12), e(13), cv(5), e(14), e(15), cv(6), cv(7)]

def role_a(a):
    ROLE[0] = "A"
    a.label("role_a")
    if "noprio0" not in KNOB: a.e("s_setprio 3")
    sc = Sched2(a)
    CL, CA = 100, 164
    a.e(f"s_lshl_b32 s{sT0}, s{sTB}, 7", f"s_lshr_b32 s{sT1}, s{sJ}, 1", f"s_lshl_b32 s{sT1}, s{sT1}, 4", f"s_add_u32 s{sT0}, s{sT0}, s{sT1}",
        f"s_and_b32 s{sT1}, s{sJ}, 1", f"s_lshl_b32 s{sT1}, s{sT1}, 2", f"s_add_u32 s{sT0}, s{sT0}, s{sT1}", f"s_add_u32 s{sTOK}, s{sT0}, s{sKQ}", f"s_lshl_b32 s{sT3}, s{sTOK}, 10")
    a.e(f"v_lshrrev_b32 v21, 1, v{vL16}", f"v_xor_b32 v21, v21, v{vL16}", "v_and_b32 v21, 128, v21", "v_lshl_or_b32 v21, v21, 1, v21", f"v_xor_b32 v21, v{vL16}, v21", f"v_add_u32 v20, 8192, v{vL16}")
    a.e(f"s_lshl_b32 s{sT2}, s{sKQ}, 12", f"s_add_u32 m0, s{sT2}, {L_F}", f"s_add_u32 s{sT1}, s{sT2}, {L_F + 16384}")
    karg_wait(a, "ta", [R_X, R_WK, R_WV, R_D])
    tsn(a, "karg")
    srd_fix(a, R_X, SRDSZ[R_X])
    sc.vmem(f"buffer_load_dwordx4 {v(XRW,4)}, v{vL16}, {SR(R_X)}, s{sT3} offen", "xr")
    sc.vmem(f"buffer_load_dwordx4 {v(XRW+16,4)}, v20, {SR(R_X)}, s{sT3} offen", "xr")
    tsn(a, "ax")
    srd_fix(a, R_WK, 16384)
    for q in range(4): sc.vmem(f"buffer_load_dwordx4 v21, {SR(R_WK)}, s{sT2} offen offset:{q*1024} lds", "f")
    tsn(a, "ak")
    srd_fix(a, R_WV, 16384)
    a.e(f"s_mov_b32 m0, s{sT1}")
    srd_fix(a, R_WS, WS_SIZE)
    for q in range(4): sc.vmem(f"buffer_load_dwordx4 v21, {SR(R_WV)}, s{sT2} offen offset:{q*1024} lds", "f")
    a.e(f"s_load_dword s{sNON}, s[{R_WS}:{R_WS+1}], {NLOC:#x}")
    tsn(a, "av")
    a.e("s_barrier")
    tsn(a, "post")
    tsn(a, "iss")
    common_rest(a, (R_X, R_WK, R_WV, R_WS))
    kv_rows(a, sc)
    a.e(f"s_cmp_lt_u32 s{sW}, 6", "s_cbranch_scc1 a_kv", "s_setprio 0", f"s_cmp_eq_u32 s{sW}, 7", "s_cbranch_scc1 a_pw")
    csp_setup(a)
    scc = Sched2(a); scc.vm = list(sc.vm)
    if "csearly" not in KNOB: lwait(a, "acs", C_G, 4, 24)
    if "nocsp" not in KNOB:
        csp_loads(a, scc, CL)
        csp_compute(a, scc, CL, CA)
    a.e("s_branch a_poll")
    a.label("a_pw")
    def sweep(name, NP):
        ld = lambda i: f"buffer_load_dwordx4 {v(200+4*i,4)}, v5, {RS}, 0 offen sc1"
        for i in range(NP - 1): a.e(ld(i), f"s_sleep {pgap()}")
        a.e(f"s_mov_b32 s{sCNT}, {SPIN}")
        a.label(f"{name}_loop")
        for i in range(NP):
            b = 200 + 4 * i
            a.e(ld((i + NP - 1) % NP), f"s_waitcnt vmcnt({NP-1})")
            for r in range(4): a.e(f"v_xor_b32 v{b+r}, s{sNON}, v{b+r}")
            a.e(f"v_or_b32 v{b}, v{b}, v{b+1}", f"v_or_b32 v{b+2}, v{b+2}, v{b+3}", f"v_or_b32 v{b}, v{b}, v{b+2}", f"v_cmp_ne_u32 vcc, 0, v{b}", f"s_cbranch_vccz {name}_done", f"s_sleep {pgap()}")
        a.e(f"s_sub_u32 s{sCNT}, s{sCNT}, 1", f"s_cmp_lg_u32 s{sCNT}, 0", f"s_cbranch_scc1 {name}_loop")
        a.label(f"{name}_done")
    NP = 2
    for kn in KNOB:
        if kn.startswith("np"): NP = int(kn[2:])
    lwait(a, "apw", C_VS, 1, 24)
    tsn(a, "pw0")
    if "flat" in KNOB:
        for kn in KNOB:
            if kn.startswith("dly"): a.e(f"s_sleep {int(kn[3:])}")
        a.e(f"s_and_b32 s{sT0}, s2, {nrep()-1}", f"s_lshl_b32 s{sT0}, s{sT0}, 10", f"s_add_u32 s{sT0}, s{sT0}, {FL_FLAT}", f"v_add_u32 v5, s{sT0}, v{vL16}")
        tsn(a, "pw1")
        sweep("pk2", NP)
    else:
        a.e(f"s_cmp_lg_u32 s{sJ}, 0", "s_cbranch_scc1 a_l2")
        a.e(f"s_lshl_b32 s{sT0}, s{sTB}, 8", f"s_add_u32 s{sT0}, s{sT0}, {FL_KV}", f"v_add_u32 v5, s{sT0}, v{vL16}", "s_mov_b64 exec, 0xf")
        sweep("pk1", NP)
        a.e("s_mov_b64 exec, -1", "v_lshlrev_b32 v5, 8, v0", f"s_lshl_b32 s{sT0}, s{sTB}, 2", f"s_add_u32 s{sT0}, s{sT0}, {FL_K2}", *EXL(nrep()),
            f"buffer_store_dword v{vNON}, v5, {RS}, s{sT0} offen sc1", "s_mov_b64 exec, -1")
        a.label("a_l2")
        tsn(a, "pw1")
        a.e(f"s_and_b32 s{sT0}, s2, {nrep()-1}", f"s_lshl_b32 s{sT0}, s{sT0}, 8", f"s_add_u32 s{sT0}, s{sT0}, {FL_K2}", f"v_add_u32 v5, s{sT0}, v{vL16}", "s_mov_b64 exec, 0xf")
        sweep("pk2", NP)
        a.e("s_mov_b64 exec, -1")
    tsn(a, "pw2")
    lpost(a, C_RDY)
    a.e("s_branch a_poll")
    a.label("a_kv")
    lwait(a, "axn", C_XN, 4, 24)
    tsn(a, "b1")
    a.e(f"s_cmp_eq_u32 s{sW}, 5", "s_cbranch_scc1 a_vw")
    s1 = Sched2(a); s1.vm = list(sc.vm)
    kv_wave(a, s1, False)
    a.e("s_branch a_poll")
    a.label("a_vw")
    s2 = Sched2(a); s2.vm = list(sc.vm)
    kv_wave(a, s2, True)
    a.label("a_poll")
    a.e("s_setprio 0")
    sc = Sched2(a)
    a.e("v_and_b32 v24, 27, v0", "v_cmp_eq_u32 vcc, 16, v24", f"v_mov_b32 v24, s{sONES}", f"s_lshl_b32 s{sK0}, s{sKQ}, 14", f"v_cndmask_b32 v{VF}, 0, v24, vcc")
    for r in range(1, 32): a.e(f"v_mov_b32 v{VF+r}, v{VF}")
    a.e(f"s_add_u32 s{sK0}, s{sK0}, {WS_KF}", f"s_lshl_b32 s{sV0}, s{sKQ}, 15", f"s_add_u32 s{sV0}, s{sV0}, {WS_VF}", f"s_mov_b32 s{sVM}, 0xffff", f"s_mov_b32 s{sVM+1}, 0xffff")
    a.e(f"v_add_u32 v251, {L_Q}, v{vL16}")
    kperm(a, 7, 6)
    lwait(a, "ardy", C_RDY, 1, 6)
    tsn(a, "pol")
    def loadK(k):
        it = []
        if (k & 3) == 0: it.append(('s', f"s_add_u32 s{sKc}, s{sK0}, {(k>>2)*4096}"))
        it.append(('v', lambda: sc.vmem(f"buffer_load_dwordx4 {v(KF+4*k,4)}, v7, {RS}, s{sKc} offen offset:{(k&3)*1024}{KVS()}", f"K{k}")))
        return it
    def loadV(g):
        if g >= 32 or ("nokv" in KNOB and g >= 4): return
        it = []
        k = g & 15 if "kvsame" not in KNOB else 0
        if (k & 1) == 0: it.append(('s', f"s_add_u32 s{sVc}, s{sV0}, {(k>>1)*4096}"))
        it.append(('s', f"s_mov_b64 exec, s[{sVM}:{sVM+1}]"))
        for h in range(2):
            it.append(('v', lambda h=h: sc.vmem(f"buffer_load_dwordx4 {v(VF+8*(g&3)+4*h,4)}, v{vL16}, {RS}, s{sVc} offen offset:{(k&1)*2048+h*1024}{KVS()}", f"V{g}")))
        it.append(('s', "s_mov_b64 exec, -1"))
        return it
    def emit(items):
        for kind, x in items:
            if kind == 's': a.e(x)
            else: x()
    emit(loadK(0)); emit(loadV(0)); emit(loadK(1)); emit(loadV(1))
    for k in range(2, 6): emit(loadK(k))
    emit(loadV(2)); emit(loadV(3))
    for k in range(6, 16): emit(loadK(k))
    lwait(a, "aq", C_Q, 4, 6)
    tsn(a, "b2")
    for c in range(4): a.e(f"ds_read_b128 {v(Q0+4*c,4)}, v251 offset:{c*1024}")
    for c in range(4): a.e(f"ds_read_b128 {v(Q1+4*c,4)}, v251 offset:{4096+c*1024}")
    sc.wait_vm("K0")
    a.e("s_waitcnt lgkmcnt(4)", f"s_setprio {prio_a()}")
    a.e(f"{MF} {v(S,16)}, {v(KF,4)}, {v(Q0,4)}, 0")
    a.e(f"s_mul_i32 s{sT0}, s{sKQ}, {4*2304}", f"s_add_u32 s{sT0}, s{sT0}, {L_P0}", f"v_add_u32 v5, s{sT0}, v{vL16}", f"v_lshrrev_b32 v6, 2, v{vL16}", f"v_add_u32 v6, s{sT0}, v6", "s_waitcnt lgkmcnt(0)")
    a.nop(8)
    a.raw(".p2align 3")
    place = "even" if "even" in KNOB else ("two" if "two" in KNOB else "tight")
    def pwrite(c, off):
        return [('s', f"ds_write_b128 v5, {v(O+16*c,4)} offset:{off+c*2304}"), ('s', f"ds_write_b128 v5, {v(O+16*c+4,4)} offset:{off+c*2304+1024}"),
                ('s', f"ds_write_b32 v6, v{O+16*c+8} offset:{off+c*2304+2048}")]
    for t in range(NT):
        g, c = t // 4, t & 3
        Sin, Sout = S + 16 * (t & 1), S + 16 * ((t + 1) & 1)
        Pcur, Pprev = P + 8 * (t & 1), P + 8 * ((t + 1) & 1)
        q = []
        if c == 1 and g >= 1: q += loadV(g + 3) or []
        tail = []
        if 63 <= t <= 66: tail += pwrite(t - 63, 0)
        if t == 67: tail += [('s', "s_waitcnt lgkmcnt(0)"), ('s', "s_mov_b64 exec, 1"), ('s', f"ds_add_u32 v{vFL}, v{vONE} offset:{C_P0}"), ('s', "s_mov_b64 exec, -1")]
        tsn(a, f"t{t}")
        if 65 <= t <= 67: a.e("s_waitcnt lgkmcnt(0)")
        nt = t + 1; pt = t - 1
        if pt >= 0 and (pt & 3) == 0: sc.wait_vm(f"V{pt//4}")
        if nt < 64 and (nt & 3) == 0: sc.wait_vm(f"K{nt//4}")
        Qn = (Q0 if nt < 64 else Q1) + 4 * (nt & 3)
        Sm = f"{MF} {v(Sout,16)}, {v(KF+4*((nt//4)&15),4)}, {v(Qn,4)}, 0" if nt < NT else None
        PV1 = PV2 = None
        if pt >= 0:
            Op = O + 16 * (pt & 3); vb = VF + 8 * ((pt // 4) & 3)
            c0 = "0" if (pt & 63) < 4 else v(Op, 16)
            PV1 = f"{MF} {v(Op,16)}, {v(vb,4)}, {v(Pprev,4)}, {c0}"
            PV2 = f"{MF} {v(Op,16)}, {v(vb+4,4)}, {v(Pprev+4,4)}, {v(Op,16)}"
        e = lambda i: f"v_exp_f32 v{Sin+i}, v{Sin+i}"
        cv = lambda j: f"v_cvt_pk_bf16_f32 v{Pcur+j}, v{Sin+2*j}, v{Sin+2*j+1}"
        for x in a_tile_order(place, PV1, Sm, PV2, e, cv, q):
            if x is None: continue
            if isinstance(x, list): emit(x)
            else: a.e(x)
        emit(tail)
    tsn(a, "att1")
    a.e("s_setprio 3")
    pt = NT - 1
    Op = O + 16 * 3; vb = VF + 8 * 3; Pp = P + 8 * (pt & 1)
    a.nop(2)
    a.e(f"{MF} {v(Op,16)}, {v(vb,4)}, {v(Pp,4)}, {v(Op,16)}", f"{MF} {v(Op,16)}, {v(vb+4,4)}, {v(Pp+4,4)}, {v(Op,16)}")
    for c in range(3): emit(pwrite(c, PSZ))
    a.nop(12)
    emit(pwrite(3, PSZ))
    a.e("s_waitcnt lgkmcnt(0)")
    lpost(a, C_A)
    lwait(a, "la", C_A, 4, 6)
    sc.vm = []
    attn_red(a, sc, "ry", 1, L_P1, 128)
    a.e("s_waitcnt vmcnt(0)")
    post_flag8(a, sT3, 5)
    a.e(f"s_xor_b32 s{sT0}, s{sW}, 7", f"s_or_b32 s{sT0}, s{sT0}, s2", f"s_cmp_lg_u32 s{sT0}, 0", "s_cbranch_scc1 a_nonl", f"s_mov_b32 s{sT0}, {NLOC}")
    post_flag(a, sT0)
    a.label("a_nonl")
    tsn(a, "m8")
    ts_dump(a)
    a.e("s_endpgm")

def prio_a():
    for kn in KNOB:
        if kn.startswith("pa"): return int(kn[2:])
    return 1
def prio_g(sec):
    for kn in KNOB:
        if kn.startswith("pg" + sec): return int(kn[2 + len(sec):][1:]) if False else int(kn[len("pg" + sec):])
    return 0

def split3(a, x, d):
    a.e(f"v_cvt_pk_bf16_f32 v{d}, v{x}, v{x}", f"v_and_b32 v{d+3}, s{sMASK}, v{d}", f"v_sub_f32 v{x}, v{x}, v{d+3}",
        f"v_cvt_pk_bf16_f32 v{d+1}, v{x}, v{x}", f"v_and_b32 v{d+3}, s{sMASK}, v{d+1}", f"v_sub_f32 v{x}, v{x}, v{d+3}", f"v_cvt_pk_bf16_f32 v{d+2}, v{x}, v{x}")

def emit_items(a, items):
    for it in items:
        if it[0] == 'v': it[1]()
        else: a.e(it[1])

def role_g(a):
    ROLE[0] = "G"
    a.label("role_g")
    sc = Sched2(a)
    a.e(f"s_cmp_lg_u32 s{sW}, 0", "s_cbranch_scc1 g_nz")
    a.e("v_and_b32 v23, 31, v0", "v_lshlrev_b32 v23, 2, v23", f"v_add_u32 v23, {L_FL}, v23", "v_mov_b32 v24, 0", "ds_write_b32 v23, v24")
    a.label("g_nz")
    a.e("v_lshrrev_b32 v24, 2, v0", "v_lshlrev_b32 v24, 10, v24", "v_and_b32 v25, 3, v0", "v_lshl_add_u32 v24, v25, 4, v24", f"s_lshl_b32 s{sT0}, s{sJ}, 6", f"v_add_u32 v{vQA}, s{sT0}, v24")
    a.e("v_lshrrev_b32 v24, 3, v0", "v_lshrrev_b32 v25, 4, v0", "v_and_b32 v26, 7, v0", "v_xor_b32 v25, v25, v26", "v_lshlrev_b32 v25, 4, v25", f"v_lshl_add_u32 v{vX}, v24, 10, v25",
        f"v_xor_b32 v{vX+1}, 64, v{vX}", f"v_add_u32 v{vX+1}, 8192, v{vX+1}", f"v_add_u32 v{vX+2}, 16384, v{vX}", f"v_add_u32 v{vX+3}, 16384, v{vX+1}")
    a.e(f"s_lshl_b32 s{sXS}, s{sTB}, 17", f"s_lshl_b32 s{sT0}, s{sW}, 15", f"s_add_u32 s{sXS}, s{sXS}, s{sT0}", f"s_mul_i32 s{sMX}, s{sW}, 12288", f"s_add_u32 s{sMX}, s{sMX}, {L_X}",
        f"s_lshl_b32 s{sXC}, s{sROT}, 7", f"s_lshl_b32 s{sT1}, s{sW}, 13", f"s_add_u32 s{sT1}, s{sT1}, {L_WQ}",
        f"s_lshl_b32 s{sT2}, s{sW}, 17", f"s_lshl_b32 s{sT3}, s{sROT}, 16", f"s_add_u32 s{sT2}, s{sT2}, s{sT3}")
    karg_wait(a, "tg", [R_WQ, R_WS, R_GA, R_GB])
    tsn(a, "karg")
    srd_fix(a, R_WQ, SRDSZ[R_WQ]); srd_fix(a, R_X, SRDSZ[R_X])
    tsn(a, "pre")
    a.e("s_barrier")
    tsn(a, "post")
    for i in range(8):
        a.e(f"s_add_u32 m0, s{sT1}, {i*1024}", f"s_add_u32 s{sT0}, s{sT2}, {i*16384}", f"s_and_b32 s{sT0}, s{sT0}, 0x7ffff")
        sc.vmem(f"buffer_load_dwordx4 v{vQA}, {SR(R_WQ)}, s{sT0} offen lds", "wq")
    def xdma(u):
        if u > 7: return []
        it = [('s', f"s_add_u32 s{sT3}, s{sXS}, s{sXC}")]
        for i in range(4):
            it.append(('s', f"s_add_u32 m0, s{sMX}, {(u%3)*4096 + i*1024}"))
            it.append(('s', f"s_add_u32 s{sXC}, s{sXC}, 128" if i == 0 else (f"s_and_b32 s{sXC}, s{sXC}, 1023" if i == 1 else "s_nop 0")))
            it.append(('v', lambda i=i: sc.vmem(f"buffer_load_dwordx4 v{vX+i}, {SR(R_X)}, s{sT3} offen lds", f"x{u}")))
        return it
    tsn(a, "gwq")
    for u in range(3):
        emit_items(a, xdma(u))
        if u == 0: tsn(a, "gx0")
    tsn(a, "iss")
    common_rest(a, (R_WQ, R_X))
    if "touchl" in KNOB:
        a.e("v_mov_b32 v24, 0", "v_lshlrev_b32 v25, 20, v0", "s_mov_b64 exec, 1")
        for r in (R_O, R_OUT): sc.vmem(f"buffer_load_dword v250, v24, {SR(r)}, 0 offen", "tch")
        a.e("s_mov_b64 exec, 0xffff")
        sc.vmem(f"buffer_load_dword v250, v25, {RS}, 0 offen", "tch")
        a.e("s_mov_b64 exec, -1")
    a.e("v_and_b32 v24, 31, v0", "v_lshrrev_b32 v25, 1, v24", "v_and_b32 v25, 7, v25", "v_lshrrev_b32 v26, 5, v0", "v_xor_b32 v25, v25, v26", "v_lshlrev_b32 v25, 4, v25", "v_lshl_add_u32 v25, v24, 7, v25",
        f"v_add_u32 v{vXB}, s{sMX}, v25")
    for k4 in range(1, 4): a.e(f"v_xor_b32 v{vXB+k4}, {k4<<5}, v{vXB}")
    a.e("v_and_b32 v24, 15, v0", "v_lshrrev_b32 v25, 2, v24", "v_lshl_add_u32 v25, v26, 3, v25", "v_lshlrev_b32 v25, 6, v25", "v_lshrrev_b32 v27, 4, v0", "v_and_b32 v27, 1, v27",
        "v_lshl_add_u32 v25, v27, 5, v25", "v_and_b32 v28, 3, v0", "v_lshl_add_u32 v25, v28, 3, v25", f"v_add_u32 v{vQA}, {L_WQ}, v25")
    for r in range(4): a.e(f"v_mov_b32 v{GONE+r}, s{sONES}")
    AQ = AF
    def qreads(u):
        it = []
        for k4 in range(4):
            it.append(('v', lambda k4=k4: sc.lds(f"ds_read_b128 {v(XR+16*u+4*k4,4)}, v{vXB+k4} offset:{(u%3)*4096}", f"q{u}")))
            r = AQ + 16 * (u & 1) + 4 * k4
            k = 4 * u + k4
            it.append(('v', lambda r=r, k=k: sc.lds(f"ds_read_b64_tr_b16 {v(r,2)}, v{vQA} offset:{k*1024}", f"q{u}")))
            it.append(('v', lambda r=r, k=k: sc.lds(f"ds_read_b64_tr_b16 {v(r+2,2)}, v{vQA} offset:{k*1024+256}", f"q{u}")))
        return it
    vWg, vWu, vWgB, vWuB = 252, 253, 254, 255
    def waddr():
        a.e("v_lshrrev_b32 v24, 3, v0", "v_mul_u32_u24 v24, 3584, v24", "v_lshrrev_b32 v25, 4, v0", "v_and_b32 v25, 1, v25", "v_lshlrev_b32 v25, 1, v25", "v_and_b32 v26, 7, v0", "v_xor_b32 v25, v25, v26",
            f"s_mul_i32 s{sT0}, s{sJ}, 224", f"v_add_u32 v24, s{sT0}, v24", f"s_and_b32 s{sT1}, s{sJ}, 3", f"s_lshl_b32 s{sT2}, s{sT1}, 5", f"v_add_u32 v27, s{sT2}, v24",
            f"v_lshl_add_u32 v{vWg}, v25, 4, v27", "v_xor_b32 v26, 4, v25", f"v_lshl_add_u32 v{vWu}, v26, 4, v27")
        for src_, dst in ((25, vWgB), (26, vWuB)):
            a.e(f"v_cmp_le_u32 vcc, 6, v{src_}", f"v_subrev_u32 v27, 2, v{src_}", "s_nop 0", f"v_cndmask_b32 v27, v{src_}, v27, vcc",
                "v_lshrrev_b32 v28, 1, v27", f"v_cmp_le_u32 vcc, s{sT1}, v28", "v_add_u32 v29, 8, v27", "s_nop 0", "v_cndmask_b32 v27, v27, v29, vcc", f"v_lshl_add_u32 v{dst}, v27, 4, v24")
        a.e(f"s_mul_i32 s{sWO}, s{sW}, {16*3584}", f"s_lshl_b32 s{sMW}, s{sW}, 11", f"s_mul_i32 s{sWR}, s{sROT}, {64*3584}")
    def wdma(St):
        if St > 15: return []
        p, st = St // 8, St % 8
        slot = St % 4
        it = [('s', f"s_add_u32 s{sT2}, s{sWO}, s{sWR}")]
        for g, (srd_, vo) in enumerate(((R_GA, vWgB if p else vWg), (R_GB, vWuB if p else vWu))):
            for q in range(2):
                it.append(('s', f"s_add_u32 m0, s{sMW}, {slot*16384 + g*8192 + q*1024}"))
                it.append(('s', f"s_add_u32 s{sT3}, s{sT2}, {8*q*3584}"))
                it.append(('v', lambda srd_=srd_, vo=vo: sc.vmem(f"buffer_load_dwordx4 v{vo}, {SR(srd_)}, s{sT3} offen lds", f"w{St}")))
        it += [('s', f"s_add_u32 s{sWR}, s{sWR}, {64*3584}"), ('s', f"s_cmp_eq_u32 s{sWR}, {512*3584}"), ('s', f"s_cselect_b32 s{sWR}, 0, s{sWR}")]
        return it
    stl = f"buffer_load_dwordx4 {v(GST,4)}, v15, {RS}, 0 offen sc1"
    waddr()
    a.e(f"s_lshl_b32 s{sT0}, s{sTB}, 11", f"s_lshl_b32 s{sT1}, s{sW}, 9", f"s_add_u32 s{sT0}, s{sT0}, s{sT1}", f"s_add_u32 s{sT0}, s{sT0}, {WS_ST}", "v_and_b32 v15, 31, v0", "v_lshlrev_b32 v15, 4, v15",
        f"v_add_u32 v15, s{sT0}, v15")
    QA, CA_ = ACC, ACC + 16
    sc.wait_vm("wq")
    lpost(a, C_G)
    lwait(a, "gwq", C_G, 4, vCNT)
    tsn(a, "b1")
    for u in range(9):
        tsn(a, f"u{u}")
        if u >= 1:
            sc.wait_lg(f"q{u-1}")
        pre = []
        if u >= 1: pre += xdma(u + 2)
        if u == 5: pre += [('v', lambda: sc.vmem(stl, "stl"))] + (wdma(0) if "wlate0" not in KNOB else [])
        if u == 6:
            pre += [('s', lread(C_KV, vCNT))]
        rd = qreads(u) if u < 8 else []
        mf = []
        if u >= 1:
            for k4 in range(4):
                k = 4 * (u - 1) + k4
                r = AQ + 16 * ((u - 1) & 1) + 4 * k4
                mf.append(f"{MF} {v(QA,16)}, {v(r,4)}, {v(XR+4*k,4)}, {'0' if k == 0 else v(QA,16)}")
                mf.append(f"{MF} {v(CA_,16)}, {v(r,4)}, {v(GONE,4)}, {'0' if k == 0 else v(CA_,16)}")
        half = len(mf) // 2
        for i in range(half):
            a.e(mf[i])
            n = (len(pre) + (half - i) - 1) // (half - i)
            emit_items(a, pre[:n]); pre = pre[n:]
        emit_items(a, pre)
        if u == 7:
            a.e("s_waitcnt lgkmcnt(0)"); sc.lg = []
            lcheck(a, "gkv", C_KV, 2, vCNT)
            a.e(f"ds_read_b32 v{vNON}, v{vFL} offset:{W_NON}", "s_waitcnt lgkmcnt(0)", f"v_readfirstlane_b32 s{sNON}, v{vNON}")
            if "wlate" not in KNOB: emit_items(a, wdma(1) + wdma(2))
        if u < 8: sc.wait_vm(f"x{u}")
        rest = mf[half:]
        nslot = max(1, len(rest))
        for i in range(nslot):
            n = (len(rd) + (nslot - i) - 1) // (nslot - i)
            emit_items(a, rd[:n]); rd = rd[n:]
            if rest: a.e(rest[i])
    tsn(a, "q")
    sc.wait_vm("stl")
    tag_check(a, "gst", [stl], [GST + 1, GST + 3], 208)
    a.e(f"v_mov_b32 v{GNM}, v{GST}", f"v_mul_f32 v15, v{GST+2}, v{GST+2}", f"v_mul_f32 v{GRQ}, {f2u(QSCALE):#x}, v{GST+2}",
        f"s_lshl_b32 s{sT0}, s{sW}, 10", f"s_add_u32 s{sT0}, s{sT0}, {L_Q}", f"v_add_u32 v214, s{sT0}, v{vL16}")
    a.nop(6)
    for r in range(16): a.e(f"v_fma_f32 v{QA+r}, v{CA_+r}, v{GNM}, v{QA+r}")
    for r in range(16): a.e(f"v_mul_f32 v{QA+r}, v{QA+r}, v{GRQ}")
    for r in range(8): a.e(f"v_cvt_pk_bf16_f32 v{QA+r}, v{QA+2*r}, v{QA+2*r+1}")
    a.e(f"ds_write_b128 v214, {v(QA,4)}", f"ds_write_b128 v214, {v(QA+4,4)} offset:4096")
    split3(a, GNM, 216)
    a.e(f"v_bfi_b32 v219, s{sLOW}, v216, v217", f"v_bfi_b32 v220, s{sLOW}, v218, v216", f"v_bfi_b32 v221, s{sLOW}, v217, v218", "v_cmp_gt_u32 vcc, 32, v0", "s_nop 1",
        f"v_cndmask_b32 v{BNM}, 0, v219, vcc", f"v_cndmask_b32 v{BNM+1}, 0, v220, vcc", f"v_cndmask_b32 v{BNM+2}, 0, v221, vcc", f"v_cndmask_b32 v{BNM+3}, 0, v219, vcc")
    a.e("v_and_b32 v208, 15, v0", "v_lshrrev_b32 v209, 2, v208", "v_lshrrev_b32 v210, 5, v0", "v_lshl_add_u32 v209, v210, 3, v209", "v_lshlrev_b32 v209, 7, v209",
        "v_lshrrev_b32 v211, 4, v0", "v_and_b32 v211, 1, v211", "v_lshl_add_u32 v209, v211, 13, v209",
        "v_lshrrev_b32 v212, 1, v0", "v_and_b32 v212, 1, v212", "v_lshrrev_b32 v213, 3, v208", "v_lshlrev_b32 v213, 1, v213", "v_xor_b32 v212, v212, v213", "v_lshlrev_b32 v211, 2, v211", "v_xor_b32 v212, v212, v211",
        "v_lshl_add_u32 v209, v212, 4, v209", "v_and_b32 v212, 1, v0", f"v_lshl_add_u32 v{vXB}, v212, 3, v209")
    for t in range(1, 4): a.e(f"v_xor_b32 v{vXB+t}, {32*t}, v{vXB}")
    a.e("v_and_b32 v208, 31, v0", "v_lshrrev_b32 v209, 4, v208", "v_mul_u32_u24 v209, 1776, v209", "v_add_u32 v208, v208, v209", f"s_mul_i32 s{sT0}, s{sJ}, 112", f"v_add_u32 v208, s{sT0}, v208",
        "v_lshlrev_b32 v208, 5, v208", "v_lshl_add_u32 v208, v210, 4, v208",
        f"s_and_b32 s{sT1}, s{sJ}, 3", f"s_add_u32 s{sT2}, s{sT1}, s{sW}", f"s_lshl_b32 s{sT2}, s{sT2}, 9", f"v_add_u32 v5, s{sT2}, v208",
        f"s_add_u32 s{sT2}, s{sW}, 4", f"s_cmp_ge_u32 s{sW}, s{sT1}", f"s_cselect_b32 s{sT2}, s{sT2}, s{sW}", f"s_min_u32 s{sT2}, s{sT2}, 6", f"s_lshl_b32 s{sT2}, s{sT2}, 9", f"v_add_u32 v6, s{sT2}, v208")
    a.e(f"s_lshl_b32 s{sH0}, s{sTB}, 2", f"s_add_u32 s{sH0}, s{sH0}, s{sW}", f"s_mul_i32 s{sH0}, s{sH0}, 112", f"s_mul_i32 s{sT0}, s{sJ}, 7", f"s_add_u32 s{sH0}, s{sH0}, s{sT0}",
        f"s_lshl_b32 s{sH0}, s{sH0}, 10", f"s_add_u32 s{sH0}, s{sH0}, {WS_H}")
    a.e("s_waitcnt lgkmcnt(0)")
    lpost(a, C_Q)
    if "wlate" in KNOB:
        lwait(a, "grdy", C_RDY, 1, vCNT)
        if "wlate0" in KNOB: emit_items(a, wdma(0))
        emit_items(a, wdma(1) + wdma(2))
    sc.wait_vm("w0")
    lpost(a, C_G)
    lwait(a, "gq2", C_G, 8, vCNT)
    sc.lg = []
    tsn(a, "b2")
    PG1, PG2, HI = prio_g("1"), prio_g("2"), 2
    a.e(f"s_setprio {PG1}")
    emit_items(a, wdma(3))
    def wreads(St, kk):
        p = St // 8; nA = 3 if p else 4
        k = 4 * St + kk
        it = []
        for t in range(nA):
            r = AF + 16 * (k & 1) + 4 * t
            off = (St % 4) * 16384 + kk * 2048
            it.append(('v', lambda r=r, t=t, off=off: sc.lds(f"ds_read_b64_tr_b16 {v(r,2)}, v{vXB+t} offset:{off}", f"k{k}")))
            it.append(('v', lambda r=r, t=t, off=off: sc.lds(f"ds_read_b64_tr_b16 {v(r+2,2)}, v{vXB+t} offset:{off+512}", f"k{k}")))
        return it
    CSL = 244
    csl = [f"buffer_load_dwordx4 {v(CSL,4)}, v5, {RS}, s74 offen sc1", f"buffer_load_dwordx4 {v(CSL+4,4)}, v6, {RS}, s74 offen sc1"]
    L_CF = L_XN
    def cs_table():
        sc.wait_vm("csl")
        a.e(f"s_setprio {HI}")
        if "nocsp" not in KNOB: tag_check(a, "gcs", csl, [CSL + 1, CSL + 3, CSL + 5, CSL + 7], 7)
        a.e(f"v_add_f32 v{CSL}, v{CSL}, v{CSL+2}", f"v_add_f32 v{CSL+4}, v{CSL+4}, v{CSL+6}", f"v_mov_b32 v{CSL+1}, v{CSL}", f"v_mov_b32 v{CSL+5}, v{CSL+4}",
            f"s_lshl_b32 s{sT0}, s{sW}, 10", f"s_add_u32 s{sT0}, s{sT0}, {L_CF}", f"v_add_u32 v7, s{sT0}, v{vL16}",
            f"v_permlane32_swap_b32 v{CSL}, v{CSL+1}", f"v_permlane32_swap_b32 v{CSL+4}, v{CSL+5}", "v_cmp_gt_u32 vcc, 32, v0",
            f"v_add_f32 v5, v{CSL}, v{CSL+1}", f"v_add_f32 v6, v{CSL+4}, v{CSL+5}")
        for x, off in ((5, 0), (6, 4096)):
            d = CSL
            split3(a, x, d)
            a.e(f"v_bfi_b32 v{d+5}, s{sLOW}, v{d}, v{d+1}", f"v_cndmask_b32 v{d+4}, 0, v{d}, vcc", f"v_cndmask_b32 v{d+5}, 0, v{d+5}, vcc", f"v_cndmask_b32 v{d+6}, 0, v{d+1}, vcc", f"v_cndmask_b32 v{d+7}, 0, v{d+2}, vcc")
            if off == 0 or True:
                sc.lds(f"ds_write_b128 v7, {v(d+4,4)} offset:{off}", "cw")
            if off == 0: sc.wait_lg("cw")
        a.e(f"s_setprio {PG1}")
    def epilogue(p):
        nA = 3 if p else 4
        a.e(f"s_setprio {HI}", f"v_add_u32 v7, {L_CF + p*4096}, v{vL16}")
        for t in range(nA): sc.lds(f"ds_read_b128 {v(AF+4*t,4)}, v7 offset:{t*1024}", f"c{t}")
        for t in range(nA):
            sc.wait_lg(f"c{t}")
            a.e(f"{MF} {v(ACC+16*t,16)}, {v(AF+4*t,4)}, {v(BNM,4)}, {v(ACC+16*t,16)}")
        for t in range(nA):
            ac = ACC + 16 * t
            if p == 0: a.e(f"s_and_b32 s{sT1}, s{sJ}, 3", f"s_add_u32 s{sT1}, s{sT1}, {t}", f"s_lshl_b32 s{sT1}, s{sT1}, 10", f"s_add_u32 s{sT1}, s{sT1}, s{sH0}")
            else: a.e(f"s_and_b32 s{sT1}, s{sJ}, 3", f"s_cmp_le_u32 s{sT1}, {t}", f"s_cselect_b32 s{sT1}, 4096, 0", f"s_add_u32 s{sT1}, s{sT1}, s{sH0}", f"s_add_u32 s{sT1}, s{sT1}, {t*1024}")
            if t == 0: a.nop(8)
            for r in range(8): a.e(f"v_max_f32 v{ac+r}, 0, v{ac+r}")
            for r in range(8): a.e(f"v_mul_f32 v{ac+r}, v{ac+r}, v{ac+8+r}")
            for jj in range(4): a.e(f"v_cvt_pk_bf16_f32 v{ac+jj}, v{ac+2*jj}, v{ac+2*jj+1}")
            sc.vmem(f"buffer_store_dwordx4 {v(ac,4)}, v{vL16}, {RS}, s{sT1} offen sc1", "hst")
        a.e(f"s_setprio {PG1}")
    NK, NE = 28, 32
    RW, HD, JO = 4, 4, 16
    for kn in KNOB:
        if kn.startswith("rw"): RW = int(kn[2:])
        if kn.startswith("hd"): HD = int(kn[2:])
        if kn.startswith("jo"): JO = int(kn[2:])
    R2 = 8 if "r8" in KNOB else 4
    def slot_off(j): return ((j % R2) & 3) * 2048 + ((j % R2) >> 2) * 32768
    order = [7 * jj + jj + s_ for jj in range(4) for s_ in range(4)] + [7 * jj + t for jj in range(4) for t in range(7) if not (jj <= t < jj + 4)]
    assert sorted(order) == list(range(28))
    vWo, vWo2, vWA0, vWA1, vB2, vB3 = 5, 6, 9, 10, 11, 8
    HS = [16 + 8 * i for i in range(HD)]
    RH = HD
    GA, GACC = 240, 144
    def wo_addr():
        a.e(f"s_setprio {HI}")
        a.e("v_lshrrev_b32 v7, 3, v0", "v_lshlrev_b32 v7, 10, v7", f"v_lshrrev_b32 v{vWo2}, 4, v0", f"v_and_b32 v{vWo2}, 1, v{vWo2}", f"v_lshlrev_b32 v{vWo2}, 2, v{vWo2}",
            f"v_and_b32 v{vWo}, 7, v0", f"v_xor_b32 v{vWo}, v{vWo}, v{vWo2}", f"v_lshl_add_u32 v{vWo}, v{vWo}, 4, v7",
            f"s_lshl_b32 s{sT0}, s{sNB}, 7", f"v_add_u32 v{vWo}, s{sT0}, v{vWo}", f"v_add_u32 v{vWo2}, {8192-1024}, v{vWo}")
        a.e(f"s_lshl_b32 s{sLB}, s{sW}, 13", f"s_mul_i32 s{sGW}, s{sW}, {28*16*1024}", f"s_setprio {PG1}")
    def wd(j):
        if j >= NE or ("now2" in KNOB and j >= 8): return []
        it = [('s', f"s_add_u32 m0, s{sLB}, {slot_off(j)}")]
        if j < NK:
            it += [('s', f"s_add_u32 s{sT3}, s{sGW}, {order[j]*16384}")]
            r = R_D
        else:
            it += [('s', f"s_lshl_b32 s{sT3}, s{sW}, 17"), ('s', f"s_add_u32 s{sT3}, s{sT3}, {2*(j-NK)*16384}")]
            r = R_O
        it += [('v', lambda: sc.vmem(f"buffer_load_dwordx4 v{vWo}, {SR(r)}, s{sT3} offen lds", f"d{j}")),
               ('v', lambda: sc.vmem(f"buffer_load_dwordx4 v{vWo2}, {SR(r)}, s{sT3} offen offset:1024 lds", f"d{j}"))]
        return it
    def hd(j):
        if j >= NE or ("noh2" in KNOB and j >= RH): return []
        h = HS[j % RH]
        if j < NK:
            return [('s', f"s_add_u32 s{sT2}, s{sGB}, {order[j]*1024}"),
                    ('v', lambda: sc.vmem(f"buffer_load_dwordx4 {v(h,4)}, v{vL16}, {RS}, s{sT2} offen", f"h{j}")),
                    ('v', lambda: sc.vmem(f"buffer_load_dwordx4 {v(h+4,4)}, v{vB2r[0]}, {RS}, s{sT2} offen", f"h{j}"))]
        return [('s', f"s_lshl_b32 s{sT2}, s{sTB2}, 16"), ('s', f"s_lshl_b32 s{sT1}, s{sW}, 13"), ('s', f"s_add_u32 s{sT2}, s{sT2}, s{sT1}"), ('s', f"s_add_u32 s{sT2}, s{sT2}, {WS_O + 2*(j-NK)*1024}"),
                ('v', lambda: sc.vmem(f"buffer_load_dwordx4 {v(h,4)}, v{vL16}, {RS}, s{sT2} offen", f"h{j}")),
                ('v', lambda: sc.vmem(f"buffer_load_dwordx4 {v(h+4,4)}, v{vB3}, {RS}, s{sT2} offen", f"h{j}"))]
    vB2r = [244]
    hnext = [0]
    def hissue(upto):
        while hnext[0] < min(upto, NE):
            emit_items(a, hd(hnext[0])); hnext[0] += 1
    def flag_off(base):
        a.e(f"s_lshl_b32 s{sT0}, s{sTB}, 11", f"s_lshr_b32 s{sT1}, s{sW}, 1", f"s_lshl_b32 s{sT1}, s{sT1}, 10", f"s_add_u32 s{sT0}, s{sT0}, s{sT1}", f"s_and_b32 s{sT1}, s{sW}, 1", f"s_lshl_b32 s{sT1}, s{sT1}, 6",
            f"s_add_u32 s{sT0}, s{sT0}, s{sT1}", f"s_lshl_b32 s{sT1}, s{sJ}, 2", f"s_add_u32 s{sT0}, s{sT0}, s{sT1}", f"s_add_u32 s{sT0}, s{sT0}, {base}")
    emit_items(a, wreads(0, 0))
    pend = []
    for St in range(16):
        p = St // 8; nA = 3 if p else 4
        for kk in range(4):
            k = 4 * St + kk
            sc.wait_lg(f"k{k}")
            last = (kk == 3 and St % 8 == 7)
            q = []
            if kk == 3:
                lcheck(a, f"gs{St}", C_G, 4 * (St + 3), vCNT, lo=PG1)
                if not last: q += wreads(St + 1, 0)
                pend = wdma(St + 3) if St >= 1 else []
                if St == 14: pend = [x for jx in range(min(RW, 4)) for x in wd(jx)]
            else:
                q += wreads(St, kk + 1)
                if kk == 2: q.append(('v', lambda k=k: sc.lds(lread(C_G, vCNT), f"k{k+1}")))
                if kk == 0:
                    q = pend + q; pend = []
            post = (kk == 1)
            if St == 1 and kk == 1: q = [('s', f"s_mov_b32 s74, {WS_CS}")] + [('v', lambda x=x: sc.vmem(x, "csl")) for x in csl] + q
            mf = [f"{MF} {v(ACC+16*t,16)}, {v(AF+16*(k&1)+4*t,4)}, {v(XR+4*(k%32),4)}, {'0' if k % 32 == 0 else v(ACC+16*t,16)}" for t in range(nA)]
            for i in range(nA):
                a.e(mf[i])
                if i == 0 and post:
                    if St + 1 < 16: sc.wait_vm(f"w{St+1}")
                    lpost(a, C_G)
                    if St == 10:
                        flag_off(FL_H)
                        a.e(f"s_setprio {HI}")
                        post_flag8(a, sT0, 7); sc.vm.append("flag")
                        a.e(f"s_setprio {PG1}")
                n = (len(q) + (nA - i) - 1) // (nA - i)
                emit_items(a, q[:n]); q = q[n:]
            if St == 4 and kk == 1: cs_table()
            if St == 13 and kk == 2: wo_addr()
            if St == 14 and kk == 1:
                a.e(f"s_setprio {HI}", "v_and_b32 v13, 31, v0", "v_lshlrev_b32 v13, 2, v13", f"v_add_u32 v244, {112*1024}, v{vL16}", f"s_setprio {PG1}",
                    f"s_lshl_b32 s{sFO}, s{sTB2}, 3", f"s_add_u32 s{sFO}, s{sFO}, s{sNB}", f"s_lshl_b32 s{sFO}, s{sFO}, 7", f"s_add_u32 s{sFO}, s{sFO}, {FL_H}")
                a.e(f"s_mul_i32 s{sGB}, s{sTB2}, {2*112*1024}", f"s_mul_i32 s{sT0}, s{sW}, {28*1024}", f"s_add_u32 s{sGB}, s{sGB}, s{sT0}", f"s_add_u32 s{sGB}, s{sGB}, {WS_H}")
                sc.vmem(f"buffer_load_dword v245, v13, {RS}, s{sFO} offen sc1", "pha")
            if St == 15 and kk == 1:
                sc.wait_vm("pha")
                a.e(f"s_setprio {HI}")
                poll_check(a, "pha", 245, 13, f"s{sFO}")
                a.e(f"s_setprio {PG1}")
                tsn(a, "hp")
                hissue(RH)
            if kk == 2 and "notw" not in KNOB:
                if "map48" in KNOB: NSH, per = 4, [(R_D, 448, 7), (R_O, 128, 2)]
                else: NSH, per = 8, [(R_D, 224, 4), (R_O, 64, 1)]
                jobs = [(r, rows, i) for r, rows, n in per for i in range(n)]
                sts = [5, 9]
                for kn in KNOB:
                    if kn.startswith("tws"): sts = [int(x) for x in kn[3:].split("_")]
                if St in sts:
                    part = jobs[sts.index(St)::len(sts)]
                    for idx, (r, rows, i) in enumerate(part):
                        lab = f"g_tw{St}_{idx}"
                        a.e(f"s_cmp_lg_u32 s{sW}, {idx & 3}", f"s_cbranch_scc1 {lab}")
                        a.e(f"s_and_b32 s{sT0}, s{sTB2}, {NSH-1}", f"s_mul_i32 s{sT0}, s{sT0}, {rows*1024}", f"s_add_u32 s{sT0}, s{sT0}, {64*i*1024}",
                            f"s_lshl_b32 s{sT1}, s{sNB}, 7", f"s_add_u32 s{sT0}, s{sT0}, s{sT1}", f"s_setprio {HI}", "v_lshlrev_b32 v7, 10, v0", f"s_setprio {PG1}")
                        nl = min(64, rows - 64 * i)
                        if nl < 64: a.e(*EXL(nl))
                        a.e(f"buffer_load_dword v8, v7, {SR(r)}, s{sT0} offen")
                        if nl < 64: a.e("s_mov_b64 exec, -1")
                        a.label(lab)
        if St % 8 == 7:
            tsn(a, "fA" if p == 0 else "fB")
            if p == 0: emit_items(a, pend); pend = []
            if p == 1 and R2 == 8: lpost(a, C_G)
            epilogue(p)
            tsn(a, "eA" if p == 0 else "eB")
            if p == 0: emit_items(a, wreads(8, 0))
    a.e(f"s_setprio {HI}")
    T = 16 + 8 * HD
    a.e(f"v_mov_b32 v{vB2}, v244", f"v_add_u32 v{vB3}, 32768, v{vL16}")
    vB2r[0] = vB2
    a.e(f"v_and_b32 v{T}, 15, v0", f"v_lshrrev_b32 v{T+1}, 2, v{T}", f"v_lshrrev_b32 v{T+2}, 5, v0", f"v_lshlrev_b32 v{T+2}, 2, v{T+2}", f"v_add_u32 v{T+1}, v{T+1}, v{T+2}",
        f"v_lshlrev_b32 v{T+1}, 7, v{T+1}", f"v_lshrrev_b32 v{T+2}, 3, v{T}", f"v_lshlrev_b32 v{T+2}, 6, v{T+2}", f"v_add_u32 v{T+1}, v{T+1}, v{T+2}",
        f"v_lshrrev_b32 v{T+2}, 4, v0", f"v_and_b32 v{T+2}, 1, v{T+2}", f"v_lshlrev_b32 v{T+2}, 5, v{T+2}", f"v_add_u32 v{T+1}, v{T+1}, v{T+2}",
        f"v_and_b32 v{T+2}, 3, v0", f"v_lshlrev_b32 v{T+2}, 3, v{T+2}", f"v_add_u32 v12, v{T+1}, v{T+2}")
    a.e(f"v_add_u32 v{vWA0}, s{sLB}, v12", f"v_xor_b32 v{vWA1}, 64, v{vWA0}")
    a.e(f"s_setprio {PG2}")
    def areg(j): return GA + 8 * (j & 1)
    def dreads(j):
        if j >= NE: return []
        it = []
        for q, ad in enumerate((vWA0, vWA1)):
            r = areg(j) + 4 * q
            it.append(('v', lambda r=r, ad=ad: sc.lds(f"ds_read_b64_tr_b16 {v(r,2)}, v{ad} offset:{slot_off(j)}", f"k{j}")))
            it.append(('v', lambda r=r, ad=ad: sc.lds(f"ds_read_b64_tr_b16 {v(r+2,2)}, v{ad} offset:{slot_off(j)+1024}", f"k{j}")))
        return it
    wnext = [min(RW, 4)]
    def wissue(upto):
        while wnext[0] < min(upto, NE):
            emit_items(a, wd(wnext[0])); wnext[0] += 1
    sc.lg = []
    sc.wait_vm("d0")
    emit_items(a, dreads(0))
    XRS = 112
    JB = 16 - RH - 2
    JP = NK - RH - 2
    for j in range(NE):
        tsn(a, f"f{j}")
        if j == JO:
            lwait(a, "gp0", C_P0, 4, vCNT, lo=PG2)
            tsn(a, "gp0")
            a.e(f"s_setprio {HI}")
            attn_red(a, sc, "ro", 0, L_P0, 64, scale=15)
            lpost(a, C_G)
            a.e(f"s_mov_b32 s{sWO}, s{sT3}", f"s_setprio {PG2}")
            tsn(a, "o0")
        q = []
        if j + 1 < NE:
            q += [('v', lambda j=j: sc.wait_vm(f"d{j+1}"))] + dreads(j + 1)
        sc.wait_lg(f"k{j}")
        sc.wait_vm(f"h{j}")
        h = HS[j % RH]
        mf = []
        for nt in range(2):
            for tt in range(2):
                ac = GACC + (nt * 2 + tt) * 16
                mf.append(f"{MF} {v(ac,16)}, {v(areg(j)+4*nt,4)}, {v(h+4*tt,4)}, {'0' if j == 0 else v(ac,16)}")
        for i in range(4):
            a.e(mf[i])
            if i == 0 and j == 0:
                flag_off(FL_HB)
                a.e(f"s_setprio {HI}")
                post_flag8(a, sT0, 14); sc.vm.append("flag")
                a.e(f"s_setprio {PG2}")
                tsn(a, "hfl")
            if i < 2:
                n = (len(q) + (2 - i) - 1) // (2 - i)
                emit_items(a, q[:n]); q = q[n:]
            if i == 1:
                if R2 == 8 and j == 0:
                    lwait(a, "gs16", C_G, 4 * 19, vCNT, lo=PG2)
                wissue(min(j + R2, j + RW) + 1)
            if i == 3:
                if j == JB:
                    a.e(f"s_add_u32 s{sC1}, s{sFO}, {FL_HB - FL_H}")
                    sc.vmem(f"buffer_load_dword v14, v13, {RS}, s{sC1} offen sc1", "phb")
                if j + RH == 16:
                    sc.wait_vm("phb")
                    a.e(f"s_setprio {HI}")
                    poll_check(a, "phb", 14, 13, f"s{sC1}")
                    a.e(f"s_setprio {PG2}")
                if j == JO + 1:
                    a.e(f"s_waitcnt vmcnt({sc.peek('ost')})", f"s_setprio {HI}")
                    post_flag8(a, sWO, 14); sc.vm.append("flag")
                    a.e(f"s_setprio {PG2}")
                    a.e(f"s_add_u32 s{sFO}, s{sFO}, {FL_O - FL_H}", f"s_add_u32 s{sWO}, s{sFO}, 32768")
                if j == JO + 2:
                    lwait(a, "gs19", C_G, 4 * (19 + (R2 == 8)), vCNT, lo=PG2)
                    for qq in range(4):
                        a.e(f"s_lshl_b32 s{sT0}, s{sW}, 13", f"s_add_u32 m0, s{sT0}, {L_P0 + qq*2048}", f"s_lshl_b32 s{sT3}, s{sW}, 17", f"s_add_u32 s{sT3}, s{sT3}, {(2*qq+1)*16384}")
                        sc.vmem(f"buffer_load_dwordx4 v{vWo}, {SR(R_O)}, s{sT3} offen lds", "wo1")
                        sc.vmem(f"buffer_load_dwordx4 v{vWo2}, {SR(R_O)}, s{sT3} offen offset:1024 lds", "wo1")
                if j == JP: sc.vmem(f"buffer_load_dword v14, v13, {RS}, s{sFO} offen sc1", "po0")
                if j + RH == NK:
                    sc.wait_vm("po0")
                    a.e(f"s_setprio {HI}")
                    poll_check(a, "po0", 14, 13, f"s{sFO}")
                    a.e(f"s_setprio {PG2}")
                hissue(j + RH + 1)
    assert JO + 2 < JP
    tsn(a, "f2")
    lpost(a, C_G)
    a.e(f"s_setprio {HI}")
    a.e(f"s_lshl_b32 s{sT0}, s{sW}, 14", f"v_add_u32 v7, s{sT0}, v{vL16}")
    a.e("v_and_b32 v9, 31, v0", "v_lshlrev_b32 v10, 4, v9", "v_lshlrev_b32 v9, 10, v9", "v_lshrrev_b32 v8, 5, v0", "v_lshlrev_b32 v8, 3, v8", "v_add_u32 v9, v9, v8")
    a.e(f"s_lshl_b32 s{sT0}, s{sTB2}, 16", f"s_and_b32 s{sT1}, s{sW}, 1", f"s_lshl_b32 s{sT1}, s{sT1}, 15", f"s_add_u32 s{sT0}, s{sT0}, s{sT1}", f"s_lshr_b32 s{sT2}, s{sT0}, 6", f"s_add_u32 s{sT2}, s{sT2}, {WS_ST}",
        f"s_lshl_b32 s{sT1}, s{sNB}, 7", f"s_add_u32 s{sT0}, s{sT0}, s{sT1}", f"s_lshr_b32 s{sT1}, s{sW}, 1", f"s_lshl_b32 s{sT1}, s{sT1}, 6",
        f"s_add_u32 s{sGW}, s{sT0}, s{sT1}", f"s_mov_b32 s{sC1}, s{sT2}")
    for q in range(4):
        sc.vmem(f"buffer_load_dwordx2 {v(XRS+2*q,2)}, v9, {SR(R_X)}, s{sGW} offen offset:{q*16}", "xres")
    st2 = f"buffer_load_dwordx4 {v(XRS+8,4)}, v10, {RS}, s{sC1} offen sc1"
    sc.vmem(st2, "xres")
    lwait(a, "gs20", C_G, 4 * (20 + (R2 == 8)), vCNT)
    for t in range(4):
        for q in range(4):
            a.e(f"ds_write_b128 v7, {v(GACC+16*t+4*q,4)} offset:{t*4096+q*1024}")
    a.e(f"s_waitcnt vmcnt({sc.peek('wo1')})", "s_waitcnt lgkmcnt(0)")
    lpost(a, C_G)
    lwait(a, "gs21", C_G, 4 * (21 + (R2 == 8)), vCNT)
    a.e(f"s_lshl_b32 s{sT1}, s{sW}, 12", f"v_add_u32 v7, s{sT1}, v{vL16}")
    RB = 124 + 4
    for wp in range(4):
        for q in range(4):
            a.e(f"ds_read_b128 {v(RB+16*wp+4*q,4)}, v7 offset:{wp*16384+q*1024}")
        if wp == 2: a.e("s_waitcnt lgkmcnt(4)")
    B0, AFt = 16, 192
    a.e(f"s_lshr_b32 s{sT1}, s{sW}, 1", f"s_lshl_b32 s{sT1}, s{sT1}, 6", f"v_xor_b32 v9, s{sT1}, v12", f"v_add_u32 v9, {L_P0}, v9")
    a.e("s_waitcnt lgkmcnt(0)")
    for j in range(16):
        b = AFt + 4 * j
        a.e(f"ds_read_b64_tr_b16 {v(b,2)}, v9 offset:{j*2048}", f"ds_read_b64_tr_b16 {v(b+2,2)}, v9 offset:{j*2048+1024}")
        if j % 4 == 3 and j < 15: a.e("s_waitcnt lgkmcnt(7)")
    for r in range(16): a.e(f"v_add_f32 v{RB+r}, v{RB+r}, v{RB+16+r}", f"v_add_f32 v{RB+32+r}, v{RB+32+r}, v{RB+48+r}")
    for r in range(16): a.e(f"v_add_f32 v{RB+r}, v{RB+r}, v{RB+32+r}")
    sc.wait_vm("xres")
    tag_check(a, "gst2", [st2], [XRS + 9, XRS + 11], 7)
    a.e(f"v_mul_f32 v10, v{XRS+10}, v{XRS+10}")
    for q in range(4):
        for d in range(2):
            r = XRS + 2 * q + d
            a.e(f"v_lshlrev_b32 v7, 16, v{r}", f"v_and_b32 v8, s{sMASK}, v{r}",
                f"v_fma_f32 v{RB+4*q+2*d}, v{RB+4*q+2*d}, v10, v7", f"v_fma_f32 v{RB+4*q+2*d+1}, v{RB+4*q+2*d+1}, v10, v8")
    tsn(a, "r2")
    a.e(f"s_lshl_b32 s{sGB}, s{sTB2}, 16", f"s_and_b32 s{sT1}, s{sW}, 1", f"s_lshl_b32 s{sT1}, s{sT1}, 15", f"s_add_u32 s{sGB}, s{sGB}, s{sT1}", f"s_add_u32 s{sGB}, s{sGB}, {WS_O}")
    a.e("v_and_b32 v7, 31, v0", "v_lshlrev_b32 v7, 10, v7", "v_lshrrev_b32 v8, 5, v0", "v_lshlrev_b32 v8, 4, v8", "v_add_u32 v7, v7, v8")
    heads1 = [2 * j + 1 for j in range(16)]
    a.e(f"buffer_load_dword v14, v13, {RS}, s{sWO} offen sc1")
    a.e("s_waitcnt vmcnt(0) lgkmcnt(0)")
    tsn(a, "g0")
    poll_check(a, "po1", 14, 13, f"s{sWO}")
    tsn(a, "po1")
    for i, h in enumerate(heads1):
        if i % 2 == 0: a.e(f"s_add_u32 s{sT0}, s{sGB}, {(h//4)*4096}")
        a.e(f"buffer_load_dwordx4 {v(B0+4*i,4)}, v{vL16}, {RS}, s{sT0} offen offset:{(h%4)*1024}")
    for j in range(16):
        a.e(f"s_waitcnt vmcnt({15 - j})")
        a.e(f"{MF} {v(RB,16)}, {v(AFt+4*j,4)}, {v(B0+4*j,4)}, {v(RB,16)}")
    tsn(a, "g1")
    a.nop(14)
    PK = 144
    for q in range(4):
        for d in range(2):
            a.e(f"v_cvt_pk_bf16_f32 v{PK+2*q+d}, v{RB+4*q+2*d}, v{RB+4*q+2*d+1}")
    a.nop(1)
    for p in range(2):
        for d in range(2):
            a.e(f"v_permlane32_swap_b32 v{PK+4*p+d}, v{PK+4*p+2+d}")
    a.nop(2)
    for p in range(2):
        a.e(f"buffer_store_dwordx4 {v(PK+4*p,4)}, v7, {SR(R_OUT)}, s{sGW} offen offset:{p*32}")
    ts_dump(a)
    a.e("s_endpgm")

def gen_main(a):
    name = NAME + "_kernel"
    kernel_header(a, name)
    a.e("s_cmp_ge_u32 s2, 256", "s_cbranch_scc1 kend")
    ts(a, 0, True); ts(a, 1)
    prologue(a)
    role_a(a)
    role_g(a)
    emit_ool(a)
    a.label("kend")
    a.e("s_endpgm")
    return name

def build(outpath):
    a = Asm()
    name = gen_main(a)
    body = a.text()
    probs = check_text(body)
    for p in probs: print("HAZARD:", p, file=sys.stderr)
    out = HEADER + f"; @launch grid=(256,1,1) block=(512,1,1) lds={LDS}\n" + '.amdgcn_target "amdgcn-amd-amdhsa--gfx950"\n.text\n' + body + kernel_desc(name, 256)
    open(outpath, "w").write(out)

if __name__ == "__main__":
    if len(sys.argv) > 1 and sys.argv[1] == "instr":
        gen.INSTR = True
        for k in sys.argv[3:]: KNOB.add(k)
        build(sys.argv[2])
    else:
        for k in sys.argv[2:]: KNOB.add(k)
        build(sys.argv[1])
```

```python
import sys
import gen
from gen import Asm, v, s, kernel_header, kernel_desc, f2u, check_text, HEADER, QSCALE, NAME
from gen import WS_O, WS_H, WS_SIZE
WS_KF, WS_VF = 0x40000, 0x50000
from gen2 import Sched, MF, KNOB
MF16 = "v_mfma_f32_16x16x32_bf16"

FL_KV = 0
FL_K2 = 0x2000
FL_H = 0x80000
FL_HB = 0x88000
FL_O = 0x90000
NLOC = 0x14000
FL_KR = 0xB0000
WS_O1 = 16 << 20
FL_FLAT = 0xA0000
WS_ST = 0x18000
WS_CS = 0x20000
WS_TS = 24 << 20
SPIN = 200000

R_X, R_WQ, R_WK, R_WV, R_GA, R_GB, R_WS, R_D, R_O, R_OUT, R_C = 8, 12, 16, 20, 24, 28, 32, 36, 40, 44, 48
RS = f"s[{R_WS}:{R_WS+3}]"
def SR(r): return f"s[{r}:{r+3}]"
sW, sTB, sJ, sTB2, sNB, sT0, sT1, sT2, sT3 = 52, 53, 54, 55, 56, 57, 58, 59, 60
sNON, sCNT, sKQ, sMASK, sONES, sTOK = 61, 62, 63, 64, 65, 4
sKT = 5
sXS, sMX, sWO, sH0, sGW, sGB, sLB, sFO, sMW = 66, 67, 68, 69, 70, 71, 72, 73, 6
sROT, sXC, sWR = 7, 70, 71
sK0, sV0, sVM, sKc, sVc, sCG, sRB = 66, 67, 68, 70, 71, 72, 73
sC0, sC1 = 74, 76

L_W = 0
L_F = 16384
L_WQ = 49152
L_X = 81920
PSZ = 16 * 2304
L_P0 = 65536
L_P1 = L_P0 + PSZ
L_Q = L_P1 + PSZ
L_XN = L_Q + 8192
L_CS = L_XN + 8192
L_CP = L_CS + 1024
L_FL = L_CP + 512
LDS = L_FL + 256
C_G, C_Q, C_KV, C_P0, C_A, C_VS, C_XN, W_NON, C_RDY, C_KS = 0, 16, 32, 48, 64, 80, 96, 112, 120, 128
assert L_X + 4 * 12288 <= L_Q and LDS <= 163840 and L_P0 + 2 * PSZ == L_Q

vL16, vFL, vONE, vNON = 1, 2, 3, 4
XRW, SA, NM_ = 176, 180, 188
RS_ = NM_ + 2
vX = 5
vXB = 9
vQA = 13
vCNT = 14
XR, ACC, AF = 16, 144, 208
GNM, GRQ = 240, 242
BNM = 240
sLOW = 79
GONE = 244
GST = 248
Q0, Q1, KF, VF, S, P, O = 8, 24, 40, 104, 136, 168, 184
NT = 128

NTS = 11
TS_G = {"b1": 2, "q": 3, "b2": 4, "fB": 5, "f2": 6, "g0": 7, "po1": 8}
TS_A = {"b1": 2, "kv": 3, "pol": 4, "b2": 5, "t64": 6, "att1": 7, "m8": 8}
TS_G2 = {"b2": 2, "fA": 3, "eA": 4, "fB": 5, "hfl": 6, "o0": 7, "hp": 8}
TS_A2 = {"b2": 2, "t8": 3, "t32": 4, "t64": 5, "t96": 6, "t120": 7, "att1": 8}
TS_G3 = {"karg": 2, "iss": 3, "xr": 4, "a2": 5, "b1": 6, "u2": 7, "u6": 8}
TS_A3 = {"karg": 2, "iss": 3, "xr": 4, "a2": 5, "b1": 6, "kvm": 7, "kv": 8}
TS_G4 = {"f2": 2, "r2": 3, "wo": 4, "g0": 5, "po1": 6, "g1": 7}
TS_G5 = {"karg": 2, "pre": 3, "post": 4, "gwq": 5, "gx0": 6, "iss": 7, "b1": 8}
TS_A5 = {"karg": 2, "ax": 3, "ak": 4, "av": 5, "post": 6, "iss": 7, "xr": 8}
TS_A6 = {"a2": 2, "b1": 3, "kvm": 4, "kv": 5, "pw0": 3, "pw1": 4, "pw2": 5, "pol": 6, "b2": 7, "t8": 8}
TS_G6 = {"b1": 2, "u2": 3, "u4": 4, "u6": 5, "u8": 6, "q": 7, "b2": 8}
ROLE = ["G"]
def tsn(a, name):
    if "tsmin" in KNOB: return
    return tsn_(a, name)
def tsn_(a, name):
    if not gen.INSTR: return
    for kn in KNOB:
        if kn.startswith("tsk"):
            b0, st = [int(x) for x in kn[3:].split("_")]
            m = {f"t{b0 + st*i}": 2 + i for i in range(7)} if ROLE[0] == "A" else {"eB": 2, "hp": 3, "f4": 4, "f8": 5, "f16": 6, "o0": 7, "f24": 8}
            if name in m: ts(a, m[name])
            return
    sel = "2" if "ts2" in KNOB else ("3" if "ts3" in KNOB else ("4" if "ts4" in KNOB else ("5" if "ts5" in KNOB else ("6" if "ts6" in KNOB else ""))))
    m = globals().get(f"TS_{ROLE[0]}{sel}", globals()[f"TS_{ROLE[0]}"])
    if name in m: ts(a, m[name])
def ts(a, i, real=False):
    if not gen.INSTR: return
    a.e(f"s_memrealtime s[{80+2*i}:{81+2*i}]" if real else f"s_memtime s[{80+2*i}:{81+2*i}]")
def ts_dump(a):
    if not gen.INSTR: return
    ts(a, 9); ts(a, 10, True)
    a.e("s_waitcnt lgkmcnt(0)")
    a.e(f"s_lshl_b32 s78, s2, 3", f"s_add_u32 s78, s78, s{sW}", "s_lshl_b32 s78, s78, 6", f"s_add_u32 s78, s78, {WS_TS}")
    a.e("s_mov_b64 exec, 1", "v_mov_b32 v2, 0")
    for i in range(NTS):
        a.e(f"v_mov_b32 v3, s{80+2*i}", f"buffer_store_dword v3, v2, {RS}, s78 offen offset:{4*i}", "s_nop 1")
    a.e("s_mov_b64 exec, -1")

OOL = []
def emit_ool(a):
    for f in OOL: f()
    OOL.clear()

def nrep():
    for kn in KNOB:
        if kn.startswith("rep"): return int(kn[3:])
    return 32
KVS = lambda: " sc1" if "kvsc1" in KNOB else ""
def lslp():
    for kn in KNOB:
        if kn.startswith("lsl"): return int(kn[3:])
    return 2
def pgap():
    for kn in KNOB:
        if kn.startswith("gap"): return int(kn[3:])
    return 4
def slp():
    for kn in KNOB:
        if kn.startswith("slp"): return int(kn[3:])
    return 4
def poll_check(a, name, vP, vAddr, sOff, imm=0, n=1):
    ld = "buffer_load_dword" if n == 1 else f"buffer_load_dwordx{n}"
    def cmp():
        if n == 1: a.e(f"v_cmp_ne_u32 vcc, s{sNON}, v{vP}")
        else:
            for r in range(n): a.e(f"v_xor_b32 v{vP+r}, s{sNON}, v{vP+r}")
            for r in range(1, n): a.e(f"v_or_b32 v{vP}, v{vP}, v{vP+r}")
            a.e(f"v_cmp_ne_u32 vcc, 0, v{vP}")
    cmp()
    a.e(f"s_cbranch_vccnz {name}_spin")
    a.label(f"{name}_ok")
    def ool():
        a.label(f"{name}_spin")
        a.e(f"s_mov_b32 s{sCNT}, {SPIN}")
        a.label(f"{name}_loop")
        a.e(f"s_sleep {slp()}", f"{ld} {v(vP,n)}, v{vAddr}, {RS}, {sOff} offen offset:{imm} sc1", "s_waitcnt vmcnt(0)")
        cmp()
        a.e(f"s_cbranch_vccz {name}_ok", f"s_sub_u32 s{sCNT}, s{sCNT}, 1", f"s_cmp_lg_u32 s{sCNT}, 0", f"s_cbranch_scc1 {name}_loop", f"s_branch {name}_ok")
    OOL.append(ool)

def spoll(a, name, blocks, sOffs, pair):
    a.e(f"s_mov_b32 s{pair}, s{sNON}", f"s_mov_b32 s{pair+1}, s{sNON}", f"s_mov_b32 s{sCNT}, {SPIN}")
    a.label(f"{name}_l")
    for b, o in zip(blocks, sOffs): a.e(f"s_load_dwordx16 s[{b}:{b+15}], s[{R_WS}:{R_WS+1}], s{o} glc")
    a.e("s_waitcnt lgkmcnt(0)")
    pairs = [b + 2 * i for b in blocks for i in range(8)]
    for p in pairs: a.e(f"s_xor_b64 s[{p}:{p+1}], s[{p}:{p+1}], s[{pair}:{pair+1}]")
    for p in pairs[1:]: a.e(f"s_or_b64 s[{pairs[0]}:{pairs[0]+1}], s[{pairs[0]}:{pairs[0]+1}], s[{p}:{p+1}]")
    a.e(f"s_cbranch_scc0 {name}_d", "s_sleep 1", f"s_sub_u32 s{sCNT}, s{sCNT}, 1", f"s_cmp_lg_u32 s{sCNT}, 0", f"s_cbranch_scc1 {name}_l")
    a.label(f"{name}_d")

def tag_check(a, name, loads, tags, vt):
    def cmp():
        a.e(f"v_xor_b32 v{vt}, s{sNON}, v{tags[0]}")
        for r in tags[1:]: a.e(f"v_xor_b32 v{r}, s{sNON}, v{r}", f"v_or_b32 v{vt}, v{vt}, v{r}")
        a.e(f"v_cmp_ne_u32 vcc, 0, v{vt}")
    cmp()
    a.e(f"s_cbranch_vccnz {name}_spin")
    a.label(f"{name}_ok")
    def ool():
        a.label(f"{name}_spin")
        a.e(f"s_mov_b32 s{sCNT}, {SPIN}")
        a.label(f"{name}_loop")
        a.e("s_sleep 4")
        for x in loads: a.e(x)
        a.e("s_waitcnt vmcnt(0)")
        cmp()
        a.e(f"s_cbranch_vccz {name}_ok", f"s_sub_u32 s{sCNT}, s{sCNT}, 1", f"s_cmp_lg_u32 s{sCNT}, 0", f"s_cbranch_scc1 {name}_loop", f"s_branch {name}_ok")
    OOL.append(ool)

def lpost(a, off):
    a.e("s_mov_b64 exec, 1", f"ds_add_u32 v{vFL}, v{vONE} offset:{off}", "s_mov_b64 exec, -1")
def lread(off, vt): return f"ds_read_b32 v{vt}, v{vFL} offset:{off}"
def lcheck(a, name, off, target, vt, lo=None, hi=2):
    if lo is not None: a.e(f"s_setprio {hi}")
    a.e(f"v_cmp_gt_u32 vcc, {target}, v{vt}")
    if lo is not None: a.e(f"s_setprio {lo}")
    a.e(f"s_cbranch_vccnz {name}_spin")
    a.label(f"{name}_ok")
    def ool():
        a.label(f"{name}_spin")
        a.e(f"s_mov_b32 s{sCNT}, {SPIN*8}")
        a.label(f"{name}_loop")
        a.e(f"s_sleep {lslp()}", lread(off, vt), "s_waitcnt lgkmcnt(0)")
        if lo is not None: a.e(f"s_setprio {hi}")
        a.e(f"v_cmp_gt_u32 vcc, {target}, v{vt}")
        if lo is not None: a.e(f"s_setprio {lo}")
        a.e(f"s_cbranch_vccz {name}_ok", f"s_sub_u32 s{sCNT}, s{sCNT}, 1", f"s_cmp_lg_u32 s{sCNT}, 0", f"s_cbranch_scc1 {name}_loop", f"s_branch {name}_ok")
    OOL.append(ool)
def lwait(a, name, off, target, vt, lo=None):
    a.e(lread(off, vt), "s_waitcnt lgkmcnt(0)")
    lcheck(a, name, off, target, vt, lo)

def post_flag(a, sOff, imm=0):
    a.e("s_mov_b64 exec, 1", f"buffer_store_dword v{vNON}, off, {RS}, s{sOff} offset:{imm} sc1", "s_mov_b64 exec, -1")

def EXL(n):
    m = (1 << n) - 1
    return [f"s_mov_b32 exec_lo, {m & 0xffffffff:#x}", f"s_mov_b32 exec_hi, {m >> 32:#x}"]

def post_flag8(a, sOff, vt):
    a.e(f"v_lshlrev_b32 v{vt}, 7, v0", "s_mov_b64 exec, 0xff", f"buffer_store_dword v{vNON}, v{vt}, {RS}, s{sOff} offen sc1", "s_mov_b64 exec, -1")

class Sched2(Sched):
    def peek(self, tag):
        idx = max([i for i, t in enumerate(self.vm) if t == tag], default=-1)
        return 63 if idx < 0 else len(self.vm) - 1 - idx

def srd_fix(a, d, nbytes):
    a.e(f"s_and_b32 s{d+1}, s{d+1}, 0xffff", f"s_mov_b32 s{d+2}, {nbytes}", f"s_mov_b32 s{d+3}, 0x20000")

def ids(a):
    if "map84" in KNOB:
        a.e(f"s_lshr_b32 s{sTB}, s{sT0}, 2", f"s_lshl_b32 s{sTB}, s{sTB}, 3", f"s_and_b32 s{sT2}, s{sT1}, 7", f"s_add_u32 s{sTB}, s{sTB}, s{sT2}", f"s_and_b32 s{sJ}, s{sT0}, 3", f"s_lshl_b32 s{sJ}, s{sJ}, 2",
            f"s_lshr_b32 s{sT3}, s{sT1}, 3", f"s_add_u32 s{sJ}, s{sJ}, s{sT3}", f"s_lshl_b32 s{sT3}, s{sT3}, 1", f"s_add_u32 s{sROT}, s{sT3}, s{sT2}")
    else:
        a.e(f"s_lshr_b32 s{sTB}, s{sT0}, 1", f"s_lshl_b32 s{sTB}, s{sTB}, 2", f"s_and_b32 s{sT2}, s{sT1}, 3", f"s_add_u32 s{sTB}, s{sTB}, s{sT2}", f"s_and_b32 s{sJ}, s{sT0}, 1", f"s_lshl_b32 s{sJ}, s{sJ}, 3",
            f"s_lshr_b32 s{sT3}, s{sT1}, 2", f"s_add_u32 s{sJ}, s{sJ}, s{sT3}", f"s_lshl_b32 s{sT2}, s{sT2}, 1", f"s_add_u32 s{sROT}, s{sT3}, s{sT2}")
    if "norot" in KNOB: a.e(f"s_mov_b32 s{sROT}, 0")
    else: a.e(f"s_and_b32 s{sROT}, s{sROT}, 7")

def prologue(a):
    if "nopf" not in KNOB:
        a.e("s_getpc_b64 s[78:79]")
        a.label("pc0")
        a.e("v_and_b32 v250, 63, v0", "s_lshr_b32 s3, s2, 3", "s_lshl_b32 s3, s3, 5", "v_add_u32 v251, s3, v250", "v_cmp_gt_u32 vcc, 32, v250", "s_nop 1", "v_cndmask_b32 v251, v251, v250, vcc",
            "v_cmp_gt_u32 vcc, 64, v0", "v_lshlrev_b32 v251, 7, v251", "v_min_u32 v251, kend-pc0-4, v251", "s_mov_b64 exec, vcc", "global_load_dword v250, v251, s[78:79]", "s_mov_b64 exec, -1")
    for r, off in ((R_X, 0), (R_WK, 16), (R_WV, 24), (R_WQ, 8), (R_WS, 88), (R_GA, 48), (R_GB, 56), (R_D, 64), (R_O, 32), (R_OUT, 72)):
        a.e(f"s_load_dwordx2 s[{r}:{r+1}], s[0:1], {off}")
    a.e("v_lshrrev_b32 v20, 6, v0", "v_and_b32 v0, 63, v0")
    a.e(f"s_and_b32 s{sT0}, s2, 7", f"s_lshr_b32 s{sT1}, s2, 3", f"v_readfirstlane_b32 s{sW}, v20", f"v_lshlrev_b32 v{vL16}, 4, v0")
    ids(a)
    a.e(f"s_and_b32 s{sKQ}, s{sW}, 3", f"v_mov_b32 v{vFL}, {L_FL}", f"v_mov_b32 v{vONE}, 1")
    a.e(f"s_cmp_lt_u32 s{sW}, 4", "s_cbranch_scc1 role_g")

def karg_wait(a, pfx, regs):
    if "notouch" in KNOB:
        a.e("s_waitcnt lgkmcnt(0)"); return
    a.e("v_mov_b32 v249, 0", "s_mov_b64 exec, 1")
    for w in range(3): a.e(f"s_cmp_eq_u32 s{sKQ}, {w}", f"s_cbranch_scc1 {pfx}{w}")
    for w in (3, 2, 1, 0):
        a.label(f"{pfx}{w}")
        a.e("s_waitcnt lgkmcnt(0)", f"global_load_dword v248, v249, s[{regs[w]}:{regs[w]+1}]")
        if w > 0: a.e(f"s_branch {pfx}c")
    a.label(f"{pfx}c")
    a.e("s_mov_b64 exec, -1")

SRDSZ = {R_X: 2048 * 1024, R_WQ: 512 * 1024, R_WK: 16384, R_WV: 16384, R_GA: 512 * 3584, R_GB: 512 * 3584, R_WS: WS_SIZE, R_D: 1792 * 1024, R_O: 512 * 1024, R_OUT: 2048 * 1024}
def common_rest(a, done, skip=()):
    for r, n in SRDSZ.items():
        if r not in done and r not in skip: srd_fix(a, r, n)
    if "map48" in KNOB:
        a.e(f"s_and_b32 s{sT0}, s2, 7", f"s_lshr_b32 s{sT1}, s2, 3", f"s_lshl_b32 s{sTB2}, s{sT0}, 2", f"s_and_b32 s{sT2}, s{sT1}, 3", f"s_add_u32 s{sTB2}, s{sTB2}, s{sT2}", f"s_lshr_b32 s{sNB}, s2, 5")
    else:
        a.e(f"s_and_b32 s{sT0}, s2, 7", f"s_lshr_b32 s{sT1}, s2, 3", f"s_lshr_b32 s{sTB2}, s{sT0}, 1", f"s_lshl_b32 s{sTB2}, s{sTB2}, 3", f"s_and_b32 s{sT2}, s{sT1}, 7", f"s_add_u32 s{sTB2}, s{sTB2}, s{sT2}",
            f"s_and_b32 s{sNB}, s{sT0}, 1", f"s_lshl_b32 s{sNB}, s{sNB}, 2", f"s_lshr_b32 s{sT2}, s{sT1}, 3", f"s_add_u32 s{sNB}, s{sNB}, s{sT2}")
    a.e(f"s_mov_b32 s{sMASK}, 0xffff0000", f"s_mov_b32 s{sONES}, 0x3f803f80", f"s_mov_b32 s{sLOW}, 0xffff")
    a.e(f"s_lshl_b32 s{sKT}, s{sTB}, 2", f"s_lshr_b32 s{sT1}, s{sJ}, 2", f"s_add_u32 s{sKT}, s{sKT}, s{sT1}")

def kv_rows(a, sc):
    def chain(XW, SA_, NM, t4):
        s0, s1, qa, qb, tm, nb = SA_, SA_ + 1, SA_ + 2, SA_ + 3, SA_ + 4, SA_ + 5
        R = NM + 2
        L = [f"v_mov_b32 v{s0}, 0", f"v_mov_b32 v{s1}, 0", f"v_mov_b32 v{qa}, 0", f"v_mov_b32 v{qb}, 0"]
        for i in range(4):
            L += [f"v_dot2_f32_bf16 v{SA_+(i&1)}, v{XW+i}, s{sONES}, v{SA_+(i&1)}", f"v_dot2_f32_bf16 v{SA_+2+(i&1)}, v{XW+i}, v{XW+i}, v{SA_+2+(i&1)}"]
        L += ["N2", f"v_add_f32 v{s0}, v{s0}, v{s1}", f"v_add_f32 v{qa}, v{qa}, v{qb}", "N1", f"v_permlane32_swap_b32 v{s0}, v{qa}", "N0", f"v_add_f32 v{s0}, v{s0}, v{qa}",
              f"v_mov_b32 v{tm}, v{s0}", "N1", f"v_permlane16_swap_b32 v{s0}, v{tm}", "N0", f"v_add_f32 v{s0}, v{s0}, v{tm}", "N1"]
        for sh in (8, 4, 2, 1): L += [f"v_add_f32_dpp v{s0}, v{s0}, v{s0} row_ror:{sh} row_mask:0xf bank_mask:0xf", "N1"]
        L += [f"v_mov_b32 v{qa}, v{s0}", "N1", f"v_permlane32_swap_b32 v{s0}, v{qa}", "N0",
              f"v_mul_f32 v{s0}, {f2u(1/512):#x}, v{s0}", f"v_mul_f32 v{qa}, {f2u(1/512):#x}, v{qa}",
              f"v_fma_f32 v{qa}, -v{s0}, v{s0}, v{qa}", f"v_max_f32 v{qa}, 0, v{qa}",
              f"v_add_f32 v{qa}, {f2u(1e-5):#x}, v{qa}", f"v_rsq_f32 v{R}, v{qa}", f"v_sub_f32 v{NM}, 0, v{s0}", "N0", f"v_mul_f32 v{nb}, v{NM}, v{R}", "N0"]
        for i in range(4):
            lo, hi = SA_ + 2 * (i & 1), SA_ + 2 * (i & 1) + 1
            L += [f"v_lshlrev_b32 v{lo}, 16, v{XW+i}", f"v_and_b32 v{hi}, s{sMASK}, v{XW+i}",
                  f"v_fma_f32 v{lo}, v{lo}, v{R}, v{nb}", f"v_fma_f32 v{hi}, v{hi}, v{R}, v{nb}", f"v_cvt_pk_bf16_f32 v{XW+i}, v{lo}, v{hi}"]
        return L
    a.e("v_lshrrev_b32 v22, 1, v0", "v_and_b32 v22, 7, v22", f"v_xor_b32 v22, s{sKQ}, v22", "v_lshlrev_b32 v22, 4, v22", "v_lshl_add_u32 v22, v0, 7, v22", f"v_add_u32 v22, {L_XN}, v22", "v_xor_b32 v23, 64, v22")
    a.e(f"s_lshl_b32 s{sT0}, s{sTOK}, 4", f"s_add_u32 s{sT0}, s{sT0}, {WS_ST}", f"s_add_u32 s{sT1}, s{sT0}, 128")
    sc.wait_vm("xr")
    tsn(a, "xr")
    c0, c1 = chain(XRW, SA, NM_, 0), chain(XRW + 16, SA + 16, NM_ + 16, 1)
    for x0, x1 in zip(c0, c1):
        if x0[0] == "N":
            n = int(x0[1])
            if n >= 1: a.e(f"s_nop {n-1}")
        else: a.e(x0, x1)
    a.e(f"ds_write_b128 v22, {v(XRW,4)}", f"ds_write_b128 v23, {v(XRW+16,4)}")
    a.e("s_waitcnt lgkmcnt(0)", f"s_mul_i32 s{sNON}, s{sNON}, 1664525", f"s_add_u32 s{sNON}, s{sNON}, 1013904223")
    a.e(f"v_mov_b32 v{vNON}, s{sNON}", f"v_mov_b32 v{NM_+1}, s{sNON}", f"v_mov_b32 v{NM_+3}, s{sNON}", f"v_mov_b32 v{NM_+17}, s{sNON}", f"v_mov_b32 v{NM_+19}, s{sNON}")
    a.e(f"ds_write_b32 v{vFL}, v{vNON} offset:{W_NON}")
    sc.wait_vm("f")
    lpost(a, C_XN)
    a.e("s_mov_b64 exec, 1")
    sc.vmem(f"buffer_store_dwordx4 {v(NM_,4)}, off, {RS}, s{sT0} sc1", "st")
    sc.vmem(f"buffer_store_dwordx4 {v(NM_+16,4)}, off, {RS}, s{sT1} sc1", "st")
    a.e("s_mov_b64 exec, -1")
    tsn(a, "a2")

def kperm(a, d, t):
    a.e(f"v_lshrrev_b32 v{t}, 1, v{vL16}", f"v_xor_b32 v{t}, v{t}, v{vL16}", f"v_and_b32 v{t}, 64, v{t}", f"v_lshl_or_b32 v{t}, v{t}, 1, v{t}", f"v_xor_b32 v{d}, v{vL16}, v{t}")

def slow_path(a, pfx, RB, loadq, cq):
    if RB == 128: QS, KS, VS, SS, PS, OS, CS, MX, T0, T1 = 176, 180, 184, 192, 208, 216, RB + 12, 232, 234, 235
    else:
        assert RB == 64
        QS, KS, VS, SS, PS, OS, CS, MX, T0, T1 = 92, 96, 100, 108, 124, 208, RB + 12, 132, 134, 135
    loadq(QS)
    kperm(a, T1, T0)
    a.e(f"v_mov_b32 v{MX}, 0xff800000", f"s_mov_b32 s{sT0}, {WS_KF}", f"s_mov_b32 s{sT1}, 64")
    a.label(f"{pfx}_l1")
    a.e(f"buffer_load_dwordx4 {v(KS,4)}, v{T1}, {RS}, s{sT0} offen sc1", "s_waitcnt vmcnt(0)")
    a.e(f"{MF} {v(SS,16)}, {v(KS,4)}, {v(QS,4)}, 0")
    a.nop(14)
    for r in range(0, 16, 2): a.e(f"v_max3_f32 v{MX}, v{SS+r}, v{SS+r+1}, v{MX}")
    a.e(f"s_add_u32 s{sT0}, s{sT0}, 1024", f"s_sub_u32 s{sT1}, s{sT1}, 1", f"s_cmp_lg_u32 s{sT1}, 0", f"s_cbranch_scc1 {pfx}_l1")
    a.e(f"v_mov_b32 v{MX+1}, v{MX}")
    a.nop(2)
    a.e(f"v_permlane32_swap_b32 v{MX}, v{MX+1}")
    a.nop(2)
    a.e(f"v_max_f32 v{MX}, v{MX}, v{MX+1}")
    for r in range(16): a.e(f"v_sub_f32 v{CS+r}, 0, v{MX}", f"v_mov_b32 v{OS+r}, 0")
    a.e(f"v_and_b32 v{T0}, 27, v0", f"v_cmp_eq_u32 vcc, 16, v{T0}", f"v_mov_b32 v{T0}, s{sONES}", "s_nop 0", f"v_cndmask_b32 v{VS}, 0, v{T0}, vcc")
    for r in range(1, 8): a.e(f"v_mov_b32 v{VS+r}, v{VS}")
    a.e(f"s_mov_b32 s{sT0}, {WS_KF}", f"s_mov_b32 s{sT2}, {WS_VF}", f"s_mov_b32 s{sT1}, 64")
    a.label(f"{pfx}_l2")
    a.e(f"buffer_load_dwordx4 {v(KS,4)}, v{T1}, {RS}, s{sT0} offen sc1", "s_mov_b32 exec_lo, 0xffff", "s_mov_b32 exec_hi, 0xffff",
        f"buffer_load_dwordx4 {v(VS,4)}, v{vL16}, {RS}, s{sT2} offen sc1",
        f"buffer_load_dwordx4 {v(VS+4,4)}, v{vL16}, {RS}, s{sT2} offen offset:1024 sc1", "s_mov_b64 exec, -1", "s_waitcnt vmcnt(0)")
    a.e(f"{MF} {v(SS,16)}, {v(KS,4)}, {v(QS,4)}, {v(CS,16)}")
    a.nop(14)
    for r in range(16): a.e(f"v_exp_f32 v{SS+r}, v{SS+r}")
    a.e("s_nop 0")
    for j in range(8): a.e(f"v_cvt_pk_bf16_f32 v{PS+j}, v{SS+2*j}, v{SS+2*j+1}")
    a.nop(2)
    a.e(f"{MF} {v(OS,16)}, {v(VS,4)}, {v(PS,4)}, {v(OS,16)}", f"{MF} {v(OS,16)}, {v(VS+4,4)}, {v(PS+4,4)}, {v(OS,16)}")
    a.e(f"s_add_u32 s{sT0}, s{sT0}, 1024", f"s_add_u32 s{sT2}, s{sT2}, 2048", f"s_sub_u32 s{sT1}, s{sT1}, 1", f"s_cmp_lg_u32 s{sT1}, 0")
    a.nop(10)
    a.e(f"s_cbranch_scc1 {pfx}_l2")
    a.nop(14)
    for r in range(9): a.e(f"v_mov_b32 v{RB+r}, v{OS+r}")

def attn_red(a, sc, pfx, ch, LP, RB, scale=None, tagged=False):
    ta, tb = RB + 46, RB + 47
    a.e(f"s_mul_i32 s{sT1}, s{sKQ}, 2304", f"s_add_u32 s{sT0}, s{sT1}, {LP}")
    a.e(f"v_add_u32 v{ta}, s{sT0}, v{vL16}", f"v_lshrrev_b32 v{tb}, 2, v{vL16}", f"v_add_u32 v{tb}, s{sT0}, v{tb}")
    for kq in range(4):
        a.e(f"ds_read_b128 {v(RB+12*kq,4)}, v{ta} offset:{kq*4*2304}", f"ds_read_b128 {v(RB+12*kq+4,4)}, v{ta} offset:{kq*4*2304+1024}",
            f"ds_read_b32 v{RB+12*kq+8}, v{tb} offset:{kq*4*2304+2048}")
    a.e(f"s_mov_b32 s{sT2}, {f2u(2.0**40):#x}", f"s_mov_b32 s{sT3}, {f2u(2.0**120):#x}")
    a.e("s_waitcnt lgkmcnt(0)")
    for r in range(9): a.e(f"v_add_f32 v{RB+r}, v{RB+r}, v{RB+12+r}", f"v_add_f32 v{RB+24+r}, v{RB+24+r}, v{RB+36+r}")
    for r in range(9): a.e(f"v_add_f32 v{RB+r}, v{RB+r}, v{RB+24+r}")
    T = RB + 12
    a.e(f"v_add_f32 v{T}, |v{RB}|, |v{RB+1}|", f"v_add_f32 v{T+1}, |v{RB+2}|, |v{RB+3}|", f"v_add_f32 v{T+2}, |v{RB+4}|, |v{RB+5}|", f"v_add_f32 v{T+3}, |v{RB+6}|, |v{RB+7}|",
        f"v_add_f32 v{T}, v{T}, v{T+1}", f"v_add_f32 v{T+2}, v{T+2}, v{T+3}", f"v_add_f32 v{T}, v{T}, v{T+2}")
    a.e(f"v_cmp_le_f32 vcc, {f2u(2.0**-30):#x}, v{RB+8}", f"v_cmp_ge_f32_e64 s[{sC0}:{sC0+1}], s{sT2}, v{RB+8}", f"v_cmp_gt_f32_e64 s[{sC1}:{sC1+1}], s{sT3}, v{T}")
    a.e("s_nop 1", f"s_and_b64 vcc, vcc, s[{sC0}:{sC0+1}]", f"s_and_b64 vcc, vcc, s[{sC1}:{sC1+1}]", "s_cmp_lg_u64 vcc, -1", f"s_cbranch_scc1 {pfx}_slow")
    a.label(f"{pfx}_norm")
    def ool():
        a.label(f"{pfx}_slow")
        def loadq(QS):
            a.e(f"s_lshl_b32 s{sT0}, s{sKQ}, 10", f"s_add_u32 s{sT0}, s{sT0}, {L_Q + ch*4096}", f"v_add_u32 v{QS}, s{sT0}, v{vL16}", f"ds_read_b128 {v(QS,4)}, v{QS}", "s_waitcnt lgkmcnt(0)")
        slow_path(a, pfx, RB, loadq, None)
        a.e(f"s_branch {pfx}_norm")
    OOL.append(ool)
    if scale is not None: a.e(f"v_mul_f32 v{RB+8}, v{RB+8}, v{scale}", "s_nop 0")
    a.e(f"v_rcp_f32 v{RB+9}, v{RB+8}")
    if tagged:
        a.e(f"s_lshl_b32 s{sT0}, s{sKQ}, 15", f"s_lshl_b32 s{sT1}, s{sTB}, 17", f"s_add_u32 s{sT0}, s{sT0}, s{sT1}", f"s_lshl_b32 s{sT1}, s{sJ}, 11", f"s_add_u32 s{sT0}, s{sT0}, s{sT1}",
            f"s_add_u32 s{sT0}, s{sT0}, {WS_O1}")
        for q in range(4): a.e(f"v_mov_b32 v{RB+13+2*q}, s{sNON}")
        for r in range(8): a.e(f"v_mul_f32 v{RB+r}, v{RB+r}, v{RB+9}")
        for q in range(4): a.e(f"v_cvt_pk_bf16_f32 v{RB+12+2*q}, v{RB+2*q}, v{RB+2*q+1}")
        sc.vmem(f"buffer_store_dwordx4 {v(RB+12,4)}, v{vL16}, {RS}, s{sT0} offen sc1", "ost")
        sc.vmem(f"buffer_store_dwordx4 {v(RB+16,4)}, v{vL16}, {RS}, s{sT0} offen offset:1024 sc1", "ost")
    else:
        a.e(f"s_lshl_b32 s{sT0}, s{sKQ}, 15", f"s_lshl_b32 s{sT1}, s{sTB}, 17", f"s_add_u32 s{sT0}, s{sT0}, s{sT1}", f"s_lshl_b32 s{sT1}, s{sJ}, 11", f"s_add_u32 s{sT0}, s{sT0}, s{sT1}",
            f"s_add_u32 s{sT0}, s{sT0}, {WS_O + ch*1024}")
        for r in range(8): a.e(f"v_mul_f32 v{RB+r}, v{RB+r}, v{RB+9}")
        for q in range(4): a.e(f"v_cvt_pk_bf16_f32 v{RB+12+q}, v{RB+2*q}, v{RB+2*q+1}")
        sc.vmem(f"buffer_store_dwordx4 {v(RB+12,4)}, v{vL16}, {RS}, s{sT0} offen sc1", "ost")
    a.e(f"s_lshl_b32 s{sT3}, s{sTB}, 11", f"s_lshr_b32 s{sT1}, s{sKQ}, 1", f"s_lshl_b32 s{sT1}, s{sT1}, 10", f"s_add_u32 s{sT3}, s{sT3}, s{sT1}",
        f"s_lshl_b32 s{sT1}, s{sJ}, 2", f"s_add_u32 s{sT3}, s{sT3}, s{sT1}",
        f"s_and_b32 s{sT1}, s{sKQ}, 1", f"s_lshl_b32 s{sT1}, s{sT1}, 6", f"s_add_u32 s{sT3}, s{sT3}, s{sT1}", f"s_add_u32 s{sT3}, s{sT3}, {FL_O + ch*32768}")

def kv_wave(a, sc, isV):
    pf = "kvV" if isV else "kvK"
    WF, XF, D = 8, 72, 136
    a.e("v_and_b32 v140, 15, v0", "v_lshrrev_b32 v141, 4, v0", "v_and_b32 v142, 1, v141", "v_lshrrev_b32 v143, 1, v141", "v_lshl_add_u32 v142, v143, 2, v142", "v_lshlrev_b32 v142, 7, v142",
        "v_lshrrev_b32 v144, 2, v140", "v_lshl_add_u32 v142, v144, 5, v142", "v_and_b32 v144, 3, v0", "v_lshl_add_u32 v142, v144, 3, v142", f"v_add_u32 v142, {L_F + (16384 if isV else 0)}, v142")
    a.e("v_and_b32 v144, 7, v0", "v_xor_b32 v144, v144, v143", "v_lshlrev_b32 v144, 4, v144", "v_lshl_add_u32 v144, v141, 7, v144", f"v_add_u32 v144, {L_XN}, v144")
    for q in range(1, 4): a.e(f"v_xor_b32 v{144+q}, {2*q*16}, v144")
    def rd(st):
        sc.lds(f"ds_read_b64_tr_b16 {v(WF+4*st,2)}, v142 offset:{st*1024}", f"r{st}")
        sc.lds(f"ds_read_b64_tr_b16 {v(WF+4*st+2,2)}, v142 offset:{st*1024+256}", f"r{st}")
        sc.lds(f"ds_read_b128 {v(XF+4*st,4)}, v{144+(st&3)} offset:{st*512}", f"r{st}")
    for st in range(5): rd(st)
    if not isV:
        a.e("v_and_b32 v148, 1, v141", "v_lshlrev_b32 v148, 9, v148", "v_lshl_add_u32 v148, v143, 3, v148", "v_and_b32 v149, 7, v0", "v_lshl_add_u32 v148, v149, 4, v148")
        a.e(f"s_lshl_b32 s{sT0}, s{sKT}, 10", f"s_and_b32 s{sT1}, s{sJ}, 3", f"s_lshl_b32 s{sT1}, s{sT1}, 7", f"s_add_u32 s{sT0}, s{sT0}, s{sT1}", f"s_add_u32 s{sT0}, s{sT0}, {WS_KF}")
    else:
        a.e("v_lshlrev_b32 v148, 4, v140", "v_lshl_add_u32 v148, v141, 3, v148")
        a.e(f"s_lshl_b32 s{sT0}, s{sKT}, 11", f"s_and_b32 s{sT1}, s{sJ}, 2", f"s_lshl_b32 s{sT1}, s{sT1}, 9", f"s_add_u32 s{sT0}, s{sT0}, s{sT1}", f"s_and_b32 s{sT1}, s{sJ}, 1", f"s_lshl_b32 s{sT1}, s{sT1}, 9",
            f"s_add_u32 s{sT0}, s{sT0}, s{sT1}", f"s_add_u32 s{sT0}, s{sT0}, {WS_VF}")
    for st in range(16):
        sc.wait_lg(f"r{st}")
        d = D + 4 * (st & 1) * 0
        c0 = "0" if st == 0 else v(D, 4)
        if isV: a.e(f"{MF16} {v(D,4)}, {v(XF+4*st,4)}, {v(WF+4*st,4)}, {c0}")
        else: a.e(f"{MF16} {v(D,4)}, {v(WF+4*st,4)}, {v(XF+4*st,4)}, {c0}")
        if st + 5 < 16: rd(st + 5)
    lpost(a, C_KV)
    a.nop(8)
    a.e(f"v_cvt_pk_bf16_f32 v{D}, v{D}, v{D+1}", f"v_cvt_pk_bf16_f32 v{D+1}, v{D+2}, v{D+3}")
    if isV: a.e("s_mov_b32 exec_lo, -1", "s_mov_b32 exec_hi, 0")
    else: a.e("s_mov_b32 exec_lo, 0x00ff00ff", "s_mov_b32 exec_hi, 0x00ff00ff")
    sc.vmem(f"buffer_store_dwordx2 {v(D,2)}, v148, {RS}, s{sT0} offen sc1", "kvs")
    a.e("s_mov_b64 exec, -1")
    lpost(a, C_KS)
    tsn(a, "kvm")
    if isV:
        sc.wait_vm("kvs")
        lpost(a, C_VS)
    else:
        if "vpoll" not in KNOB:
            a.e(f"s_lshl_b32 s{sT0}, s{sTB}, 8", f"s_lshl_b32 s{sT1}, s{sJ}, 2", f"s_add_u32 s{sT0}, s{sT0}, s{sT1}", f"s_add_u32 s{sT0}, s{sT0}, {FL_KR}", "v_lshlrev_b32 v148, 12, v0")
            sc.wait_vm("kvs")
            lwait(a, "kvv", C_VS, 1, 149)
            a.e(*EXL(16), f"buffer_store_dword v{vNON}, v148, {RS}, s{sT0} offen sc1", "s_mov_b64 exec, -1")
        elif "flat" in KNOB:
            a.e(f"s_lshl_b32 s{sT0}, s{sTB}, 6", f"s_lshl_b32 s{sT1}, s{sJ}, 2", f"s_add_u32 s{sT0}, s{sT0}, s{sT1}", f"s_add_u32 s{sT0}, s{sT0}, {FL_FLAT}", "v_lshlrev_b32 v148, 10, v0")
            sc.wait_vm("kvs")
            lwait(a, "kvv", C_VS, 1, 149)
            a.e(*EXL(nrep()), f"buffer_store_dword v{vNON}, v148, {RS}, s{sT0} offen sc1", "s_mov_b64 exec, -1")
        else:
            a.e(f"s_lshl_b32 s{sT0}, s{sTB}, 8", f"s_lshl_b32 s{sT1}, s{sJ}, 2", f"s_add_u32 s{sT0}, s{sT0}, s{sT1}", f"s_add_u32 s{sT0}, s{sT0}, {FL_KV}")
            sc.wait_vm("kvs")
            lwait(a, "kvv", C_VS, 1, 149)
            post_flag(a, sT0)
    sc.vm.append("flag")
    tsn(a, "kv")

def csp_setup(a, skip="a_poll"):
    if "map84" in KNOB:
        G_ = 7
        a.e(f"s_lshr_b32 s{sT0}, s{sTB}, 3", f"s_lshr_b32 s{sT1}, s{sJ}, 2")
    else:
        G_ = 14
        a.e(f"s_lshr_b32 s{sT0}, s{sTB}, 2", f"s_lshr_b32 s{sT1}, s{sJ}, 3")
    a.e(f"s_lshl_b32 s{sT0}, s{sT0}, 5", f"s_lshr_b32 s{sT2}, s2, 3", f"s_add_u32 s{sT0}, s{sT0}, s{sT2}", f"s_and_b32 s{sRB}, s{sT0}, 3", f"s_lshr_b32 s{sT0}, s{sT0}, 2",
        f"s_mul_i32 s{sT2}, s{sT1}, {G_}", f"s_add_u32 s{sT2}, s{sT2}, s{sT0}")
    a.e(f"s_add_u32 s{sCG}, s{sT2}, {28 - G_}", f"s_sub_u32 s{sT3}, s{sT2}, {G_}", f"s_cmp_lt_u32 s{sT0}, {G_}", f"s_cselect_b32 s{sCG}, s{sT2}, s{sCG}", f"s_cselect_b32 s{sT2}, s{sT2}, s{sT3}",
        f"s_cselect_b32 s{R_C}, s{R_GA}, s{R_GB}", f"s_cselect_b32 s{R_C+1}, s{R_GA+1}, s{R_GB+1}", f"s_mov_b32 s{R_C+2}, {512*3584}", f"s_mov_b32 s{R_C+3}, 0x20000")
    a.e(f"s_mov_b32 s77, s{sT0}", f"s_cmp_ge_u32 s{sT0}, {2*G_}", f"s_cbranch_scc1 {skip}")

def csp_loads(a, sc, CL):
    a.e("v_lshrrev_b32 v24, 3, v0", f"s_lshl_b32 s{sT0}, s{sRB}, 7", f"v_add_u32 v24, s{sT0}, v24",
        "v_mul_u32_u24 v24, 3584, v24", f"s_lshl_b32 s{sT2}, s{sT2}, 7", "v_and_b32 v25, 7, v0", "v_lshl_add_u32 v24, v25, 4, v24", f"v_add_u32 v24, s{sT2}, v24")
    for q in range(16):
        a.e(f"s_mov_b32 s{sT0}, {q*8*3584}")
        sc.vmem(f"buffer_load_dwordx4 {v(CL+4*q,4)}, v24, {SR(R_C)}, s{sT0} offen", f"cs{q//4}")

def csp_compute(a, sc, CL, CA):
    a.e(f"s_mov_b32 s{sT0}, 0x3f80", f"s_mov_b32 s{sT1}, 0x3f800000")
    for q in range(16):
        if q % 4 == 0: sc.wait_vm(f"cs{q//4}")
        for d in range(4):
            c_lo = "0" if q == 0 else f"v{CA+2*d}"; c_hi = "0" if q == 0 else f"v{CA+2*d+1}"
            a.e(f"v_dot2_f32_bf16 v{CA+2*d}, v{CL+4*q+d}, s{sT0}, {c_lo}", f"v_dot2_f32_bf16 v{CA+2*d+1}, v{CL+4*q+d}, s{sT1}, {c_hi}")
    a.e("s_nop 2")
    for d in range(4): a.e(f"v_permlane16_swap_b32 v{CA+2*d}, v{CA+2*d+1}")
    a.e("s_nop 0")
    for d in (2, 3, 0, 1): a.e(f"v_add_f32 v{CA+2*d}, v{CA+2*d}, v{CA+2*d+1}")
    a.e("s_nop 0", f"v_permlane32_swap_b32 v{CA+4}, v{CA+6}", f"v_permlane32_swap_b32 v{CA}, v{CA+2}", "s_nop 0", f"v_add_f32 v{CA+4}, v{CA+4}, v{CA+6}", f"v_add_f32 v{CA}, v{CA}, v{CA+2}", "s_nop 1",
        f"v_add_f32_dpp v{CA+4}, v{CA+4}, v{CA+4} row_ror:8 row_mask:0xf bank_mask:0xf", f"v_add_f32_dpp v{CA}, v{CA}, v{CA} row_ror:8 row_mask:0xf bank_mask:0xf")
    a.e("v_and_b32 v24, 7, v0", "v_lshlrev_b32 v24, 3, v24", "v_lshrrev_b32 v25, 5, v0", "v_lshl_add_u32 v24, v25, 1, v24", "v_lshrrev_b32 v25, 4, v0", "v_and_b32 v25, 1, v25", "v_add_u32 v24, v24, v25",
        "v_lshlrev_b32 v24, 5, v24", f"v_mov_b32 v{CA+1}, s{sNON}", f"v_mov_b32 v{CA+5}, s{sNON}")
    a.e(f"s_lshl_b32 s{sT0}, s{sRB}, 3", f"s_lshl_b32 s{sT1}, s{sCG}, 11", f"s_add_u32 s{sT0}, s{sT0}, s{sT1}", f"s_add_u32 s{sT0}, s{sT0}, {WS_CS}")
    a.e("s_mov_b32 exec_lo, 0x00ff00ff", "s_mov_b32 exec_hi, 0x00ff00ff", f"buffer_store_dwordx2 {v(CA,2)}, v24, {RS}, s{sT0} offen sc1", f"buffer_store_dwordx2 {v(CA+4,2)}, v24, {RS}, s{sT0} offen offset:128 sc1",
        "s_mov_b64 exec, -1")

def a_tile_order(place, PV1, Sm, PV2, e, cv, q):
    M = lambda x: (lambda a: a.e(x) if x else None)
    if place == "even":
        return [PV1, q, e(0), e(1), e(2), e(3), cv(0), e(4), e(5), cv(1), Sm, e(6), e(7), cv(2), e(8), e(9), cv(3), PV2, e(10), e(11), cv(4), e(12), e(13), cv(5), e(14), e(15), cv(6), cv(7)]
    if place == "two":
        return [PV1, q, e(0), e(1), e(2), PV2, e(3), cv(0), e(4), e(5), cv(1), e(6), e(7), cv(2), Sm, e(8), e(9), cv(3), e(10), e(11), cv(4), e(12), e(13), cv(5), e(14), e(15), cv(6), cv(7)]
    return [PV1, q, e(0), e(1), e(2), Sm, e(3), cv(0), e(4), e(5), PV2, cv(1), e(6), e(7), cv(2), e(8), e(9), cv(3), e(10), e(11), cv(4), e(12), e(13), cv(5), e(14), e(15), cv(6), cv(7)]

def role_a(a):
    ROLE[0] = "A"
    a.label("role_a")
    if "noprio0" not in KNOB: a.e("s_setprio 3")
    sc = Sched2(a)
    CL, CA = 100, 164
    a.e(f"s_lshl_b32 s{sT0}, s{sTB}, 7", f"s_lshr_b32 s{sT1}, s{sJ}, 1", f"s_lshl_b32 s{sT1}, s{sT1}, 4", f"s_add_u32 s{sT0}, s{sT0}, s{sT1}",
        f"s_and_b32 s{sT1}, s{sJ}, 1", f"s_lshl_b32 s{sT1}, s{sT1}, 2", f"s_add_u32 s{sT0}, s{sT0}, s{sT1}", f"s_add_u32 s{sTOK}, s{sT0}, s{sKQ}", f"s_lshl_b32 s{sT3}, s{sTOK}, 10")
    a.e(f"v_lshrrev_b32 v21, 1, v{vL16}", f"v_xor_b32 v21, v21, v{vL16}", "v_and_b32 v21, 128, v21", "v_lshl_or_b32 v21, v21, 1, v21", f"v_xor_b32 v21, v{vL16}, v21", f"v_add_u32 v20, 8192, v{vL16}")
    a.e(f"s_lshl_b32 s{sT2}, s{sKQ}, 12", f"s_add_u32 m0, s{sT2}, {L_F}", f"s_add_u32 s{sT1}, s{sT2}, {L_F + 16384}")
    karg_wait(a, "ta", [R_X, R_WK, R_WV, R_D])
    tsn(a, "karg")
    srd_fix(a, R_X, SRDSZ[R_X])
    sc.vmem(f"buffer_load_dwordx4 {v(XRW,4)}, v{vL16}, {SR(R_X)}, s{sT3} offen", "xr")
    sc.vmem(f"buffer_load_dwordx4 {v(XRW+16,4)}, v20, {SR(R_X)}, s{sT3} offen", "xr")
    tsn(a, "ax")
    srd_fix(a, R_WK, 16384)
    for q in range(4): sc.vmem(f"buffer_load_dwordx4 v21, {SR(R_WK)}, s{sT2} offen offset:{q*1024} lds", "f")
    tsn(a, "ak")
    srd_fix(a, R_WV, 16384)
    a.e(f"s_mov_b32 m0, s{sT1}")
    srd_fix(a, R_WS, WS_SIZE)
    for q in range(4): sc.vmem(f"buffer_load_dwordx4 v21, {SR(R_WV)}, s{sT2} offen offset:{q*1024} lds", "f")
    a.e(f"s_load_dword s{sNON}, s[{R_WS}:{R_WS+1}], {NLOC:#x}")
    if "csfirst" in KNOB:
        a.e(f"s_cmp_lg_u32 s{sW}, 6", "s_cbranch_scc1 a_cf0")
        srd_fix(a, R_GA, SRDSZ[R_GA]); srd_fix(a, R_GB, SRDSZ[R_GB])
        csp_setup(a, "a_cf0")
        scc = Sched2(a); scc.vm = list(sc.vm)
        if "csb" in KNOB: a.e("s_barrier")
        csp_loads(a, scc, CL)
        if "csb" not in KNOB: a.e("s_barrier")
        common_rest(a, (R_X, R_WK, R_WV, R_WS, R_GA, R_GB), skip=(R_WQ, R_D, R_O, R_OUT))
        kv_rows(a, scc)
        a.e("s_setprio 0")
        csp_compute(a, scc, CL, CA)
        a.e("s_branch a_poll")
        a.label("a_cf0")
    tsn(a, "av")
    a.e("s_barrier")
    tsn(a, "post")
    tsn(a, "iss")
    common_rest(a, (R_X, R_WK, R_WV, R_WS), skip=(R_WQ, R_D, R_O, R_OUT))
    kv_rows(a, sc)
    a.e(f"s_cmp_lt_u32 s{sW}, 6", "s_cbranch_scc1 a_kv", "s_setprio 0", f"s_cmp_eq_u32 s{sW}, 7", "s_cbranch_scc1 a_pw")
    if "csfirst" in KNOB:
        a.e("s_branch a_poll")
    else:
        csp_setup(a)
        scc = Sched2(a); scc.vm = list(sc.vm)
        if "csearly" not in KNOB: lwait(a, "acs", C_G, 4, 24)
        if "nocsp" not in KNOB:
            csp_loads(a, scc, CL)
            csp_compute(a, scc, CL, CA)
        a.e("s_branch a_poll")
    a.label("a_pw")
    if "vpoll" in KNOB:
        def sweep(name, NP):
            ld = lambda i: f"buffer_load_dwordx4 {v(200+4*i,4)}, v5, {RS}, 0 offen sc1"
            for i in range(NP - 1): a.e(ld(i), f"s_sleep {pgap()}")
            a.e(f"s_mov_b32 s{sCNT}, {SPIN}")
            a.label(f"{name}_loop")
            for i in range(NP):
                b = 200 + 4 * i
                a.e(ld((i + NP - 1) % NP), f"s_waitcnt vmcnt({NP-1})")
                for r in range(4): a.e(f"v_xor_b32 v{b+r}, s{sNON}, v{b+r}")
                a.e(f"v_or_b32 v{b}, v{b}, v{b+1}", f"v_or_b32 v{b+2}, v{b+2}, v{b+3}", f"v_or_b32 v{b}, v{b}, v{b+2}", f"v_cmp_ne_u32 vcc, 0, v{b}", f"s_cbranch_vccz {name}_done", f"s_sleep {pgap()}")
            a.e(f"s_sub_u32 s{sCNT}, s{sCNT}, 1", f"s_cmp_lg_u32 s{sCNT}, 0", f"s_cbranch_scc1 {name}_loop")
            a.label(f"{name}_done")
        NP = 2
        for kn in KNOB:
            if kn.startswith("np"): NP = int(kn[2:])
        lwait(a, "apw", C_VS, 1, 24)
        tsn(a, "pw0")
        if "flat" in KNOB:
            for kn in KNOB:
                if kn.startswith("dly"): a.e(f"s_sleep {int(kn[3:])}")
            a.e(f"s_and_b32 s{sT0}, s2, {nrep()-1}", f"s_lshl_b32 s{sT0}, s{sT0}, 10", f"s_add_u32 s{sT0}, s{sT0}, {FL_FLAT}", f"v_add_u32 v5, s{sT0}, v{vL16}")
            tsn(a, "pw1")
            sweep("pk2", NP)
        else:
            a.e(f"s_cmp_lg_u32 s{sJ}, 0", "s_cbranch_scc1 a_l2")
            a.e(f"s_lshl_b32 s{sT0}, s{sTB}, 8", f"s_add_u32 s{sT0}, s{sT0}, {FL_KV}", f"v_add_u32 v5, s{sT0}, v{vL16}", "s_mov_b64 exec, 0xf")
            sweep("pk1", NP)
            a.e("s_mov_b64 exec, -1", "v_lshlrev_b32 v5, 8, v0", f"s_lshl_b32 s{sT0}, s{sTB}, 2", f"s_add_u32 s{sT0}, s{sT0}, {FL_K2}", *EXL(nrep()),
                f"buffer_store_dword v{vNON}, v5, {RS}, s{sT0} offen sc1", "s_mov_b64 exec, -1")
            a.label("a_l2")
            tsn(a, "pw1")
            a.e(f"s_and_b32 s{sT0}, s2, {nrep()-1}", f"s_lshl_b32 s{sT0}, s{sT0}, 8", f"s_add_u32 s{sT0}, s{sT0}, {FL_K2}", f"v_add_u32 v5, s{sT0}, v{vL16}", "s_mov_b64 exec, 0xf")
            sweep("pk2", NP)
            a.e("s_mov_b64 exec, -1")
        tsn(a, "pw2")
        lpost(a, C_RDY)
        a.e("s_branch a_poll")
    else:
        a.e("s_branch a_poll")
    a.label("a_kv")
    lwait(a, "axn", C_XN, 4, 24)
    tsn(a, "b1")
    a.e(f"s_cmp_eq_u32 s{sW}, 5", "s_cbranch_scc1 a_vw")
    s1 = Sched2(a); s1.vm = list(sc.vm)
    kv_wave(a, s1, False)
    a.e("s_branch a_poll")
    a.label("a_vw")
    s2 = Sched2(a); s2.vm = list(sc.vm)
    kv_wave(a, s2, True)
    a.label("a_poll")
    a.e("s_setprio 0")
    sc = Sched2(a)
    a.e("v_and_b32 v24, 27, v0", "v_cmp_eq_u32 vcc, 16, v24", f"v_mov_b32 v24, s{sONES}", f"s_lshl_b32 s{sK0}, s{sKQ}, 14", f"v_cndmask_b32 v{VF}, 0, v24, vcc")
    for r in range(1, 32): a.e(f"v_mov_b32 v{VF+r}, v{VF}")
    a.e(f"s_add_u32 s{sK0}, s{sK0}, {WS_KF}", f"s_lshl_b32 s{sV0}, s{sKQ}, 15", f"s_add_u32 s{sV0}, s{sV0}, {WS_VF}", f"s_mov_b32 s{sVM}, 0xffff", f"s_mov_b32 s{sVM+1}, 0xffff")
    a.e(f"v_add_u32 v251, {L_Q}, v{vL16}")
    kperm(a, 7, 6)
    if "vpoll" in KNOB:
        lwait(a, "ardy", C_RDY, 1, 6)
    else:
        a.e(f"s_and_b32 s{sT0}, s2, 15", f"s_lshl_b32 s{sT0}, s{sT0}, 12", f"s_lshl_b32 s{sT1}, s{sKQ}, 10", f"s_add_u32 s{sT0}, s{sT0}, s{sT1}", f"s_add_u32 s{sT0}, s{sT0}, {FL_KR}",
            f"s_add_u32 s{sT1}, s{sT0}, 256", f"s_add_u32 s{sT2}, s{sT0}, 512", f"s_add_u32 s{sT3}, s{sT0}, 768")
        spoll(a, "sk0", [8, 36], [sT0, sT1], 24)
        spoll(a, "sk1", [8, 36], [sT2, sT3], 24)
        lpost(a, C_RDY)
    tsn(a, "pol")
    def loadK(k):
        it = []
        if (k & 3) == 0: it.append(('s', f"s_add_u32 s{sKc}, s{sK0}, {(k>>2)*4096}"))
        it.append(('v', lambda: sc.vmem(f"buffer_load_dwordx4 {v(KF+4*k,4)}, v7, {RS}, s{sKc} offen offset:{(k&3)*1024}{KVS()}", f"K{k}")))
        return it
    def loadV(g):
        if g >= 32 or ("nokv" in KNOB and g >= 4): return
        it = []
        k = g & 15 if "kvsame" not in KNOB else 0
        if (k & 1) == 0: it.append(('s', f"s_add_u32 s{sVc}, s{sV0}, {(k>>1)*4096}"))
        it.append(('s', f"s_mov_b64 exec, s[{sVM}:{sVM+1}]"))
        for h in range(2):
            it.append(('v', lambda h=h: sc.vmem(f"buffer_load_dwordx4 {v(VF+8*(g&3)+4*h,4)}, v{vL16}, {RS}, s{sVc} offen offset:{(k&1)*2048+h*1024}{KVS()}", f"V{g}")))
        it.append(('s', "s_mov_b64 exec, -1"))
        return it
    def emit(items):
        for kind, x in items:
            if kind == 's': a.e(x)
            else: x()
    emit(loadK(0)); emit(loadV(0)); emit(loadK(1)); emit(loadV(1))
    for k in range(2, 6): emit(loadK(k))
    emit(loadV(2)); emit(loadV(3))
    for k in range(6, 16): emit(loadK(k))
    lwait(a, "aq", C_Q, 4, 6)
    tsn(a, "b2")
    for c in range(4): a.e(f"ds_read_b128 {v(Q0+4*c,4)}, v251 offset:{c*1024}")
    for c in range(4): a.e(f"ds_read_b128 {v(Q1+4*c,4)}, v251 offset:{4096+c*1024}")
    sc.wait_vm("K0")
    a.e("s_waitcnt lgkmcnt(4)", f"s_setprio {prio_a()}")
    a.e(f"{MF} {v(S,16)}, {v(KF,4)}, {v(Q0,4)}, 0")
    a.e(f"s_mul_i32 s{sT0}, s{sKQ}, {4*2304}", f"s_add_u32 s{sT0}, s{sT0}, {L_P0}", f"v_add_u32 v5, s{sT0}, v{vL16}", f"v_lshrrev_b32 v6, 2, v{vL16}", f"v_add_u32 v6, s{sT0}, v6", "s_waitcnt lgkmcnt(0)")
    a.nop(8)
    a.raw(".p2align 3")
    place = "even" if "even" in KNOB else ("two" if "two" in KNOB else "tight")
    def pwrite(c, off):
        return [('s', f"ds_write_b128 v5, {v(O+16*c,4)} offset:{off+c*2304}"), ('s', f"ds_write_b128 v5, {v(O+16*c+4,4)} offset:{off+c*2304+1024}"),
                ('s', f"ds_write_b32 v6, v{O+16*c+8} offset:{off+c*2304+2048}")]
    for t in range(NT):
        g, c = t // 4, t & 3
        Sin, Sout = S + 16 * (t & 1), S + 16 * ((t + 1) & 1)
        Pcur, Pprev = P + 8 * (t & 1), P + 8 * ((t + 1) & 1)
        q = []
        if c == 1 and g >= 1: q += loadV(g + 3) or []
        tail = []
        if 63 <= t <= 66: tail += pwrite(t - 63, 0)
        if t == 67: tail += [('s', "s_waitcnt lgkmcnt(0)"), ('s', "s_mov_b64 exec, 1"), ('s', f"ds_add_u32 v{vFL}, v{vONE} offset:{C_P0}"), ('s', "s_mov_b64 exec, -1")]
        tsn(a, f"t{t}")
        if 65 <= t <= 67: a.e("s_waitcnt lgkmcnt(0)")
        nt = t + 1; pt = t - 1
        if pt >= 0 and (pt & 3) == 0: sc.wait_vm(f"V{pt//4}")
        if nt < 64 and (nt & 3) == 0: sc.wait_vm(f"K{nt//4}")
        Qn = (Q0 if nt < 64 else Q1) + 4 * (nt & 3)
        Sm = f"{MF} {v(Sout,16)}, {v(KF+4*((nt//4)&15),4)}, {v(Qn,4)}, 0" if nt < NT else None
        PV1 = PV2 = None
        if pt >= 0:
            Op = O + 16 * (pt & 3); vb = VF + 8 * ((pt // 4) & 3)
            c0 = "0" if (pt & 63) < 4 else v(Op, 16)
            PV1 = f"{MF} {v(Op,16)}, {v(vb,4)}, {v(Pprev,4)}, {c0}"
            PV2 = f"{MF} {v(Op,16)}, {v(vb+4,4)}, {v(Pprev+4,4)}, {v(Op,16)}"
        e = lambda i: f"v_exp_f32 v{Sin+i}, v{Sin+i}"
        cv = lambda j: f"v_cvt_pk_bf16_f32 v{Pcur+j}, v{Sin+2*j}, v{Sin+2*j+1}"
        for x in a_tile_order(place, PV1, Sm, PV2, e, cv, q):
            if x is None: continue
            if isinstance(x, list): emit(x)
            else: a.e(x)
        emit(tail)
    tsn(a, "att1")
    a.e("s_setprio 3")
    pt = NT - 1
    Op = O + 16 * 3; vb = VF + 8 * 3; Pp = P + 8 * (pt & 1)
    a.nop(2)
    a.e(f"{MF} {v(Op,16)}, {v(vb,4)}, {v(Pp,4)}, {v(Op,16)}", f"{MF} {v(Op,16)}, {v(vb+4,4)}, {v(Pp+4,4)}, {v(Op,16)}")
    for c in range(3): emit(pwrite(c, PSZ))
    a.nop(12)
    emit(pwrite(3, PSZ))
    a.e("s_waitcnt lgkmcnt(0)")
    lpost(a, C_A)
    lwait(a, "la", C_A, 4, 6)
    sc.vm = []
    TAG1 = "tag1" in KNOB
    attn_red(a, sc, "ry", 1, L_P1, 128, tagged=TAG1)
    if not TAG1: a.e("s_waitcnt vmcnt(0)")
    post_flag8(a, sT3, 5)
    a.e(f"s_xor_b32 s{sT0}, s{sW}, 7", f"s_or_b32 s{sT0}, s{sT0}, s2", f"s_cmp_lg_u32 s{sT0}, 0", "s_cbranch_scc1 a_nonl", f"s_mov_b32 s{sT0}, {NLOC}")
    post_flag(a, sT0)
    a.label("a_nonl")
    tsn(a, "m8")
    ts_dump(a)
    a.e("s_endpgm")

def prio_a():
    for kn in KNOB:
        if kn.startswith("pa"): return int(kn[2:])
    return 1
def prio_g(sec):
    for kn in KNOB:
        if kn.startswith("pg" + sec): return int(kn[2 + len(sec):][1:]) if False else int(kn[len("pg" + sec):])
    return 0

def split3(a, x, d):
    a.e(f"v_cvt_pk_bf16_f32 v{d}, v{x}, v{x}", f"v_and_b32 v{d+3}, s{sMASK}, v{d}", f"v_sub_f32 v{x}, v{x}, v{d+3}",
        f"v_cvt_pk_bf16_f32 v{d+1}, v{x}, v{x}", f"v_and_b32 v{d+3}, s{sMASK}, v{d+1}", f"v_sub_f32 v{x}, v{x}, v{d+3}", f"v_cvt_pk_bf16_f32 v{d+2}, v{x}, v{x}")

def emit_items(a, items):
    for it in items:
        if it[0] == 'v': it[1]()
        else: a.e(it[1])

def role_g(a):
    ROLE[0] = "G"
    a.label("role_g")
    sc = Sched2(a)
    a.e(f"s_cmp_lg_u32 s{sW}, 0", "s_cbranch_scc1 g_nz")
    a.e("v_lshlrev_b32 v23, 2, v0", f"v_add_u32 v23, {L_FL}, v23", "v_mov_b32 v24, 0", "ds_write_b32 v23, v24")
    a.label("g_nz")
    a.e("v_lshrrev_b32 v24, 2, v0", "v_lshlrev_b32 v24, 10, v24", "v_and_b32 v25, 3, v0", "v_lshl_add_u32 v24, v25, 4, v24", f"s_lshl_b32 s{sT0}, s{sJ}, 6", f"v_add_u32 v{vQA}, s{sT0}, v24")
    a.e("v_lshrrev_b32 v24, 3, v0", "v_lshrrev_b32 v25, 4, v0", "v_and_b32 v26, 7, v0", "v_xor_b32 v25, v25, v26", "v_lshlrev_b32 v25, 4, v25", f"v_lshl_add_u32 v{vX}, v24, 10, v25",
        f"v_xor_b32 v{vX+1}, 64, v{vX}", f"v_add_u32 v{vX+1}, 8192, v{vX+1}", f"v_add_u32 v{vX+2}, 16384, v{vX}", f"v_add_u32 v{vX+3}, 16384, v{vX+1}")
    a.e(f"s_lshl_b32 s{sXS}, s{sTB}, 17", f"s_lshl_b32 s{sT0}, s{sW}, 15", f"s_add_u32 s{sXS}, s{sXS}, s{sT0}", f"s_mul_i32 s{sMX}, s{sW}, 12288", f"s_add_u32 s{sMX}, s{sMX}, {L_X}",
        f"s_lshl_b32 s{sXC}, s{sROT}, 7", f"s_lshl_b32 s{sT1}, s{sW}, 13", f"s_add_u32 s{sT1}, s{sT1}, {L_WQ}",
        f"s_lshl_b32 s{sT2}, s{sW}, 17", f"s_lshl_b32 s{sT3}, s{sROT}, 16", f"s_add_u32 s{sT2}, s{sT2}, s{sT3}")
    karg_wait(a, "tg", [R_WQ, R_WS, R_GA, R_GB])
    tsn(a, "karg")
    srd_fix(a, R_WQ, SRDSZ[R_WQ]); srd_fix(a, R_X, SRDSZ[R_X])
    tsn(a, "pre")
    a.e("s_barrier")
    if "glate" in KNOB:
        lwait(a, "gks", C_KS, 2, vCNT)
    tsn(a, "post")
    for i in range(8):
        a.e(f"s_add_u32 m0, s{sT1}, {i*1024}", f"s_add_u32 s{sT0}, s{sT2}, {i*16384}", f"s_and_b32 s{sT0}, s{sT0}, 0x7ffff")
        sc.vmem(f"buffer_load_dwordx4 v{vQA}, {SR(R_WQ)}, s{sT0} offen lds", "wq")
    def xdma(u):
        if u > 7: return []
        it = [('s', f"s_add_u32 s{sT3}, s{sXS}, s{sXC}")]
        for i in range(4):
            it.append(('s', f"s_add_u32 m0, s{sMX}, {(u%3)*4096 + i*1024}"))
            it.append(('s', f"s_add_u32 s{sXC}, s{sXC}, 128" if i == 0 else (f"s_and_b32 s{sXC}, s{sXC}, 1023" if i == 1 else "s_nop 0")))
            it.append(('v', lambda i=i: sc.vmem(f"buffer_load_dwordx4 v{vX+i}, {SR(R_X)}, s{sT3} offen lds", f"x{u}")))
        return it
    tsn(a, "gwq")
    for u in range(3):
        emit_items(a, xdma(u))
        if u == 0: tsn(a, "gx0")
    tsn(a, "iss")
    common_rest(a, (R_WQ, R_X))
    if "touchl" in KNOB:
        a.e("v_mov_b32 v24, 0", "v_lshlrev_b32 v25, 20, v0", "s_mov_b64 exec, 1")
        for r in (R_O, R_OUT): sc.vmem(f"buffer_load_dword v250, v24, {SR(r)}, 0 offen", "tch")
        a.e("s_mov_b64 exec, 0xffff")
        sc.vmem(f"buffer_load_dword v250, v25, {RS}, 0 offen", "tch")
        a.e("s_mov_b64 exec, -1")
    a.e("v_and_b32 v24, 31, v0", "v_lshrrev_b32 v25, 1, v24", "v_and_b32 v25, 7, v25", "v_lshrrev_b32 v26, 5, v0", "v_xor_b32 v25, v25, v26", "v_lshlrev_b32 v25, 4, v25", "v_lshl_add_u32 v25, v24, 7, v25",
        f"v_add_u32 v{vXB}, s{sMX}, v25")
    for k4 in range(1, 4): a.e(f"v_xor_b32 v{vXB+k4}, {k4<<5}, v{vXB}")
    a.e("v_and_b32 v24, 15, v0", "v_lshrrev_b32 v25, 2, v24", "v_lshl_add_u32 v25, v26, 3, v25", "v_lshlrev_b32 v25, 6, v25", "v_lshrrev_b32 v27, 4, v0", "v_and_b32 v27, 1, v27",
        "v_lshl_add_u32 v25, v27, 5, v25", "v_and_b32 v28, 3, v0", "v_lshl_add_u32 v25, v28, 3, v25", f"v_add_u32 v{vQA}, {L_WQ}, v25")
    for r in range(4): a.e(f"v_mov_b32 v{GONE+r}, s{sONES}")
    AQ = AF
    def qreads(u):
        it = []
        for k4 in range(4):
            it.append(('v', lambda k4=k4: sc.lds(f"ds_read_b128 {v(XR+16*u+4*k4,4)}, v{vXB+k4} offset:{(u%3)*4096}", f"q{u}")))
            r = AQ + 16 * (u & 1) + 4 * k4
            k = 4 * u + k4
            it.append(('v', lambda r=r, k=k: sc.lds(f"ds_read_b64_tr_b16 {v(r,2)}, v{vQA} offset:{k*1024}", f"q{u}")))
            it.append(('v', lambda r=r, k=k: sc.lds(f"ds_read_b64_tr_b16 {v(r+2,2)}, v{vQA} offset:{k*1024+256}", f"q{u}")))
        return it
    vWg, vWu, vWgB, vWuB = 252, 253, 254, 255
    def waddr():
        a.e("v_lshrrev_b32 v24, 3, v0", "v_mul_u32_u24 v24, 3584, v24", "v_lshrrev_b32 v25, 4, v0", "v_and_b32 v25, 1, v25", "v_lshlrev_b32 v25, 1, v25", "v_and_b32 v26, 7, v0", "v_xor_b32 v25, v25, v26",
            f"s_mul_i32 s{sT0}, s{sJ}, 224", f"v_add_u32 v24, s{sT0}, v24", f"s_and_b32 s{sT1}, s{sJ}, 3", f"s_lshl_b32 s{sT2}, s{sT1}, 5", f"v_add_u32 v27, s{sT2}, v24",
            f"v_lshl_add_u32 v{vWg}, v25, 4, v27", "v_xor_b32 v26, 4, v25", f"v_lshl_add_u32 v{vWu}, v26, 4, v27")
        for src_, dst in ((25, vWgB), (26, vWuB)):
            a.e(f"v_cmp_le_u32 vcc, 6, v{src_}", f"v_subrev_u32 v27, 2, v{src_}", "s_nop 0", f"v_cndmask_b32 v27, v{src_}, v27, vcc",
                "v_lshrrev_b32 v28, 1, v27", f"v_cmp_le_u32 vcc, s{sT1}, v28", "v_add_u32 v29, 8, v27", "s_nop 0", "v_cndmask_b32 v27, v27, v29, vcc", f"v_lshl_add_u32 v{dst}, v27, 4, v24")
        a.e(f"s_mul_i32 s{sWO}, s{sW}, {16*3584}", f"s_lshl_b32 s{sMW}, s{sW}, 11", f"s_mul_i32 s{sWR}, s{sROT}, {64*3584}")
    def wdma(St):
        if St > 15: return []
        p, st = St // 8, St % 8
        slot = St % 4
        it = [('s', f"s_add_u32 s{sT2}, s{sWO}, s{sWR}")]
        for g, (srd_, vo) in enumerate(((R_GA, vWgB if p else vWg), (R_GB, vWuB if p else vWu))):
            for q in range(2):
                it.append(('s', f"s_add_u32 m0, s{sMW}, {slot*16384 + g*8192 + q*1024}"))
                it.append(('s', f"s_add_u32 s{sT3}, s{sT2}, {8*q*3584}"))
                it.append(('v', lambda srd_=srd_, vo=vo: sc.vmem(f"buffer_load_dwordx4 v{vo}, {SR(srd_)}, s{sT3} offen lds", f"w{St}")))
        it += [('s', f"s_add_u32 s{sWR}, s{sWR}, {64*3584}"), ('s', f"s_cmp_eq_u32 s{sWR}, {512*3584}"), ('s', f"s_cselect_b32 s{sWR}, 0, s{sWR}")]
        return it
    stl = f"buffer_load_dwordx4 {v(GST,4)}, v15, {RS}, 0 offen sc1"
    waddr()
    a.e(f"s_lshl_b32 s{sT0}, s{sTB}, 11", f"s_lshl_b32 s{sT1}, s{sW}, 9", f"s_add_u32 s{sT0}, s{sT0}, s{sT1}", f"s_add_u32 s{sT0}, s{sT0}, {WS_ST}", "v_and_b32 v15, 31, v0", "v_lshlrev_b32 v15, 4, v15",
        f"v_add_u32 v15, s{sT0}, v15")
    QA, CA_ = ACC, ACC + 16
    sc.wait_vm("wq")
    lpost(a, C_G)
    lwait(a, "gwq", C_G, 4, vCNT)
    tsn(a, "b1")
    for u in range(9):
        tsn(a, f"u{u}")
        if u >= 1:
            sc.wait_lg(f"q{u-1}")
        pre = []
        if u >= 1: pre += xdma(u + 2)
        if u == 5: pre += [('v', lambda: sc.vmem(stl, "stl"))] + (wdma(0) if "wlate0" not in KNOB else [])
        if u == 6:
            pre += [('s', lread(C_KV, vCNT))]
        rd = qreads(u) if u < 8 else []
        mf = []
        if u >= 1:
            for k4 in range(4):
                k = 4 * (u - 1) + k4
                r = AQ + 16 * ((u - 1) & 1) + 4 * k4
                mf.append(f"{MF} {v(QA,16)}, {v(r,4)}, {v(XR+4*k,4)}, {'0' if k == 0 else v(QA,16)}")
                mf.append(f"{MF} {v(CA_,16)}, {v(r,4)}, {v(GONE,4)}, {'0' if k == 0 else v(CA_,16)}")
        half = len(mf) // 2
        for i in range(half):
            a.e(mf[i])
            n = (len(pre) + (half - i) - 1) // (half - i)
            emit_items(a, pre[:n]); pre = pre[n:]
        emit_items(a, pre)
        if u == 7:
            a.e("s_waitcnt lgkmcnt(0)"); sc.lg = []
            lcheck(a, "gkv", C_KV, 2, vCNT)
            a.e(f"ds_read_b32 v{vNON}, v{vFL} offset:{W_NON}", "s_waitcnt lgkmcnt(0)", f"v_readfirstlane_b32 s{sNON}, v{vNON}")
            if "wlate" not in KNOB: emit_items(a, wdma(1) + wdma(2))
        if u < 8: sc.wait_vm(f"x{u}")
        rest = mf[half:]
        nslot = max(1, len(rest))
        for i in range(nslot):
            n = (len(rd) + (nslot - i) - 1) // (nslot - i)
            emit_items(a, rd[:n]); rd = rd[n:]
            if rest: a.e(rest[i])
    tsn(a, "q")
    sc.wait_vm("stl")
    tag_check(a, "gst", [stl], [GST + 1, GST + 3], 208)
    a.e(f"v_mov_b32 v{GNM}, v{GST}", f"v_mul_f32 v15, v{GST+2}, v{GST+2}", f"v_mul_f32 v{GRQ}, {f2u(QSCALE):#x}, v{GST+2}",
        f"s_lshl_b32 s{sT0}, s{sW}, 10", f"s_add_u32 s{sT0}, s{sT0}, {L_Q}", f"v_add_u32 v214, s{sT0}, v{vL16}")
    a.nop(6)
    for r in range(16): a.e(f"v_fma_f32 v{QA+r}, v{CA_+r}, v{GNM}, v{QA+r}")
    for r in range(16): a.e(f"v_mul_f32 v{QA+r}, v{QA+r}, v{GRQ}")
    for r in range(8): a.e(f"v_cvt_pk_bf16_f32 v{QA+r}, v{QA+2*r}, v{QA+2*r+1}")
    a.e(f"ds_write_b128 v214, {v(QA,4)}", f"ds_write_b128 v214, {v(QA+4,4)} offset:4096")
    split3(a, GNM, 216)
    a.e(f"v_bfi_b32 v219, s{sLOW}, v216, v217", f"v_bfi_b32 v220, s{sLOW}, v218, v216", f"v_bfi_b32 v221, s{sLOW}, v217, v218", "v_cmp_gt_u32 vcc, 32, v0", "s_nop 1",
        f"v_cndmask_b32 v{BNM}, 0, v219, vcc", f"v_cndmask_b32 v{BNM+1}, 0, v220, vcc", f"v_cndmask_b32 v{BNM+2}, 0, v221, vcc", f"v_cndmask_b32 v{BNM+3}, 0, v219, vcc")
    a.e("v_and_b32 v208, 15, v0", "v_lshrrev_b32 v209, 2, v208", "v_lshrrev_b32 v210, 5, v0", "v_lshl_add_u32 v209, v210, 3, v209", "v_lshlrev_b32 v209, 7, v209",
        "v_lshrrev_b32 v211, 4, v0", "v_and_b32 v211, 1, v211", "v_lshl_add_u32 v209, v211, 13, v209",
        "v_lshrrev_b32 v212, 1, v0", "v_and_b32 v212, 1, v212", "v_lshrrev_b32 v213, 3, v208", "v_lshlrev_b32 v213, 1, v213", "v_xor_b32 v212, v212, v213", "v_lshlrev_b32 v211, 2, v211", "v_xor_b32 v212, v212, v211",
        "v_lshl_add_u32 v209, v212, 4, v209", "v_and_b32 v212, 1, v0", f"v_lshl_add_u32 v{vXB}, v212, 3, v209")
    for t in range(1, 4): a.e(f"v_xor_b32 v{vXB+t}, {32*t}, v{vXB}")
    a.e("v_and_b32 v208, 31, v0", "v_lshrrev_b32 v209, 4, v208", "v_mul_u32_u24 v209, 1776, v209", "v_add_u32 v208, v208, v209", f"s_mul_i32 s{sT0}, s{sJ}, 112", f"v_add_u32 v208, s{sT0}, v208",
        "v_lshlrev_b32 v208, 5, v208", "v_lshl_add_u32 v208, v210, 4, v208",
        f"s_and_b32 s{sT1}, s{sJ}, 3", f"s_add_u32 s{sT2}, s{sT1}, s{sW}", f"s_lshl_b32 s{sT2}, s{sT2}, 9", f"v_add_u32 v5, s{sT2}, v208",
        f"s_add_u32 s{sT2}, s{sW}, 4", f"s_cmp_ge_u32 s{sW}, s{sT1}", f"s_cselect_b32 s{sT2}, s{sT2}, s{sW}", f"s_min_u32 s{sT2}, s{sT2}, 6", f"s_lshl_b32 s{sT2}, s{sT2}, 9", f"v_add_u32 v6, s{sT2}, v208")
    a.e(f"s_lshl_b32 s{sH0}, s{sTB}, 2", f"s_add_u32 s{sH0}, s{sH0}, s{sW}", f"s_mul_i32 s{sH0}, s{sH0}, 112", f"s_mul_i32 s{sT0}, s{sJ}, 7", f"s_add_u32 s{sH0}, s{sH0}, s{sT0}",
        f"s_lshl_b32 s{sH0}, s{sH0}, 10", f"s_add_u32 s{sH0}, s{sH0}, {WS_H}")
    a.e("s_waitcnt lgkmcnt(0)")
    lpost(a, C_Q)
    if "wlate" in KNOB:
        lwait(a, "grdy", C_RDY, 1, vCNT)
        if "wlate0" in KNOB: emit_items(a, wdma(0))
        emit_items(a, wdma(1) + wdma(2))
    sc.wait_vm("w0")
    lpost(a, C_G)
    lwait(a, "gq2", C_G, 8, vCNT)
    sc.lg = []
    tsn(a, "b2")
    PG1, PG2, HI = prio_g("1"), prio_g("2"), 2
    a.e(f"s_setprio {PG1}")
    emit_items(a, wdma(3))
    def wreads(St, kk):
        p = St // 8; nA = 3 if p else 4
        k = 4 * St + kk
        it = []
        for t in range(nA):
            r = AF + 16 * (k & 1) + 4 * t
            off = (St % 4) * 16384 + kk * 2048
            it.append(('v', lambda r=r, t=t, off=off: sc.lds(f"ds_read_b64_tr_b16 {v(r,2)}, v{vXB+t} offset:{off}", f"k{k}")))
            it.append(('v', lambda r=r, t=t, off=off: sc.lds(f"ds_read_b64_tr_b16 {v(r+2,2)}, v{vXB+t} offset:{off+512}", f"k{k}")))
        return it
    CSL = 244
    csl = [f"buffer_load_dwordx4 {v(CSL,4)}, v5, {RS}, s74 offen sc1", f"buffer_load_dwordx4 {v(CSL+4,4)}, v6, {RS}, s74 offen sc1"]
    L_CF = L_XN
    def cs_table():
        sc.wait_vm("csl")
        a.e(f"s_setprio {HI}")
        if "nocsp" not in KNOB: tag_check(a, "gcs", csl, [CSL + 1, CSL + 3, CSL + 5, CSL + 7], 7)
        a.e(f"v_add_f32 v{CSL}, v{CSL}, v{CSL+2}", f"v_add_f32 v{CSL+4}, v{CSL+4}, v{CSL+6}", f"v_mov_b32 v{CSL+1}, v{CSL}", f"v_mov_b32 v{CSL+5}, v{CSL+4}",
            f"s_lshl_b32 s{sT0}, s{sW}, 10", f"s_add_u32 s{sT0}, s{sT0}, {L_CF}", f"v_add_u32 v7, s{sT0}, v{vL16}",
            f"v_permlane32_swap_b32 v{CSL}, v{CSL+1}", f"v_permlane32_swap_b32 v{CSL+4}, v{CSL+5}", "v_cmp_gt_u32 vcc, 32, v0",
            f"v_add_f32 v5, v{CSL}, v{CSL+1}", f"v_add_f32 v6, v{CSL+4}, v{CSL+5}")
        for x, off in ((5, 0), (6, 4096)):
            d = CSL
            split3(a, x, d)
            a.e(f"v_bfi_b32 v{d+5}, s{sLOW}, v{d}, v{d+1}", f"v_cndmask_b32 v{d+4}, 0, v{d}, vcc", f"v_cndmask_b32 v{d+5}, 0, v{d+5}, vcc", f"v_cndmask_b32 v{d+6}, 0, v{d+1}, vcc", f"v_cndmask_b32 v{d+7}, 0, v{d+2}, vcc")
            if off == 0 or True:
                sc.lds(f"ds_write_b128 v7, {v(d+4,4)} offset:{off}", "cw")
            if off == 0: sc.wait_lg("cw")
        a.e(f"s_setprio {PG1}")
    def epilogue(p):
        nA = 3 if p else 4
        a.e(f"s_setprio {HI}", f"v_add_u32 v7, {L_CF + p*4096}, v{vL16}")
        for t in range(nA): sc.lds(f"ds_read_b128 {v(AF+4*t,4)}, v7 offset:{t*1024}", f"c{t}")
        for t in range(nA):
            sc.wait_lg(f"c{t}")
            a.e(f"{MF} {v(ACC+16*t,16)}, {v(AF+4*t,4)}, {v(BNM,4)}, {v(ACC+16*t,16)}")
        for t in range(nA):
            ac = ACC + 16 * t
            if p == 0: a.e(f"s_and_b32 s{sT1}, s{sJ}, 3", f"s_add_u32 s{sT1}, s{sT1}, {t}", f"s_lshl_b32 s{sT1}, s{sT1}, 10", f"s_add_u32 s{sT1}, s{sT1}, s{sH0}")
            else: a.e(f"s_and_b32 s{sT1}, s{sJ}, 3", f"s_cmp_le_u32 s{sT1}, {t}", f"s_cselect_b32 s{sT1}, 4096, 0", f"s_add_u32 s{sT1}, s{sT1}, s{sH0}", f"s_add_u32 s{sT1}, s{sT1}, {t*1024}")
            if t == 0: a.nop(8)
            for r in range(8): a.e(f"v_max_f32 v{ac+r}, 0, v{ac+r}")
            for r in range(8): a.e(f"v_mul_f32 v{ac+r}, v{ac+r}, v{ac+8+r}")
            for jj in range(4): a.e(f"v_cvt_pk_bf16_f32 v{ac+jj}, v{ac+2*jj}, v{ac+2*jj+1}")
            sc.vmem(f"buffer_store_dwordx4 {v(ac,4)}, v{vL16}, {RS}, s{sT1} offen sc1", "hst")
        a.e(f"s_setprio {PG1}")
    NK, NE = 28, 32
    RW, HD, JO = 4, 4, 16
    for kn in KNOB:
        if kn.startswith("rw"): RW = int(kn[2:])
        if kn.startswith("hd"): HD = int(kn[2:])
        if kn.startswith("jo"): JO = int(kn[2:])
    R2 = 8 if "r8" in KNOB else 4
    def slot_off(j): return ((j % R2) & 3) * 2048 + ((j % R2) >> 2) * 32768
    order = [7 * jj + jj + s_ for jj in range(4) for s_ in range(4)] + [7 * jj + t for jj in range(4) for t in range(7) if not (jj <= t < jj + 4)]
    assert sorted(order) == list(range(28))
    vWo, vWo2, vWA0, vWA1, vB2, vB3 = 5, 6, 9, 10, 11, 8
    HS = [16 + 8 * i for i in range(HD)]
    RH = HD
    GA, GACC = 240, 144
    def wo_addr():
        a.e(f"s_setprio {HI}")
        a.e("v_lshrrev_b32 v7, 3, v0", "v_lshlrev_b32 v7, 10, v7", f"v_lshrrev_b32 v{vWo2}, 4, v0", f"v_and_b32 v{vWo2}, 1, v{vWo2}", f"v_lshlrev_b32 v{vWo2}, 2, v{vWo2}",
            f"v_and_b32 v{vWo}, 7, v0", f"v_xor_b32 v{vWo}, v{vWo}, v{vWo2}", f"v_lshl_add_u32 v{vWo}, v{vWo}, 4, v7",
            f"s_lshl_b32 s{sT0}, s{sNB}, 7", f"v_add_u32 v{vWo}, s{sT0}, v{vWo}", f"v_add_u32 v{vWo2}, {8192-1024}, v{vWo}")
        a.e(f"s_lshl_b32 s{sLB}, s{sW}, 13", f"s_mul_i32 s{sGW}, s{sW}, {28*16*1024}", f"s_setprio {PG1}")
    def wd(j):
        if j >= NE or ("now2" in KNOB and j >= 8): return []
        it = [('s', f"s_add_u32 m0, s{sLB}, {slot_off(j)}")]
        if j < NK:
            it += [('s', f"s_add_u32 s{sT3}, s{sGW}, {order[j]*16384}")]
            r = R_D
        else:
            it += [('s', f"s_lshl_b32 s{sT3}, s{sW}, 17"), ('s', f"s_add_u32 s{sT3}, s{sT3}, {2*(j-NK)*16384}")]
            r = R_O
        it += [('v', lambda: sc.vmem(f"buffer_load_dwordx4 v{vWo}, {SR(r)}, s{sT3} offen lds", f"d{j}")),
               ('v', lambda: sc.vmem(f"buffer_load_dwordx4 v{vWo2}, {SR(r)}, s{sT3} offen offset:1024 lds", f"d{j}"))]
        return it
    def hd(j):
        if j >= NE or ("noh2" in KNOB and j >= RH): return []
        h = HS[j % RH]
        if j < NK:
            return [('s', f"s_add_u32 s{sT2}, s{sGB}, {order[j]*1024}"),
                    ('v', lambda: sc.vmem(f"buffer_load_dwordx4 {v(h,4)}, v{vL16}, {RS}, s{sT2} offen", f"h{j}")),
                    ('v', lambda: sc.vmem(f"buffer_load_dwordx4 {v(h+4,4)}, v{vB2r[0]}, {RS}, s{sT2} offen", f"h{j}"))]
        return [('s', f"s_lshl_b32 s{sT2}, s{sTB2}, 16"), ('s', f"s_lshl_b32 s{sT1}, s{sW}, 13"), ('s', f"s_add_u32 s{sT2}, s{sT2}, s{sT1}"), ('s', f"s_add_u32 s{sT2}, s{sT2}, {WS_O + 2*(j-NK)*1024}"),
                ('v', lambda: sc.vmem(f"buffer_load_dwordx4 {v(h,4)}, v{vL16}, {RS}, s{sT2} offen", f"h{j}")),
                ('v', lambda: sc.vmem(f"buffer_load_dwordx4 {v(h+4,4)}, v{vB3}, {RS}, s{sT2} offen", f"h{j}"))]
    vB2r = [244]
    hnext = [0]
    def hissue(upto):
        while hnext[0] < min(upto, NE):
            emit_items(a, hd(hnext[0])); hnext[0] += 1
    def flag_off(base):
        a.e(f"s_lshl_b32 s{sT0}, s{sTB}, 11", f"s_lshr_b32 s{sT1}, s{sW}, 1", f"s_lshl_b32 s{sT1}, s{sT1}, 10", f"s_add_u32 s{sT0}, s{sT0}, s{sT1}", f"s_and_b32 s{sT1}, s{sW}, 1", f"s_lshl_b32 s{sT1}, s{sT1}, 6",
            f"s_add_u32 s{sT0}, s{sT0}, s{sT1}", f"s_lshl_b32 s{sT1}, s{sJ}, 2", f"s_add_u32 s{sT0}, s{sT0}, s{sT1}", f"s_add_u32 s{sT0}, s{sT0}, {base}")
    emit_items(a, wreads(0, 0))
    pend = []
    for St in range(16):
        p = St // 8; nA = 3 if p else 4
        for kk in range(4):
            k = 4 * St + kk
            sc.wait_lg(f"k{k}")
            last = (kk == 3 and St % 8 == 7)
            q = []
            if kk == 3:
                lcheck(a, f"gs{St}", C_G, 4 * (St + 3), vCNT, lo=PG1)
                if not last: q += wreads(St + 1, 0)
                pend = wdma(St + 3) if St >= 1 else []
                if St == 14: pend = [x for jx in range(min(RW, 4)) for x in wd(jx)]
            else:
                q += wreads(St, kk + 1)
                if kk == 2: q.append(('v', lambda k=k: sc.lds(lread(C_G, vCNT), f"k{k+1}")))
                if kk == 0:
                    q = pend + q; pend = []
            post = (kk == 1)
            if St == 1 and kk == 1: q = [('s', f"s_mov_b32 s74, {WS_CS}")] + [('v', lambda x=x: sc.vmem(x, "csl")) for x in csl] + q
            mf = [f"{MF} {v(ACC+16*t,16)}, {v(AF+16*(k&1)+4*t,4)}, {v(XR+4*(k%32),4)}, {'0' if k % 32 == 0 else v(ACC+16*t,16)}" for t in range(nA)]
            for i in range(nA):
                a.e(mf[i])
                if i == 0 and post:
                    if St + 1 < 16: sc.wait_vm(f"w{St+1}")
                    lpost(a, C_G)
                    if St == 10:
                        flag_off(FL_H)
                        a.e(f"s_setprio {HI}")
                        post_flag8(a, sT0, 7); sc.vm.append("flag")
                        a.e(f"s_setprio {PG1}")
                n = (len(q) + (nA - i) - 1) // (nA - i)
                emit_items(a, q[:n]); q = q[n:]
            if St == 4 and kk == 1: cs_table()
            if St == 13 and kk == 2: wo_addr()
            if St == 14 and kk == 1:
                a.e(f"s_setprio {HI}", "v_and_b32 v13, 31, v0", "v_lshlrev_b32 v13, 2, v13", f"v_add_u32 v244, {112*1024}, v{vL16}", f"s_setprio {PG1}",
                    f"s_lshl_b32 s{sFO}, s{sTB2}, 3", f"s_add_u32 s{sFO}, s{sFO}, s{sNB}", f"s_lshl_b32 s{sFO}, s{sFO}, 7", f"s_add_u32 s{sFO}, s{sFO}, {FL_H}")
                a.e(f"s_mul_i32 s{sGB}, s{sTB2}, {2*112*1024}", f"s_mul_i32 s{sT0}, s{sW}, {28*1024}", f"s_add_u32 s{sGB}, s{sGB}, s{sT0}", f"s_add_u32 s{sGB}, s{sGB}, {WS_H}")
                sc.vmem(f"buffer_load_dword v245, v13, {RS}, s{sFO} offen sc1", "pha")
            if St == 15 and kk == 1:
                sc.wait_vm("pha")
                a.e(f"s_setprio {HI}")
                poll_check(a, "pha", 245, 13, f"s{sFO}")
                a.e(f"s_setprio {PG1}")
                tsn(a, "hp")
                hissue(RH)
            if kk == 2 and "notw" not in KNOB:
                if "map48" in KNOB: NSH, per = 4, [(R_D, 448, 7), (R_O, 128, 2)]
                else: NSH, per = 8, [(R_D, 224, 4), (R_O, 64, 1)]
                jobs = [(r, rows, i) for r, rows, n in per for i in range(n)]
                sts = [5, 9]
                for kn in KNOB:
                    if kn.startswith("tws"): sts = [int(x) for x in kn[3:].split("_")]
                if St in sts:
                    part = jobs[sts.index(St)::len(sts)]
                    for idx, (r, rows, i) in enumerate(part):
                        lab = f"g_tw{St}_{idx}"
                        a.e(f"s_cmp_lg_u32 s{sW}, {idx & 3}", f"s_cbranch_scc1 {lab}")
                        a.e(f"s_and_b32 s{sT0}, s{sTB2}, {NSH-1}", f"s_mul_i32 s{sT0}, s{sT0}, {rows*1024}", f"s_add_u32 s{sT0}, s{sT0}, {64*i*1024}",
                            f"s_lshl_b32 s{sT1}, s{sNB}, 7", f"s_add_u32 s{sT0}, s{sT0}, s{sT1}", f"s_setprio {HI}", "v_lshlrev_b32 v7, 10, v0", f"s_setprio {PG1}")
                        nl = min(64, rows - 64 * i)
                        if nl < 64: a.e(*EXL(nl))
                        a.e(f"buffer_load_dword v8, v7, {SR(r)}, s{sT0} offen")
                        if nl < 64: a.e("s_mov_b64 exec, -1")
                        a.label(lab)
        if St % 8 == 7:
            tsn(a, "fA" if p == 0 else "fB")
            if p == 0: emit_items(a, pend); pend = []
            if p == 1 and R2 == 8: lpost(a, C_G)
            epilogue(p)
            tsn(a, "eA" if p == 0 else "eB")
            if p == 0: emit_items(a, wreads(8, 0))
    a.e(f"s_setprio {HI}")
    T = 16 + 8 * HD
    a.e(f"v_mov_b32 v{vB2}, v244", f"v_add_u32 v{vB3}, 32768, v{vL16}")
    vB2r[0] = vB2
    a.e(f"v_and_b32 v{T}, 15, v0", f"v_lshrrev_b32 v{T+1}, 2, v{T}", f"v_lshrrev_b32 v{T+2}, 5, v0", f"v_lshlrev_b32 v{T+2}, 2, v{T+2}", f"v_add_u32 v{T+1}, v{T+1}, v{T+2}",
        f"v_lshlrev_b32 v{T+1}, 7, v{T+1}", f"v_lshrrev_b32 v{T+2}, 3, v{T}", f"v_lshlrev_b32 v{T+2}, 6, v{T+2}", f"v_add_u32 v{T+1}, v{T+1}, v{T+2}",
        f"v_lshrrev_b32 v{T+2}, 4, v0", f"v_and_b32 v{T+2}, 1, v{T+2}", f"v_lshlrev_b32 v{T+2}, 5, v{T+2}", f"v_add_u32 v{T+1}, v{T+1}, v{T+2}",
        f"v_and_b32 v{T+2}, 3, v0", f"v_lshlrev_b32 v{T+2}, 3, v{T+2}", f"v_add_u32 v12, v{T+1}, v{T+2}")
    a.e(f"v_add_u32 v{vWA0}, s{sLB}, v12", f"v_xor_b32 v{vWA1}, 64, v{vWA0}")
    a.e(f"s_setprio {PG2}")
    def areg(j): return GA + 8 * (j & 1)
    def dreads(j):
        if j >= NE: return []
        it = []
        for q, ad in enumerate((vWA0, vWA1)):
            r = areg(j) + 4 * q
            it.append(('v', lambda r=r, ad=ad: sc.lds(f"ds_read_b64_tr_b16 {v(r,2)}, v{ad} offset:{slot_off(j)}", f"k{j}")))
            it.append(('v', lambda r=r, ad=ad: sc.lds(f"ds_read_b64_tr_b16 {v(r+2,2)}, v{ad} offset:{slot_off(j)+1024}", f"k{j}")))
        return it
    wnext = [min(RW, 4)]
    def wissue(upto):
        while wnext[0] < min(upto, NE):
            emit_items(a, wd(wnext[0])); wnext[0] += 1
    sc.lg = []
    sc.wait_vm("d0")
    emit_items(a, dreads(0))
    XRS = 112
    st2 = f"buffer_load_dwordx4 {v(XRS+8,4)}, v124, {RS}, s{sC1} offen sc1"
    sOT = 75
    AFG = [64 + 4 * i for i in range(12)] + [208 + 4 * i for i in range(4)]
    assert JO + 16 <= NE
    JB = 16 - RH - 2
    JP = NK - RH - 2
    for j in range(NE):
        tsn(a, f"f{j}")
        if j == JO:
            lwait(a, "gp0", C_P0, 4, vCNT, lo=PG2)
            tsn(a, "gp0")
            a.e(f"s_setprio {HI}")
            attn_red(a, sc, "ro", 0, L_P0, 64, scale=15)
            lpost(a, C_G)
            a.e(f"s_mov_b32 s{sWO}, s{sT3}", f"s_setprio {PG2}")
            tsn(a, "o0")
        q = []
        if j + 1 < NE:
            q += [('v', lambda j=j: sc.wait_vm(f"d{j+1}"))] + dreads(j + 1)
        sc.wait_lg(f"k{j}")
        sc.wait_vm(f"h{j}")
        h = HS[j % RH]
        mf = []
        for nt in range(2):
            for tt in range(2):
                ac = GACC + (nt * 2 + tt) * 16
                mf.append(f"{MF} {v(ac,16)}, {v(areg(j)+4*nt,4)}, {v(h+4*tt,4)}, {'0' if j == 0 else v(ac,16)}")
        for i in range(4):
            a.e(mf[i])
            if i == 0 and j == 0:
                flag_off(FL_HB)
                a.e(f"s_setprio {HI}")
                post_flag8(a, sT0, 14); sc.vm.append("flag")
                a.e(f"s_setprio {PG2}")
                tsn(a, "hfl")
            if i < 2:
                n = (len(q) + (2 - i) - 1) // (2 - i)
                emit_items(a, q[:n]); q = q[n:]
            if i == 1:
                if R2 == 8 and j == 0:
                    lwait(a, "gs16", C_G, 4 * 19, vCNT, lo=PG2)
                wissue(min(j + R2, j + RW) + 1)
            if i == 3:
                if j == JB:
                    a.e(f"s_add_u32 s{sC1}, s{sFO}, {FL_HB - FL_H}")
                    sc.vmem(f"buffer_load_dword v14, v13, {RS}, s{sC1} offen sc1", "phb")
                if j + RH == 16:
                    sc.wait_vm("phb")
                    a.e(f"s_setprio {HI}")
                    poll_check(a, "phb", 14, 13, f"s{sC1}")
                    a.e(f"s_setprio {PG2}")
                if j == JO + 1:
                    a.e(f"s_waitcnt vmcnt({sc.peek('ost')})", f"s_setprio {HI}")
                    post_flag8(a, sWO, 14); sc.vm.append("flag")
                    a.e(f"s_setprio {PG2}")
                    a.e(f"s_add_u32 s{sFO}, s{sFO}, {FL_O - FL_H}", f"s_add_u32 s{sWO}, s{sFO}, 32768")
                if j == JO + 2:
                    lwait(a, "gs19", C_G, 4 * (19 + (R2 == 8)), vCNT, lo=PG2)
                    for qq in range(4):
                        a.e(f"s_lshl_b32 s{sT0}, s{sW}, 13", f"s_add_u32 m0, s{sT0}, {L_P0 + qq*2048}", f"s_lshl_b32 s{sT3}, s{sW}, 17", f"s_add_u32 s{sT3}, s{sT3}, {(2*qq+1)*16384}")
                        sc.vmem(f"buffer_load_dwordx4 v{vWo}, {SR(R_O)}, s{sT3} offen lds", "wo1")
                        sc.vmem(f"buffer_load_dwordx4 v{vWo2}, {SR(R_O)}, s{sT3} offen offset:1024 lds", "wo1")
                if j == JO + 5:
                    a.e(f"s_waitcnt vmcnt({sc.peek('wo1')})")
                    lpost(a, C_G)
                if j == JO + 8:
                    lwait(a, "gsw", C_G, 4 * (19 + (R2 == 8) + 1), vCNT, lo=PG2)
                    a.e(f"s_lshr_b32 s{sT1}, s{sW}, 1", f"s_lshl_b32 s{sT1}, s{sT1}, 6", f"s_setprio {HI}", f"v_xor_b32 v7, s{sT1}, v12", f"v_add_u32 v7, {L_P0}, v7", f"s_setprio {PG2}")
                if JO + 8 <= j < JO + 16:
                    for jj in range(2 * (j - JO - 8), 2 * (j - JO - 8) + 2):
                        b = AFG[jj]
                        sc.lds(f"ds_read_b64_tr_b16 {v(b,2)}, v7 offset:{jj*2048}", f"k{j+1}"); sc.lds(f"ds_read_b64_tr_b16 {v(b+2,2)}, v7 offset:{jj*2048+1024}", f"k{j+1}")
                if j == JO + 3:
                    a.e(f"s_setprio {HI}", "v_and_b32 v7, 31, v0", "v_lshlrev_b32 v124, 4, v7", "v_lshlrev_b32 v7, 10, v7", "v_lshrrev_b32 v125, 5, v0", "v_lshl_add_u32 v7, v125, 3, v7", f"s_setprio {PG2}")
                    a.e(f"s_lshl_b32 s{sT0}, s{sTB2}, 16", f"s_and_b32 s{sT1}, s{sW}, 1", f"s_lshl_b32 s{sT1}, s{sT1}, 15", f"s_add_u32 s{sT0}, s{sT0}, s{sT1}", f"s_lshr_b32 s{sT2}, s{sT0}, 6", f"s_add_u32 s{sC1}, s{sT2}, {WS_ST}",
                        f"s_lshl_b32 s{sT1}, s{sNB}, 7", f"s_add_u32 s{sT0}, s{sT0}, s{sT1}", f"s_lshr_b32 s{sT1}, s{sW}, 1", f"s_lshl_b32 s{sT1}, s{sT1}, 6",
                        f"s_add_u32 s{sOT}, s{sT0}, s{sT1}")
                    for q4 in range(4):
                        sc.vmem(f"buffer_load_dwordx2 {v(XRS+2*q4,2)}, v7, {SR(R_X)}, s{sOT} offen offset:{q4*16}", "xres")
                    sc.vmem(st2, "xres")
                if j == JO + 6:
                    sc.wait_vm("xres")
                    a.e(f"s_setprio {HI}")
                    tag_check(a, "gst2", [st2], [XRS + 9, XRS + 11], 125)
                    a.e(f"s_setprio {PG2}")
                if j == JP: sc.vmem(f"buffer_load_dword v14, v13, {RS}, s{sFO} offen sc1", "po0")
                if j + RH == NK:
                    sc.wait_vm("po0")
                    a.e(f"s_setprio {HI}")
                    poll_check(a, "po0", 14, 13, f"s{sFO}")
                    a.e(f"s_setprio {PG2}")
                hissue(j + RH + 1)
    assert JO + 2 < JP
    tsn(a, "f2")
    a.e(f"s_setprio {HI}", f"v_add_u32 v7, s{sLB}, v{vL16}")
    a.nop(8)
    for t in range(4):
        for q in range(4):
            a.e(f"ds_write_b128 v7, {v(GACC+16*t+4*q,4)} offset:{(t&1)*4096+(t>>1)*32768+q*1024}")
    a.e(f"s_and_b32 s{sT1}, s{sW}, 1", f"s_lshl_b32 s{sT1}, s{sT1}, 12", f"s_lshr_b32 s{sT2}, s{sW}, 1", f"s_lshl_b32 s{sT2}, s{sT2}, 15", f"s_add_u32 s{sT1}, s{sT1}, s{sT2}", f"v_add_u32 v9, s{sT1}, v{vL16}")
    a.e("s_waitcnt lgkmcnt(0)")
    lpost(a, C_G)
    NPOST = 19 + (R2 == 8) + 2
    lwait(a, "gs21", C_G, 4 * NPOST, 7)
    RB = 144
    for wp in range(4):
        for q in range(4):
            a.e(f"ds_read_b128 {v(RB+16*wp+4*q,4)}, v9 offset:{wp*8192+q*1024}")
        if wp == 2: a.e("s_waitcnt lgkmcnt(4)")
    a.e(f"v_mul_f32 v10, v{XRS+10}, v{XRS+10}")
    TAG1 = "tag1" in KNOB
    a.e(f"s_lshl_b32 s{sGB}, s{sTB2}, 16", f"s_and_b32 s{sT1}, s{sW}, 1", f"s_lshl_b32 s{sT1}, s{sT1}, 15", f"s_add_u32 s{sGB}, s{sGB}, s{sT1}", f"s_add_u32 s{sGB}, s{sGB}, {WS_O1 if TAG1 else WS_O}")
    a.e("v_and_b32 v7, 31, v0", "v_lshlrev_b32 v7, 10, v7", "v_lshrrev_b32 v8, 5, v0", "v_lshlrev_b32 v8, 4, v8", "v_add_u32 v7, v7, v8")
    a.e("s_waitcnt lgkmcnt(0)")
    for r in range(16): a.e(f"v_add_f32 v{RB+r}, v{RB+r}, v{RB+16+r}", f"v_add_f32 v{RB+32+r}, v{RB+32+r}, v{RB+48+r}")
    for r in range(16): a.e(f"v_add_f32 v{RB+r}, v{RB+r}, v{RB+32+r}")
    for q in range(4):
        for d in range(2):
            r = XRS + 2 * q + d
            a.e(f"v_lshlrev_b32 v9, 16, v{r}", f"v_and_b32 v8, s{sMASK}, v{r}",
                f"v_fma_f32 v{RB+4*q+2*d}, v{RB+4*q+2*d}, v10, v9", f"v_fma_f32 v{RB+4*q+2*d+1}, v{RB+4*q+2*d+1}, v10, v8")
    tsn(a, "r2")
    a.e(f"s_and_b32 s{sT1}, s{sW}, 1", f"s_lshl_b32 s{sT1}, s{sT1}, 6", f"s_add_u32 s{sT1}, s{sT1}, s{sWO}")
    tsn(a, "g0")
    spoll(a, "po1", [12], [sT1], 28)
    tsn(a, "po1")
    if TAG1:
        BK = 224
        for r in range(16): a.e(f"v_mov_b32 v{BK+r}, v{RB+r}")
        BG = [16 + 8 * i for i in range(6)] + [112 + 8 * i for i in range(4)] + [160 + 8 * i for i in range(6)]
        a.e(f"s_mul_i32 s{sT3}, s{sNON}, 64")
        def oloads(sfx):
            for i in range(16):
                if i % 2 == 0: a.e(f"s_add_u32 s{sT0}, s{sGB}, {(i//2)*4096}")
                a.e(f"buffer_load_dwordx4 {v(BG[i],4)}, v{vL16}, {RS}, s{sT0} offen offset:{(i%2)*2048}{sfx}", f"buffer_load_dwordx4 {v(BG[i]+4,4)}, v{vL16}, {RS}, s{sT0} offen offset:{(i%2)*2048+1024}{sfx}")
        def ogemm():
            a.e("v_mov_b32 v14, 0")
            for j in range(16):
                b = BG[j]
                a.e(f"s_waitcnt vmcnt({2*(15-j)})")
                a.e(f"v_add3_u32 v14, v14, v{b+1}, v{b+3}", f"v_mov_b32 v{b+1}, v{b+2}", f"v_add3_u32 v14, v14, v{b+5}, v{b+7}", f"v_mov_b32 v{b+2}, v{b+4}", f"v_mov_b32 v{b+3}, v{b+6}")
                a.nop(2)
                a.e(f"{MF} {v(RB,16)}, {v(AFG[j],4)}, {v(b,4)}, {v(RB,16)}")
            a.e(f"v_cmp_ne_u32 vcc, s{sT3}, v14")
        oloads("")
        ogemm()
        a.e("s_cbranch_vccnz og_redo")
        a.label("og_ok")
        def ool():
            a.label("og_redo")
            a.e(f"s_mov_b32 s{sCNT}, {SPIN}")
            a.label("og_loop")
            a.e("s_sleep 4")
            oloads(" sc1")
            a.nop(14)
            for r in range(16): a.e(f"v_mov_b32 v{RB+r}, v{BK+r}")
            ogemm()
            a.e("s_cbranch_vccz og_ok", f"s_sub_u32 s{sCNT}, s{sCNT}, 1", f"s_cmp_lg_u32 s{sCNT}, 0", "s_cbranch_scc1 og_loop", "s_branch og_ok")
        OOL.append(ool)
    else:
        B0 = 16
        heads1 = [2 * j + 1 for j in range(16)]
        for i, h in enumerate(heads1):
            if i % 2 == 0: a.e(f"s_add_u32 s{sT0}, s{sGB}, {(h//4)*4096}")
            a.e(f"buffer_load_dwordx4 {v(B0+4*i,4)}, v{vL16}, {RS}, s{sT0} offen offset:{(h%4)*1024}")
        for j in range(16):
            a.e(f"s_waitcnt vmcnt({15 - j})")
            a.e(f"{MF} {v(RB,16)}, {v(AFG[j],4)}, {v(B0+4*j,4)}, {v(RB,16)}")
    tsn(a, "g1")
    a.nop(14)
    PK = 160
    for q in range(4):
        for d in range(2):
            a.e(f"v_cvt_pk_bf16_f32 v{PK+2*q+d}, v{RB+4*q+2*d}, v{RB+4*q+2*d+1}")
    a.nop(1)
    for p in range(2):
        for d in range(2):
            a.e(f"v_permlane32_swap_b32 v{PK+4*p+d}, v{PK+4*p+2+d}")
    a.nop(2)
    for p in range(2):
        a.e(f"buffer_store_dwordx4 {v(PK+4*p,4)}, v7, {SR(R_OUT)}, s{sOT} offen offset:{p*32}")
    ts_dump(a)
    a.e("s_endpgm")

def gen_main(a):
    name = NAME + "_kernel"
    kernel_header(a, name)
    a.e("s_cmp_ge_u32 s2, 256", "s_cbranch_scc1 kend")
    ts(a, 0, True); ts(a, 1)
    prologue(a)
    role_a(a)
    role_g(a)
    emit_ool(a)
    a.label("kend")
    a.e("s_endpgm")
    return name

def build(outpath):
    a = Asm()
    name = gen_main(a)
    body = a.text()
    probs = check_text(body)
    for p in probs: print("HAZARD:", p, file=sys.stderr)
    out = HEADER + f"; @launch grid=(256,1,1) block=(512,1,1) lds={LDS}\n" + '.amdgcn_target "amdgcn-amd-amdhsa--gfx950"\n.text\n' + body + kernel_desc(name, 256)
    open(outpath, "w").write(out)

if __name__ == "__main__":
    if len(sys.argv) > 1 and sys.argv[1] == "instr":
        gen.INSTR = True
        for k in sys.argv[3:]: KNOB.add(k)
        build(sys.argv[2])
    else:
        for k in sys.argv[2:]: KNOB.add(k)
        build(sys.argv[1])
```
